```python
import torch

def _softmax(x, axis=-1):
    return torch.softmax(x, dim=axis)
def _gelu(x):
    return torch.nn.functional.gelu(x, approximate="tanh")
def _silu(x):
    return torch.nn.functional.silu(x)
def _sigmoid(x):
    return torch.sigmoid(x)
def _layernorm(x, axis=-1, eps=1e-5):
    m = x.mean(dim=axis, keepdim=True)
    v = x.var(dim=axis, keepdim=True, unbiased=False)
    return (x - m) / torch.sqrt(v + eps)
def _scatter_add(tgt, idx, src, axis=0):
    return tgt.clone().index_add_(axis, idx, src)
def _segment_sum(src, seg, n):
    out = torch.zeros((n,) + src.shape[1:], dtype=src.dtype)
    return out.index_add_(0, seg, src)
def _pad(x, pw):
    flat = tuple(v for pair in reversed(pw) for v in pair)
    return torch.nn.functional.pad(x, flat)

kernel_name = 'standalone__kv_cache_quant_int4_int2_kv_with_per_channel_or_per_token_scales__decode'

def setup_inputs():

    _w = (lambda a: (lambda t: t.to(torch.bfloat16) if t.is_floating_point() else t)(torch.as_tensor(a)))
    B = 4
    Sq = 1
    Skv = 4096
    Hq = 32
    Hkv = 8
    Dh = 128
    bits = 8
    G = -1
    if G <= 0 or G >= Skv:
        G = max(1, Skv // 2)
    Skv = (Skv // G) * G
    ngk = Skv // G
    qmax = (1 << bits) - 1
    return {
        "q": _w((lambda *s: torch.randn(*s, dtype=torch.bfloat16) * 0.2)(B, Hq, Sq, Dh)),
        "qk": _w(torch.randint(0, qmax + 1, (B, Hkv, Skv, Dh)).to(torch.int32)),
        "qv": _w(torch.randint(0, qmax + 1, (B, Hkv, Skv, Dh)).to(torch.int32)),
        "k_scales": _w(torch.abs((lambda *s: torch.randn(*s, dtype=torch.bfloat16) * 0.2)(B, Hkv, ngk, Dh)) * 0.05 + 0.02),
        "k_zeros": _w((lambda *s: torch.randn(*s, dtype=torch.bfloat16) * 0.2)(B, Hkv, ngk, Dh) + float(qmax) / 2.0),
        "v_scales": _w(torch.abs((lambda *s: torch.randn(*s, dtype=torch.bfloat16) * 0.05)(B, Hkv, Skv, 1)) * 0.05 + 0.02),
        "v_zeros": _w((lambda *s: torch.randn(*s, dtype=torch.bfloat16) * 0.05)(B, Hkv, Skv, 1) + float(qmax) / 2.0),
    }

def reference(q, qk, qv, k_scales, k_zeros, v_scales, v_zeros):
    B, Hq, Sq, Dh = q.shape
    Hkv, Skv = qk.shape[1], qk.shape[2]
    ngk = k_scales.shape[2]
    G = Skv // ngk
    ks = (lambda x, n, axis: torch.repeat_interleave(x, n, dim=axis))(k_scales, G, axis=2)
    kz = (lambda x, n, axis: torch.repeat_interleave(x, n, dim=axis))(k_zeros, G, axis=2)
    k = ((lambda x, dt: x.to(dt))(qk, q.dtype) - kz) * ks
    v = ((lambda x, dt: x.to(dt))(qv, q.dtype) - v_zeros) * v_scales
    rep = Hq // Hkv
    if rep > 1:
        k = (lambda x, n, axis: torch.repeat_interleave(x, n, dim=axis))(k, rep, axis=1)
        v = (lambda x, n, axis: torch.repeat_interleave(x, n, dim=axis))(v, rep, axis=1)
    scale = float(Dh) ** -0.5
    logits = torch.einsum("bhqd,bhkd->bhqk", q, k) * scale
    p = _softmax(logits, axis=-1)
    o = torch.einsum("bhqk,bhkd->bhqd", p, v)
    return o
```

```python
import sys, math, argparse

KNAME = "standalone__kv_cache_quant_int4_int2_kv_with_per_channel_or_per_token_scales__decode"

class Asm:
    def __init__(self):
        self.lines = []
    def __call__(self, s=""):
        for l in s.split("\n"):
            self.lines.append("    " + l.strip() if l.strip() and not l.strip().endswith(":") else l.strip())
    def text(self):
        return "\n".join(self.lines) + "\n"

def vr(a, n=1):
    return f"v{a}" if n == 1 else f"v[{a}:{a+n-1}]"
def sr(a, n=1):
    return f"s{a}" if n == 1 else f"s[{a}:{a+n-1}]"

def gen(G=16, nt=True, lds_force=0, spin=1 << 16, dbg=False):
    a = Asm()
    NW = 8
    NT = " nt" if nt else ""
    S_WG = 2; S_WAVE = 3
    S_Q, S_QK, S_QV, S_KS, S_KZ, S_VS, S_VZ, S_OUT = 4, 6, 8, 10, 12, 14, 16, 18
    S_DBG, S_WS = 20, 22
    S_KSRD = 24
    S_VSRD = 28
    S_OFF = 32
    S_PAIR = 40; S_CHUNK = 41; S_T0 = 42; S_T1 = 43
    S_SLOT = 44
    S_PSLOT = 46
    S_CNT = 48
    S_OUTP = 50
    S_SPIN = 52
    S_B = 56
    S_EX = 64
    V_LANE = 0
    V_OFFK = 1; V_OFFV = 2
    V_T = 3
    V_BHI = 12
    V_BLO = 16
    V_NEGC = 20
    V_PADDR = 21
    V_CNT = 22
    V_M = 23; V_L = 24; V_CZ = 25
    V_S = 26
    V_VS = 30
    V_VZ = 34
    V_PK = 38
    V_PK2 = 46
    V_D = 54
    V_ACC = 54
    V_PA = 70
    V_RING = 80
    NV = V_RING + 4 * G
    assert NV <= 256
    V_Q = 38
    V_KSR = 42
    V_KZR = 46

    LDS_P = 0
    LDS_RED = 8192
    LDS_STAT = 8192 + 16384
    LDS_TOTAL = LDS_STAT + 256
    lds = max(LDS_TOTAL, lds_force)
    SLOT = 4096
    C = (128 ** -0.5) * math.log2(math.e)
    import struct
    Cbits = struct.unpack("<I", struct.pack("<f", C))[0]

    queue = []
    def issue(tag): queue.append(tag)
    def wait_for(tags):
        idx = max(queue.index(t) for t in tags if t in queue) if any(t in queue for t in tags) else -1
        if idx < 0: return
        n = len(queue) - 1 - idx
        assert n <= 63
        a(f"s_waitcnt vmcnt({n})")
        del queue[:idx + 1]

    hdr = open("cdna_kernels/" + KNAME + ".s.ref").read().split("\n")
    out = []
    for l in hdr:
        if l.startswith("; @launch"):
            out.append(f"; @launch grid=(256,1,1) block=(512,1,1) lds={lds}")
            break
        out.append(l)
    head = "\n".join(out) + "\n"
    head += f""".amdgcn_target "amdgcn-amd-amdhsa--gfx950"
.text
.globl {KNAME}_kernel
.p2align 8
.type {KNAME}_kernel,@function
{KNAME}_kernel:
"""
    a(f"s_cmp_ge_u32 s{S_WG}, 256")
    a("s_cbranch_scc1 L_end")
    a(f"s_load_dwordx16 s[4:19], s[0:1], 0")
    a(f"s_load_dwordx4 s[20:23], s[0:1], 64")
    a(f"v_lshrrev_b32 v{V_T}, 6, v0")
    a(f"v_and_b32 v{V_LANE}, 63, v0")
    a(f"v_readfirstlane_b32 s{S_WAVE}, v{V_T}")
    L = V_LANE
    t0, t1, t2, t3 = V_T, V_T + 1, V_T + 2, V_T + 3
    a(f"v_and_b32 v{t0}, 3, v{L}")
    a(f"v_lshrrev_b32 v{t1}, 4, v{L}")
    a(f"v_bfe_u32 v{t2}, v{L}, 2, 2")
    a(f"v_lshlrev_b32 v{V_OFFK}, 4, v{t0}")
    a(f"v_lshl_or_b32 v{V_OFFK}, v{t1}, 6, v{V_OFFK}")
    a(f"v_and_b32 v{t3}, 1, v{t2}")
    a(f"v_lshl_or_b32 v{V_OFFK}, v{t3}, 9, v{V_OFFK}")
    a(f"v_lshrrev_b32 v{t3}, 1, v{t2}")
    a(f"v_lshl_or_b32 v{V_OFFK}, v{t3}, 12, v{V_OFFK}")
    a(f"v_lshlrev_b32 v{V_OFFV}, 4, v{L}")
    a(f"s_lshr_b32 s{S_PAIR}, s{S_WG}, 3")
    a(f"s_and_b32 s{S_CHUNK}, s{S_WG}, 7")
    a(f"s_lshl_b32 s{S_T0}, s{S_WG}, 18")
    a(f"s_lshl_b32 s{S_T1}, s{S_WAVE}, 15")
    a(f"s_add_u32 s{S_OFF}, s{S_T0}, s{S_T1}")
    for i in range(1, 8):
        a(f"s_add_u32 s{S_OFF+i}, s{S_OFF}, {i*4096}")
    vq, vks, vkz, vsc = V_T + 4, V_T + 5, V_T + 6, V_T + 7
    a(f"v_lshlrev_b32 v{vks}, 5, v{t1}")
    a(f"v_lshl_or_b32 v{vkz}, v{t0}, 3, v{vks}")
    a(f"v_lshl_or_b32 v{vks}, v{t2}, 3, v{vks}")
    a(f"v_lshl_or_b32 v{vq}, v{t0}, 8, v{vks}")
    a(f"v_lshrrev_b32 v{vsc}, 1, v{t1}")
    a(f"v_lshlrev_b32 v{vsc}, 4, v{vsc}")
    a(f"v_lshl_or_b32 v{vsc}, v{t2}, 5, v{vsc}")
    a(f"v_lshrrev_b32 v{V_PADDR}, 5, v{L}")
    a(f"v_lshlrev_b32 v{V_PADDR}, 7, v{V_PADDR}")
    a(f"v_lshl_or_b32 v{V_PADDR}, v{t0}, 3, v{V_PADDR}")
    a(f"s_lshl_b32 s{S_T1}, s{S_WAVE}, 10")
    a(f"v_add_u32 v{V_PADDR}, s{S_T1}, v{V_PADDR}")
    a("s_waitcnt lgkmcnt(0)")
    for srd, p in ((S_KSRD, S_QK), (S_VSRD, S_QV)):
        a(f"s_mov_b32 s{srd}, s{p}")
        a(f"s_and_b32 s{srd+1}, s{p+1}, 0xffff")
        a(f"s_mov_b32 s{srd+2}, 0x4000000")
        a(f"s_mov_b32 s{srd+3}, 0x20000")
    a(f"s_lshl_b32 s{S_T0}, s{S_PAIR}, 10")
    a(f"s_add_u32 s{S_Q}, s{S_Q}, s{S_T0}")
    a(f"s_addc_u32 s{S_Q+1}, s{S_Q+1}, 0")
    a(f"s_lshr_b32 s{S_T0}, s{S_WG}, 2")
    a(f"s_lshl_b32 s{S_T0}, s{S_T0}, 8")
    for p in (S_KS, S_KZ):
        a(f"s_add_u32 s{p}, s{p}, s{S_T0}")
        a(f"s_addc_u32 s{p+1}, s{p+1}, 0")
    a(f"s_lshr_b32 s{S_T0}, s{S_OFF}, 8")
    for p in (S_VS, S_VZ):
        a(f"s_add_u32 s{p}, s{p}, s{S_T0}")
        a(f"s_addc_u32 s{p+1}, s{p+1}, 0")
    a(f"s_lshl_b32 s{S_T0}, s{S_WG}, 12")
    a(f"s_add_u32 s{S_SLOT}, s{S_WS}, s{S_T0}")
    a(f"s_addc_u32 s{S_SLOT+1}, s{S_WS+1}, 0")
    a(f"s_lshl_b32 s{S_T0}, s{S_PAIR}, 15")
    a(f"s_add_u32 s{S_PSLOT}, s{S_WS}, s{S_T0}")
    a(f"s_addc_u32 s{S_PSLOT+1}, s{S_WS+1}, 0")
    a(f"s_lshl_b32 s{S_T0}, s{S_PAIR}, 3")
    a(f"s_add_u32 s{S_CNT}, s{S_DBG}, s{S_T0}")
    a(f"s_addc_u32 s{S_CNT+1}, s{S_DBG+1}, 0")
    a(f"s_cmp_lg_u32 s{S_WAVE}, 0")
    a("s_cbranch_scc1 L_noclear")
    z = V_PK2 + 4
    for i in range(4):
        a(f"v_mov_b32 v{z+i}, -1")
    a(f"global_store_dwordx4 v{V_OFFV}, {vr(z,4)}, {sr(S_SLOT,2)} sc1")
    a(f"global_store_dwordx4 v{V_OFFV}, {vr(z,4)}, {sr(S_SLOT,2)} offset:1024 sc1")
    a(f"global_store_dwordx4 v{V_OFFV}, {vr(z,4)}, {sr(S_SLOT,2)} offset:2048 sc1")
    a("L_noclear:")
    a(f"global_load_dwordx2 {vr(V_Q,2)}, v{vq}, {sr(S_Q,2)}")
    a(f"global_load_dwordx2 {vr(V_Q+2,2)}, v{vq}, {sr(S_Q,2)} offset:128")
    a(f"global_load_dwordx2 {vr(V_KSR,2)}, v{vks}, {sr(S_KS,2)}")
    a(f"global_load_dwordx2 {vr(V_KSR+2,2)}, v{vks}, {sr(S_KS,2)} offset:128")
    a(f"global_load_dwordx2 {vr(V_KZR,2)}, v{vkz}, {sr(S_KZ,2)}")
    a(f"global_load_dwordx2 {vr(V_KZR+2,2)}, v{vkz}, {sr(S_KZ,2)} offset:128")
    for t in ("q0", "q1", "ks0", "ks1", "kz0", "kz1"): issue(t)
    a(f"global_load_dwordx4 {vr(V_VS,4)}, v{vsc}, {sr(S_VS,2)}"); issue("vs")
    a(f"global_load_dwordx4 {vr(V_VZ,4)}, v{vsc}, {sr(S_VZ,2)}"); issue("vz")

    def slot(n): return V_RING + 4 * (n % G)
    def issue_big(n):
        if n >= 64: return
        if n < 32:
            b, g, j = n // 8, (n // 2) % 4, n % 2
            a(f"buffer_load_dwordx4 {vr(slot(n),4)}, v{V_OFFK}, {sr(S_KSRD,4)}, s{S_OFF+2*b} offen offset:{g*1024+j*256}{NT}")
        else:
            m = n - 32
            uu, k = m // 4, m % 4
            a(f"buffer_load_dwordx4 {vr(slot(n),4)}, v{V_OFFV}, {sr(S_VSRD,4)}, s{S_OFF+uu} offen offset:{k*1024}{NT}")
        issue(n)
    for n in range(G):
        issue_big(n)

    wait_for(["q0", "q1", "ks0", "ks1", "kz0", "kz1"])
    a(f"s_cmp_lg_u32 s{S_WAVE}, 0")
    a("s_cbranch_scc1 L_nocount")
    a(f"v_mov_b32 v{t0}, 0")
    a(f"v_mov_b32 v{t1}, 1")
    a(f"s_mov_b64 {sr(S_EX,2)}, exec")
    a("s_mov_b64 exec, 1")
    a(f"global_atomic_add v{t0}, v{t1}, {sr(S_CNT,2)} sc1")
    a(f"s_mov_b64 exec, {sr(S_EX,2)}")
    a("L_nocount:")
    a(f"s_mov_b32 s{S_T0}, 0x{Cbits:08x}")
    a(f"s_mov_b32 s{S_T1}, 0xffff0000")
    x0, x1, y0, y1 = V_T, V_T + 1, V_T + 2, V_T + 3
    for n in range(4):
        a(f"v_lshlrev_b32 v{x0}, 16, v{V_Q+n}")
        a(f"v_and_b32 v{x1}, s{S_T1}, v{V_Q+n}")
        a(f"v_lshlrev_b32 v{y0}, 16, v{V_KSR+n}")
        a(f"v_and_b32 v{y1}, s{S_T1}, v{V_KSR+n}")
        a(f"v_mul_f32 v{x0}, v{x0}, v{y0}")
        a(f"v_mul_f32 v{x1}, v{x1}, v{y1}")
        a(f"v_mul_f32 v{x0}, s{S_T0}, v{x0}")
        a(f"v_mul_f32 v{x1}, s{S_T0}, v{x1}")
        a(f"v_cvt_pk_bf16_f32 v{V_BHI+n}, v{x0}, v{x1}")
        a(f"v_lshlrev_b32 v{y0}, 16, v{V_BHI+n}")
        a(f"v_and_b32 v{y1}, s{S_T1}, v{V_BHI+n}")
        a(f"v_sub_f32 v{x0}, v{x0}, v{y0}")
        a(f"v_sub_f32 v{x1}, v{x1}, v{y1}")
        a(f"v_cvt_pk_bf16_f32 v{V_BLO+n}, v{x0}, v{x1}")
    a("s_nop 1")
    D0 = V_D
    a(f"v_mfma_f32_16x16x32_bf16 {vr(D0,4)}, {vr(V_KZR,4)}, {vr(V_BHI,4)}, 0")
    a(f"v_mfma_f32_16x16x32_bf16 {vr(D0,4)}, {vr(V_KZR,4)}, {vr(V_BLO,4)}, {vr(D0,4)}")
    a("s_nop 7")
    for c in range(4):
        a(f"v_mov_b32_dpp v{V_NEGC}, v{D0+c} quad_perm:[0,1,2,3] row_mask:0xf bank_mask:0x{1<<c:x}")
    a("s_nop 1")
    a(f"v_add_f32_dpp v{V_NEGC}, v{V_NEGC}, v{V_NEGC} row_ror:4 row_mask:0xf bank_mask:0xf")
    a("s_nop 1")
    a(f"v_add_f32_dpp v{V_NEGC}, v{V_NEGC}, v{V_NEGC} row_ror:8 row_mask:0xf bank_mask:0xf")
    a(f"v_sub_f32 v{V_NEGC}, 0, v{V_NEGC}")

    def extract(b, g):
        D = V_D + 4 * ((4 * b + g) % 4)
        first = True
        for c in range(4):
            rot = (4 * (b - c)) % 16
            ctl = f"row_ror:{rot}" if rot else "quad_perm:[0,1,2,3]"
            src1 = V_NEGC if first else V_S + g
            a(f"v_add_f32_dpp v{V_S+g}, v{D+c}, v{src1} {ctl} row_mask:0xf bank_mask:0x{1<<b:x}")
            first = False
    pend = None
    for step in range(16):
        b, g = step // 4, step % 4
        n0, n1 = 2 * step, 2 * step + 1
        PK = V_PK + 4 * (step % 2)
        wait_for([n0, n1])
        for n in (n0, n1):
            for r in range(4):
                a(f"v_cvt_f32_i32 v{slot(n)+r}, v{slot(n)+r}")
        for jj, n in enumerate((n0, n1)):
            a(f"v_cvt_pk_bf16_f32 v{PK+2*jj}, v{slot(n)}, v{slot(n)+1}")
            a(f"v_cvt_pk_bf16_f32 v{PK+2*jj+1}, v{slot(n)+2}, v{slot(n)+3}")
        issue_big(n0 + G)
        issue_big(n1 + G)
        D = V_D + 4 * (step % 4)
        a(f"v_mfma_f32_16x16x32_bf16 {vr(D,4)}, {vr(PK,4)}, {vr(V_BHI,4)}, 0")
        a(f"v_mfma_f32_16x16x32_bf16 {vr(D,4)}, {vr(PK,4)}, {vr(V_BLO,4)}, {vr(D,4)}")
        if pend is not None:
            extract(*pend)
        pend = (b, g)
    a("s_nop 7")
    extract(*pend)

    S = V_S
    a(f"v_max3_f32 v{V_M}, v{S}, v{S+1}, v{S+2}")
    a(f"v_max_f32 v{V_M}, v{V_M}, v{S+3}")
    def allred(reg, op, tmp):
        a("s_nop 1")
        a(f"{op}_dpp v{reg}, v{reg}, v{reg} row_ror:4 row_mask:0xf bank_mask:0xf")
        a("s_nop 1")
        a(f"{op}_dpp v{reg}, v{reg}, v{reg} row_ror:8 row_mask:0xf bank_mask:0xf")
        a(f"v_mov_b32 v{tmp}, v{reg}")
        a("s_nop 1")
        a(f"v_permlane16_swap_b32 v{tmp}, v{reg}")
        a(f"{op} v{reg}, v{reg}, v{tmp}")
        a(f"v_mov_b32 v{tmp}, v{reg}")
        a("s_nop 1")
        a(f"v_permlane32_swap_b32 v{tmp}, v{reg}")
        a(f"{op} v{reg}, v{reg}, v{tmp}")
    allred(V_M, "v_max_f32", t0)
    for g in range(4):
        a(f"v_sub_f32 v{S+g}, v{S+g}, v{V_M}")
    for g in range(4):
        a(f"v_exp_f32 v{S+g}, v{S+g}")
    wait_for(["vs", "vz"])
    a(f"v_lshrrev_b32 v{t1}, 4, v{L}")
    a(f"v_and_b32 v{t1}, 1, v{t1}")
    a(f"v_lshlrev_b32 v{t1}, 4, v{t1}")
    a(f"v_sub_u32 v{t1}, 16, v{t1}")
    a(f"s_mov_b32 s{S_T1}, 0xffff0000")
    for base in (V_VS, V_VZ):
        for g in range(4):
            a(f"v_lshlrev_b32 v{base+g}, v{t1}, v{base+g}")
        for g in range(4):
            a(f"v_and_b32 v{base+g}, s{S_T1}, v{base+g}")
    a(f"v_add_f32 v{V_L}, v{S}, v{S+1}")
    a(f"v_add_f32 v{t0}, v{S+2}, v{S+3}")
    a(f"v_add_f32 v{V_L}, v{V_L}, v{t0}")
    for g in range(4):
        a(f"v_mul_f32 v{S+g}, v{S+g}, v{V_VS+g}")
    hi, lo = V_PA, V_PA + 2
    a(f"v_cvt_pk_bf16_f32 v{hi}, v{S}, v{S+1}")
    a(f"v_cvt_pk_bf16_f32 v{hi+1}, v{S+2}, v{S+3}")
    u = V_T + 4
    a(f"v_lshlrev_b32 v{u}, 16, v{hi}")
    a(f"v_and_b32 v{u+1}, s{S_T1}, v{hi}")
    a(f"v_lshlrev_b32 v{u+2}, 16, v{hi+1}")
    a(f"v_and_b32 v{u+3}, s{S_T1}, v{hi+1}")
    for g in range(4):
        a(f"v_sub_f32 v{S+g}, v{S+g}, v{u+g}")
    a(f"v_cvt_pk_bf16_f32 v{lo}, v{S}, v{S+1}")
    a(f"v_cvt_pk_bf16_f32 v{lo+1}, v{S+2}, v{S+3}")
    a(f"s_lshl_b32 s{S_T0}, s{S_WAVE}, 10")
    a(f"v_lshl_add_u32 v{t1}, v{L}, 3, s{S_T0}")
    a(f"ds_write_b64 v{t1}, {vr(hi,2)} offset:{LDS_P}")
    a(f"ds_write_b64 v{t1}, {vr(lo,2)} offset:{LDS_P+512}")
    a(f"v_lshlrev_b32 v{S}, 16, v{lo}")
    a(f"v_and_b32 v{S+1}, s{S_T1}, v{lo}")
    a(f"v_lshlrev_b32 v{S+2}, 16, v{lo+1}")
    a(f"v_and_b32 v{S+3}, s{S_T1}, v{lo+1}")
    for g in range(4):
        a(f"v_add_f32 v{S+g}, v{S+g}, v{u+g}")
    a(f"v_mul_f32 v{V_CZ}, v{S}, v{V_VZ}")
    for g in range(1, 4):
        a(f"v_fmac_f32 v{V_CZ}, v{S+g}, v{V_VZ+g}")
    allred(V_L, "v_add_f32", t0)
    allred(V_CZ, "v_add_f32", t0)
    for i in range(16):
        a(f"v_mov_b32 v{V_ACC+i}, 0")
    a(f"v_mov_b32 v{V_CNT}, 8")
    a(f"s_cmp_lg_u32 s{S_CHUNK}, 7")
    a("s_cbranch_scc1 L_nocntload")
    a(f"v_mov_b32 v{t0}, 0")
    a(f"global_load_dword v{V_CNT}, v{t0}, {sr(S_CNT,2)} sc1")
    a("L_nocntload:")
    a(f"v_lshlrev_b32 v{t1}, 6, v{L}")
    a(f"s_lshl_b32 s{S_T0}, s{S_WAVE}, 3")
    a(f"v_add_u32 v{t1}, s{S_T0}, v{t1}")
    a(f"v_mov_b32 v{t2}, v{V_M}")
    a(f"v_mov_b32 v{t3}, v{V_L}")
    assert t2 % 2 == 1 or True
    a(f"s_mov_b64 {sr(S_EX,2)}, exec")
    a("s_mov_b64 exec, 0xf")
    a(f"ds_write_b32 v{t1}, v{t2} offset:{LDS_STAT}")
    a(f"ds_write_b32 v{t1}, v{t3} offset:{LDS_STAT+4}")
    a(f"s_mov_b64 exec, {sr(S_EX,2)}")
    a("s_waitcnt lgkmcnt(0)")

    def pa_read(uu):
        P = V_PA + 4 * (uu % 2)
        off = LDS_P + 256 * (uu % 2) + 32 * (uu // 2)
        a(f"ds_read_b64 {vr(P,2)}, v{V_PADDR} offset:{off}")
        a(f"ds_read_b64 {vr(P+2,2)}, v{V_PADDR} offset:{off+512}")
    pa_read(0)
    for uu in range(8):
        PK = V_PK if uu % 2 == 0 else V_PK2
        P = V_PA + 4 * (uu % 2)
        ns = [32 + 4 * uu + k for k in range(4)]
        for half in range(2):
            na, nb = ns[2 * half], ns[2 * half + 1]
            wait_for([na, nb])
            for n in (na, nb):
                for r in range(4):
                    a(f"v_cvt_f32_i32 v{slot(n)+r}, v{slot(n)+r}")
            for r in range(4):
                a(f"v_cvt_pk_bf16_f32 v{PK+2*r+half}, v{slot(na)+r}, v{slot(nb)+r}")
            issue_big(na + G)
            issue_big(nb + G)
        if uu < 7:
            pa_read(uu + 1)
            a("s_waitcnt lgkmcnt(2)")
        else:
            a("s_waitcnt lgkmcnt(0)")
            a("s_nop 0")
        for r in range(4):
            a(f"v_mfma_f32_4x4x4_16b_bf16 {vr(V_ACC+4*r,4)}, {vr(P,2)}, {vr(PK+2*r,2)}, {vr(V_ACC+4*r,4)}")
        for r in range(4):
            a(f"v_mfma_f32_4x4x4_16b_bf16 {vr(V_ACC+4*r,4)}, {vr(P+2,2)}, {vr(PK+2*r,2)}, {vr(V_ACC+4*r,4)}")

    a("s_nop 4")
    for i in range(4):
        a(f"v_permlane32_swap_b32 v{V_ACC+i}, v{V_ACC+8+i}")
        a(f"v_permlane32_swap_b32 v{V_ACC+4+i}, v{V_ACC+12+i}")
    X = V_PK
    for i in range(4):
        a(f"v_add_f32 v{X+2*i}, v{V_ACC+i}, v{V_ACC+8+i}")
        a(f"v_add_f32 v{X+2*i+1}, v{V_ACC+4+i}, v{V_ACC+12+i}")
    for i in range(4):
        a(f"v_subrev_f32_dpp v{X+2*i}, v{V_CZ}, v{X+2*i} quad_perm:[{i},{i},{i},{i}] row_mask:0xf bank_mask:0xf")
        a(f"v_subrev_f32_dpp v{X+2*i+1}, v{V_CZ}, v{X+2*i+1} quad_perm:[{i},{i},{i},{i}] row_mask:0xf bank_mask:0xf")
    a(f"s_lshl_b32 s{S_T0}, s{S_WAVE}, 11")
    a(f"v_lshl_add_u32 v{t1}, v{L}, 3, s{S_T0}")
    for i in range(4):
        a(f"ds_write_b64 v{t1}, {vr(X+2*i,2)} offset:{LDS_RED+512*i}")
    a("s_waitcnt lgkmcnt(0)")
    a("s_barrier")
    a(f"s_cmp_ge_u32 s{S_WAVE}, 4")
    a("s_cbranch_scc1 L_end")
    Y = V_RING
    a(f"s_lshl_b32 s{S_T0}, s{S_WAVE}, 9")
    a(f"v_lshl_add_u32 v{t1}, v{L}, 3, s{S_T0}")
    a(f"v_and_b32 v{t2}, 7, v{L}")
    a(f"s_lshl_b32 s{S_T0}, s{S_WAVE}, 6")
    a(f"v_lshl_add_u32 v{t2}, v{t2}, 3, s{S_T0}")
    ST = V_PK2
    a(f"ds_read_b64 {vr(ST,2)}, v{t2} offset:{LDS_STAT}")
    for w in range(8):
        a(f"ds_read_b64 {vr(Y+2*w,2)}, v{t1} offset:{LDS_RED+2048*w}")
    def red8(reg, op, src=None):
        src = reg if src is None else src
        a(f"{op}_dpp v{reg}, v{src}, v{src} row_ror:4 row_mask:0xf bank_mask:0xf")
        a("s_nop 1")
        a(f"{op}_dpp v{reg}, v{reg}, v{reg} row_ror:2 row_mask:0xf bank_mask:0xf")
        a("s_nop 1")
        a(f"{op}_dpp v{reg}, v{reg}, v{reg} row_ror:1 row_mask:0xf bank_mask:0xf")
    def combine(st, ys, norm):
        red8(V_M, "v_max_f32", st)
        al = t3
        a(f"v_sub_f32 v{al}, v{st}, v{V_M}")
        a(f"v_exp_f32 v{al}, v{al}")
        a("s_nop 0")
        a(f"v_mul_f32 v{V_L}, v{al}, v{st+1}")
        a("s_nop 1")
        red8(V_L, "v_add_f32")
        if norm:
            a(f"v_rcp_f32 v{t0}, v{V_L}")
            a("s_nop 0")
            a(f"v_mul_f32 v{al}, v{al}, v{t0}")
        O0, O1 = V_S, V_S + 1
        a(f"v_mov_b32 v{O0}, 0")
        a(f"v_mov_b32 v{O1}, 0")
        for w in range(8):
            a(f"v_fmac_f32_dpp v{O0}, v{al}, v{ys+2*w} row_newbcast:{w} row_mask:0xf bank_mask:0xf")
            a(f"v_fmac_f32_dpp v{O1}, v{al}, v{ys+2*w+1} row_newbcast:{w} row_mask:0xf bank_mask:0xf")
        return O0, O1
    a("s_waitcnt lgkmcnt(8)")
    red8(V_M, "v_max_f32", ST)
    al = t3
    a(f"v_sub_f32 v{al}, v{ST}, v{V_M}")
    a(f"v_exp_f32 v{al}, v{al}")
    a("s_nop 0")
    a(f"v_mul_f32 v{V_L}, v{al}, v{ST+1}")
    a("s_nop 1")
    red8(V_L, "v_add_f32")
    O0, O1 = V_S, V_S + 1
    assert O0 % 2 == 0
    a(f"v_mov_b32 v{O0}, 0")
    a(f"v_mov_b32 v{O1}, 0")
    a("s_waitcnt lgkmcnt(0)")
    for w in range(8):
        a(f"v_fmac_f32_dpp v{O0}, v{al}, v{Y+2*w} row_newbcast:{w} row_mask:0xf bank_mask:0xf")
        a(f"v_fmac_f32_dpp v{O1}, v{al}, v{Y+2*w+1} row_newbcast:{w} row_mask:0xf bank_mask:0xf")
    a(f"v_min_u32 v{O0}, -2, v{O0}")
    a(f"v_min_u32 v{O1}, -2, v{O1}")
    ML = V_S + 2
    a(f"v_min_u32 v{ML}, -2, v{V_M}")
    a(f"v_min_u32 v{ML+1}, -2, v{V_L}")
    a(f"global_store_dwordx2 v{t1}, {vr(O0,2)}, {sr(S_SLOT,2)} sc1")
    a(f"s_lshl_b32 s{S_T0}, s{S_WAVE}, 3")
    a(f"v_mov_b32 v{t0}, s{S_T0}")
    a(f"s_mov_b64 {sr(S_EX,2)}, exec")
    a("s_mov_b64 exec, 1")
    a(f"global_store_dwordx2 v{t0}, {vr(ML,2)}, {sr(S_SLOT,2)} offset:2048 sc1")
    a(f"s_mov_b64 exec, {sr(S_EX,2)}")
    a(f"s_cmp_lg_u32 s{S_CHUNK}, 7")
    a("s_cbranch_scc1 L_end")
    a(f"s_mov_b32 s{S_SPIN}, {spin}")
    a("L_cntloop:")
    a(f"v_cmp_gt_u32 vcc, 8, v{V_CNT}")
    a("s_cbranch_vccz L_cntok")
    a(f"s_sub_u32 s{S_SPIN}, s{S_SPIN}, 1")
    a("s_cbranch_scc1 L_end")
    a(f"v_mov_b32 v{t0}, 0")
    a(f"global_load_dword v{V_CNT}, v{t0}, {sr(S_CNT,2)} sc1")
    a("s_waitcnt vmcnt(0)")
    a("s_branch L_cntloop")
    a("L_cntok:")
    a(f"v_and_b32 v{t2}, 7, v{L}")
    a(f"v_lshlrev_b32 v{t2}, 12, v{t2}")
    a(f"v_add_u32 v{t2}, s{S_T0}, v{t2}")
    va = V_PK
    for c in range(8):
        a(f"v_add_u32 v{va+c}, {c*4096}, v{t1}")
    a("L_poll:")
    a(f"global_load_dwordx2 {vr(ST,2)}, v{t2}, {sr(S_PSLOT,2)} offset:2048 sc1")
    for c in range(8):
        a(f"global_load_dwordx2 {vr(Y+2*c,2)}, v{va+c}, {sr(S_PSLOT,2)} sc1")
    a("s_waitcnt vmcnt(0)")
    a(f"v_max3_u32 v{t0}, v{ST}, v{ST+1}, v{Y}")
    for i in range(1, 15, 2):
        a(f"v_max3_u32 v{t0}, v{t0}, v{Y+i}, v{Y+i+1}")
    a(f"v_max_u32 v{t0}, v{t0}, v{Y+15}")
    a(f"v_cmp_eq_u32 vcc, -1, v{t0}")
    a("s_cbranch_vccz L_ready")
    a(f"s_sub_u32 s{S_SPIN}, s{S_SPIN}, 1")
    a("s_cbranch_scc0 L_poll")
    a("s_branch L_end")
    a("L_ready:")
    red8(V_M, "v_max_f32", ST)
    a(f"v_sub_f32 v{al}, v{ST}, v{V_M}")
    a(f"v_exp_f32 v{al}, v{al}")
    a("s_nop 0")
    a(f"v_mul_f32 v{V_L}, v{al}, v{ST+1}")
    a("s_nop 1")
    red8(V_L, "v_add_f32")
    a(f"v_rcp_f32 v{t0}, v{V_L}")
    a(f"v_mov_b32 v{O0}, 0")
    a(f"v_mul_f32 v{al}, v{al}, v{t0}")
    a(f"v_mov_b32 v{O1}, 0")
    a("s_nop 0")
    for w in range(8):
        a(f"v_fmac_f32_dpp v{O0}, v{al}, v{Y+2*w} row_newbcast:{w} row_mask:0xf bank_mask:0xf")
        a(f"v_fmac_f32_dpp v{O1}, v{al}, v{Y+2*w+1} row_newbcast:{w} row_mask:0xf bank_mask:0xf")
    a(f"v_cvt_pk_bf16_f32 v{t0}, v{O0}, v{O1}")
    a(f"v_and_b32 v{t2}, 31, v{L}")
    a(f"v_lshlrev_b32 v{t2}, 3, v{t2}")
    a(f"v_lshrrev_b32 v{t3}, 5, v{L}")
    a(f"v_lshl_or_b32 v{t2}, v{t3}, 2, v{t2}")
    a(f"s_lshl_b32 s{S_T0}, s{S_PAIR}, 10")
    a(f"s_lshl_b32 s{S_T1}, s{S_WAVE}, 8")
    a(f"s_add_u32 s{S_T0}, s{S_T0}, s{S_T1}")
    a(f"v_add_u32 v{t2}, s{S_T0}, v{t2}")
    a(f"global_store_dword v{t2}, v{t0}, {sr(S_OUT,2)}")
    a("L_end:")
    a("s_endpgm")
    tail = f""".section .rodata,"a"
.p2align 6
.amdhsa_kernel {KNAME}_kernel
  .amdhsa_next_free_vgpr {NV}
  .amdhsa_next_free_sgpr 72
  .amdhsa_accum_offset {(NV+3)//4*4}
  .amdhsa_group_segment_fixed_size 0
  .amdhsa_kernarg_size 80
  .amdhsa_user_sgpr_count 2
  .amdhsa_user_sgpr_kernarg_segment_ptr 1
  .amdhsa_system_sgpr_workgroup_id_x 1
  .amdhsa_float_denorm_mode_32 3
.end_amdhsa_kernel
"""
    return head + a.text() + tail

if __name__ == "__main__":
    ap = argparse.ArgumentParser()
    ap.add_argument("-G", type=int, default=16)
    ap.add_argument("--no-nt", action="store_true")
    ap.add_argument("--lds", type=int, default=0)
    ap.add_argument("-o", default="cdna_kernels/" + KNAME + ".s")
    args = ap.parse_args()
    open(args.o, "w").write(gen(G=args.G, nt=not args.no_nt, lds_force=args.lds))
    print("wrote", args.o)
```

```python
import sys, math, argparse

KNAME = "standalone__kv_cache_quant_int4_int2_kv_with_per_channel_or_per_token_scales__decode"

class Asm:
    def __init__(self):
        self.lines = []
    def __call__(self, s=""):
        for l in s.split("\n"):
            self.lines.append("    " + l.strip() if l.strip() and not l.strip().endswith(":") else l.strip())
    def text(self):
        return "\n".join(self.lines) + "\n"

def vr(a, n=1):
    return f"v{a}" if n == 1 else f"v[{a}:{a+n-1}]"
def sr(a, n=1):
    return f"s{a}" if n == 1 else f"s[{a}:{a+n-1}]"

def gen(G=16, nt=True, lds_force=0, spin=1 << 16, stamps=False, opts=()):
    a = Asm()
    NW = 8
    NT = " nt" if nt else ""
    S_WG = 2; S_WAVE = 3
    S_Q, S_QK, S_QV, S_KS, S_KZ, S_VS, S_VZ, S_OUT = 4, 6, 8, 10, 12, 14, 16, 18
    S_DBG, S_WS = 20, 22
    S_KSRD = 24
    S_VSRD = 28
    S_OFF = 32
    S_PAIR = 40; S_CHUNK = 41; S_T0 = 42; S_T1 = 43
    S_SLOT = 44
    S_PSLOT = 46
    S_CNT = 48
    S_OUTP = 50
    S_SPIN = 52
    S_B = 56
    S_EX = 64
    V_LANE = 0
    V_OFFK = 1; V_OFFV = 2
    V_T = 3
    V_BHI = 12
    V_BLO = 16
    V_NEGC = 20
    V_PADDR = 21
    V_CNT = 22
    V_M = 23; V_L = 24; V_CZ = 25
    V_S = 26
    V_VS = 30
    V_VZ = 34
    V_PK = 38
    V_PK2 = 46
    V_D = 54
    V_ACC = 54
    V_PA = 70
    V_RING = 80
    NV = V_RING + 4 * G
    assert NV <= 256
    V_Q = 38
    V_KSR = 42
    V_KZR = 46

    LDS_P = 0
    LDS_RED = 8192
    LDS_STAT = 8192 + 16384
    LDS_TOTAL = LDS_STAT + 256
    lds = max(LDS_TOTAL, lds_force)
    SLOT = 4096
    C = (128 ** -0.5) * math.log2(math.e)
    import struct
    Cbits = struct.unpack("<I", struct.pack("<f", C))[0]

    queue = []
    def issue(tag): queue.append(tag)
    def wait_for(tags):
        idx = max(queue.index(t) for t in tags if t in queue) if any(t in queue for t in tags) else -1
        if idx < 0: return
        n = len(queue) - 1 - idx
        assert n <= 63
        a(f"s_waitcnt vmcnt({n})")
        del queue[:idx + 1]

    S_ST = 70
    def stamp(i):
        if stamps:
            a(f"s_memrealtime s[{S_ST+2*i}:{S_ST+2*i+1}]")
    def flush_stamps(n, tag):
        if not stamps: return
        a("s_waitcnt lgkmcnt(0)")
        vx, va_ = 78, 79
        a(f"v_mov_b32 v{vx}, 0")
        for i in range(n):
            a(f"v_writelane_b32 v{vx}, s{S_ST+2*i}, {i}")
        a(f"s_getreg_b32 s{S_T1}, hwreg(HW_REG_HW_ID)")
        a(f"v_writelane_b32 v{vx}, s{S_T1}, 14")
        a(f"s_getreg_b32 s{S_T1}, hwreg(HW_REG_XCC_ID)")
        a(f"v_writelane_b32 v{vx}, s{S_T1}, 15")
        a(f"s_lshl_b32 s{S_T1}, s{S_WG}, 3")
        a(f"s_add_u32 s{S_T1}, s{S_T1}, s{S_WAVE}")
        a(f"s_lshl_b32 s{S_T1}, s{S_T1}, 6")
        a(f"s_add_u32 s{S_T1}, s{S_T1}, 0x8000000")
        a(f"v_lshl_add_u32 v{va_}, v{V_LANE}, 2, s{S_T1}")
        a(f"s_mov_b64 {sr(S_EX,2)}, exec")
        a("s_mov_b64 exec, 0xffff")
        a(f"global_store_dword v{va_}, v{vx}, {sr(S_WS,2)}")
        a(f"s_mov_b64 exec, {sr(S_EX,2)}")
    hdr = open("cdna_kernels/" + KNAME + ".s.ref").read().split("\n")
    out = []
    for l in hdr:
        if l.startswith("; @launch"):
            out.append(f"; @launch grid=(256,1,1) block=(512,1,1) lds={lds}")
            break
        out.append(l)
    head = "\n".join(out) + "\n"
    head += f""".amdgcn_target "amdgcn-amd-amdhsa--gfx950"
.text
.globl {KNAME}_kernel
.p2align 8
.type {KNAME}_kernel,@function
{KNAME}_kernel:
"""
    a(f"s_cmp_ge_u32 s{S_WG}, 256")
    a("s_cbranch_scc1 L_end")
    stamp(0)
    a(f"s_load_dwordx16 s[4:19], s[0:1], 0")
    a(f"s_load_dwordx4 s[20:23], s[0:1], 64")
    a(f"v_lshrrev_b32 v{V_T}, 6, v0")
    a(f"v_and_b32 v{V_LANE}, 63, v0")
    a(f"v_readfirstlane_b32 s{S_WAVE}, v{V_T}")
    L = V_LANE
    t0, t1, t2, t3 = V_T, V_T + 1, V_T + 2, V_T + 3
    a(f"v_and_b32 v{t0}, 3, v{L}")
    a(f"v_lshrrev_b32 v{t1}, 4, v{L}")
    a(f"v_bfe_u32 v{t2}, v{L}, 2, 2")
    a(f"v_lshlrev_b32 v{V_OFFK}, 4, v{t0}")
    a(f"v_lshl_or_b32 v{V_OFFK}, v{t1}, 6, v{V_OFFK}")
    a(f"v_and_b32 v{t3}, 1, v{t2}")
    a(f"v_lshl_or_b32 v{V_OFFK}, v{t3}, 9, v{V_OFFK}")
    a(f"v_lshrrev_b32 v{t3}, 1, v{t2}")
    a(f"v_lshl_or_b32 v{V_OFFK}, v{t3}, 12, v{V_OFFK}")
    a(f"v_lshlrev_b32 v{V_OFFV}, 4, v{L}")
    a(f"s_lshr_b32 s{S_PAIR}, s{S_WG}, 3")
    a(f"s_and_b32 s{S_CHUNK}, s{S_WG}, 7")
    a(f"s_lshl_b32 s{S_T0}, s{S_WG}, 18")
    a(f"s_lshl_b32 s{S_T1}, s{S_WAVE}, 15")
    a(f"s_add_u32 s{S_OFF}, s{S_T0}, s{S_T1}")
    for i in range(1, 8):
        a(f"s_add_u32 s{S_OFF+i}, s{S_OFF}, {i*4096}")
    vq, vks, vkz, vsc = V_T + 4, V_T + 5, V_T + 6, V_T + 7
    a(f"v_lshlrev_b32 v{vks}, 5, v{t1}")
    a(f"v_lshl_or_b32 v{vkz}, v{t0}, 3, v{vks}")
    a(f"v_lshl_or_b32 v{vks}, v{t2}, 3, v{vks}")
    a(f"v_lshl_or_b32 v{vq}, v{t0}, 8, v{vks}")
    a(f"v_lshrrev_b32 v{vsc}, 1, v{t1}")
    a(f"v_lshlrev_b32 v{vsc}, 4, v{vsc}")
    a(f"v_lshl_or_b32 v{vsc}, v{t2}, 5, v{vsc}")
    a(f"v_lshrrev_b32 v{V_PADDR}, 5, v{L}")
    a(f"v_lshlrev_b32 v{V_PADDR}, 7, v{V_PADDR}")
    a(f"v_lshl_or_b32 v{V_PADDR}, v{t0}, 3, v{V_PADDR}")
    a(f"s_lshl_b32 s{S_T1}, s{S_WAVE}, 10")
    a(f"v_add_u32 v{V_PADDR}, s{S_T1}, v{V_PADDR}")
    a("s_waitcnt lgkmcnt(0)")
    stamp(1)
    for srd, p in ((S_KSRD, S_QK), (S_VSRD, S_QV)):
        a(f"s_mov_b32 s{srd}, s{p}")
        a(f"s_and_b32 s{srd+1}, s{p+1}, 0xffff")
        a(f"s_mov_b32 s{srd+2}, 0x4000000")
        a(f"s_mov_b32 s{srd+3}, 0x20000")
    a(f"s_lshl_b32 s{S_T0}, s{S_PAIR}, 10")
    a(f"s_add_u32 s{S_Q}, s{S_Q}, s{S_T0}")
    a(f"s_addc_u32 s{S_Q+1}, s{S_Q+1}, 0")
    a(f"s_lshr_b32 s{S_T0}, s{S_WG}, 2")
    a(f"s_lshl_b32 s{S_T0}, s{S_T0}, 8")
    for p in (S_KS, S_KZ):
        a(f"s_add_u32 s{p}, s{p}, s{S_T0}")
        a(f"s_addc_u32 s{p+1}, s{p+1}, 0")
    a(f"s_lshr_b32 s{S_T0}, s{S_OFF}, 8")
    for p in (S_VS, S_VZ):
        a(f"s_add_u32 s{p}, s{p}, s{S_T0}")
        a(f"s_addc_u32 s{p+1}, s{p+1}, 0")
    a(f"s_lshl_b32 s{S_T0}, s{S_WG}, 12")
    a(f"s_add_u32 s{S_SLOT}, s{S_WS}, s{S_T0}")
    a(f"s_addc_u32 s{S_SLOT+1}, s{S_WS+1}, 0")
    a(f"s_lshl_b32 s{S_T0}, s{S_PAIR}, 15")
    a(f"s_add_u32 s{S_PSLOT}, s{S_WS}, s{S_T0}")
    a(f"s_addc_u32 s{S_PSLOT+1}, s{S_WS+1}, 0")
    a(f"s_lshl_b32 s{S_T0}, s{S_PAIR}, 3")
    if "dbgstamps" in opts:
        a(f"s_add_u32 s{S_T0}, s{S_T0}, 4")
    a(f"s_add_u32 s{S_CNT}, s{S_DBG}, s{S_T0}")
    a(f"s_addc_u32 s{S_CNT+1}, s{S_DBG+1}, 0")
    a(f"s_cmp_lg_u32 s{S_WAVE}, 0")
    a("s_cbranch_scc1 L_noclear")
    z = V_PK2 + 4
    for i in range(4):
        a(f"v_mov_b32 v{z+i}, -1")
    a(f"global_store_dwordx4 v{V_OFFV}, {vr(z,4)}, {sr(S_SLOT,2)} sc1")
    a(f"global_store_dwordx4 v{V_OFFV}, {vr(z,4)}, {sr(S_SLOT,2)} offset:1024 sc1")
    a(f"global_store_dwordx4 v{V_OFFV}, {vr(z,4)}, {sr(S_SLOT,2)} offset:2048 sc1")
    a("L_noclear:")
    a(f"global_load_dwordx2 {vr(V_Q,2)}, v{vq}, {sr(S_Q,2)}")
    a(f"global_load_dwordx2 {vr(V_Q+2,2)}, v{vq}, {sr(S_Q,2)} offset:128")
    a(f"global_load_dwordx2 {vr(V_KSR,2)}, v{vks}, {sr(S_KS,2)}")
    a(f"global_load_dwordx2 {vr(V_KSR+2,2)}, v{vks}, {sr(S_KS,2)} offset:128")
    a(f"global_load_dwordx2 {vr(V_KZR,2)}, v{vkz}, {sr(S_KZ,2)}")
    a(f"global_load_dwordx2 {vr(V_KZR+2,2)}, v{vkz}, {sr(S_KZ,2)} offset:128")
    for t in ("q0", "q1", "ks0", "ks1", "kz0", "kz1"): issue(t)
    a(f"global_load_dwordx4 {vr(V_VS,4)}, v{vsc}, {sr(S_VS,2)}"); issue("vs")
    a(f"global_load_dwordx4 {vr(V_VZ,4)}, v{vsc}, {sr(S_VZ,2)}"); issue("vz")

    def slot(n): return V_RING + 4 * (n % G)
    def issue_big(n):
        if n >= 64: return
        if n < 32:
            b, g, j = n // 8, (n // 2) % 4, n % 2
            a(f"buffer_load_dwordx4 {vr(slot(n),4)}, v{V_OFFK}, {sr(S_KSRD,4)}, s{S_OFF+2*b} offen offset:{g*1024+j*256}{NT}")
        else:
            m = n - 32
            uu, k = m // 4, m % 4
            a(f"buffer_load_dwordx4 {vr(slot(n),4)}, v{V_OFFV}, {sr(S_VSRD,4)}, s{S_OFF+uu} offen offset:{k*1024}{NT}")
        issue(n)
    for n in range(G):
        issue_big(n)

    wait_for(["q0", "q1", "ks0", "ks1", "kz0", "kz1"])
    stamp(2)
    a(f"s_cmp_lg_u32 s{S_WAVE}, 0")
    a("s_cbranch_scc1 L_nocount")
    a(f"v_mov_b32 v{t0}, 0")
    a(f"v_mov_b32 v{t1}, 1")
    a(f"s_mov_b64 {sr(S_EX,2)}, exec")
    a("s_mov_b64 exec, 1")
    a(f"global_atomic_add v{t0}, v{t1}, {sr(S_CNT,2)} sc1")
    a(f"s_mov_b64 exec, {sr(S_EX,2)}")
    a("L_nocount:")
    a(f"s_mov_b32 s{S_T0}, 0x{Cbits:08x}")
    a(f"s_mov_b32 s{S_T1}, 0xffff0000")
    x0, x1, y0, y1 = V_T, V_T + 1, V_T + 2, V_T + 3
    for n in range(4):
        a(f"v_lshlrev_b32 v{x0}, 16, v{V_Q+n}")
        a(f"v_and_b32 v{x1}, s{S_T1}, v{V_Q+n}")
        a(f"v_lshlrev_b32 v{y0}, 16, v{V_KSR+n}")
        a(f"v_and_b32 v{y1}, s{S_T1}, v{V_KSR+n}")
        a(f"v_mul_f32 v{x0}, v{x0}, v{y0}")
        a(f"v_mul_f32 v{x1}, v{x1}, v{y1}")
        a(f"v_mul_f32 v{x0}, s{S_T0}, v{x0}")
        a(f"v_mul_f32 v{x1}, s{S_T0}, v{x1}")
        a(f"v_cvt_pk_bf16_f32 v{V_BHI+n}, v{x0}, v{x1}")
        a(f"v_lshlrev_b32 v{y0}, 16, v{V_BHI+n}")
        a(f"v_and_b32 v{y1}, s{S_T1}, v{V_BHI+n}")
        a(f"v_sub_f32 v{x0}, v{x0}, v{y0}")
        a(f"v_sub_f32 v{x1}, v{x1}, v{y1}")
        a(f"v_cvt_pk_bf16_f32 v{V_BLO+n}, v{x0}, v{x1}")
    a("s_nop 1")
    D0 = V_D
    a(f"v_mfma_f32_16x16x32_bf16 {vr(D0,4)}, {vr(V_KZR,4)}, {vr(V_BHI,4)}, 0")
    a(f"v_mfma_f32_16x16x32_bf16 {vr(D0,4)}, {vr(V_KZR,4)}, {vr(V_BLO,4)}, {vr(D0,4)}")
    a("s_nop 7")
    for c in range(4):
        a(f"v_mov_b32_dpp v{V_NEGC}, v{D0+c} quad_perm:[0,1,2,3] row_mask:0xf bank_mask:0x{1<<c:x}")
    a("s_nop 1")
    a(f"v_add_f32_dpp v{V_NEGC}, v{V_NEGC}, v{V_NEGC} row_ror:4 row_mask:0xf bank_mask:0xf")
    a("s_nop 1")
    a(f"v_add_f32_dpp v{V_NEGC}, v{V_NEGC}, v{V_NEGC} row_ror:8 row_mask:0xf bank_mask:0xf")
    a(f"v_sub_f32 v{V_NEGC}, 0, v{V_NEGC}")

    def extract(b, g):
        D = V_D + 4 * ((4 * b + g) % 4)
        first = True
        for c in range(4):
            rot = (4 * (b - c)) % 16
            ctl = f"row_ror:{rot}" if rot else "quad_perm:[0,1,2,3]"
            src1 = V_NEGC if first else V_S + g
            a(f"v_add_f32_dpp v{V_S+g}, v{D+c}, v{src1} {ctl} row_mask:0xf bank_mask:0x{1<<b:x}")
            first = False
    pend = None
    for step in range(16):
        b, g = step // 4, step % 4
        n0, n1 = 2 * step, 2 * step + 1
        PK = V_PK + 4 * (step % 2)
        wait_for([n0, n1])
        if step == 0: stamp(3)
        for n in (n0, n1):
            for r in range(4):
                a(f"v_cvt_f32_i32 v{slot(n)+r}, v{slot(n)+r}")
        for jj, n in enumerate((n0, n1)):
            a(f"v_cvt_pk_bf16_f32 v{PK+2*jj}, v{slot(n)}, v{slot(n)+1}")
            a(f"v_cvt_pk_bf16_f32 v{PK+2*jj+1}, v{slot(n)+2}, v{slot(n)+3}")
        issue_big(n0 + G)
        issue_big(n1 + G)
        D = V_D + 4 * (step % 4)
        a(f"v_mfma_f32_16x16x32_bf16 {vr(D,4)}, {vr(PK,4)}, {vr(V_BHI,4)}, 0")
        a(f"v_mfma_f32_16x16x32_bf16 {vr(D,4)}, {vr(PK,4)}, {vr(V_BLO,4)}, {vr(D,4)}")
        if pend is not None:
            extract(*pend)
        pend = (b, g)
    a("s_nop 7")
    extract(*pend)

    stamp(4)
    S = V_S
    a(f"v_max3_f32 v{V_M}, v{S}, v{S+1}, v{S+2}")
    a(f"v_max_f32 v{V_M}, v{V_M}, v{S+3}")
    def allred(reg, op, tmp):
        a("s_nop 1")
        a(f"{op}_dpp v{reg}, v{reg}, v{reg} row_ror:4 row_mask:0xf bank_mask:0xf")
        a("s_nop 1")
        a(f"{op}_dpp v{reg}, v{reg}, v{reg} row_ror:8 row_mask:0xf bank_mask:0xf")
        a(f"v_mov_b32 v{tmp}, v{reg}")
        a("s_nop 1")
        a(f"v_permlane16_swap_b32 v{tmp}, v{reg}")
        a(f"{op} v{reg}, v{reg}, v{tmp}")
        a(f"v_mov_b32 v{tmp}, v{reg}")
        a("s_nop 1")
        a(f"v_permlane32_swap_b32 v{tmp}, v{reg}")
        a(f"{op} v{reg}, v{reg}, v{tmp}")
    allred(V_M, "v_max_f32", t0)
    for g in range(4):
        a(f"v_sub_f32 v{S+g}, v{S+g}, v{V_M}")
    for g in range(4):
        a(f"v_exp_f32 v{S+g}, v{S+g}")
    wait_for(["vs", "vz"])
    a(f"v_lshrrev_b32 v{t1}, 4, v{L}")
    a(f"v_and_b32 v{t1}, 1, v{t1}")
    a(f"v_lshlrev_b32 v{t1}, 4, v{t1}")
    a(f"v_sub_u32 v{t1}, 16, v{t1}")
    a(f"s_mov_b32 s{S_T1}, 0xffff0000")
    for base in (V_VS, V_VZ):
        for g in range(4):
            a(f"v_lshlrev_b32 v{base+g}, v{t1}, v{base+g}")
        for g in range(4):
            a(f"v_and_b32 v{base+g}, s{S_T1}, v{base+g}")
    a(f"v_add_f32 v{V_L}, v{S}, v{S+1}")
    a(f"v_add_f32 v{t0}, v{S+2}, v{S+3}")
    a(f"v_add_f32 v{V_L}, v{V_L}, v{t0}")
    for g in range(4):
        a(f"v_mul_f32 v{S+g}, v{S+g}, v{V_VS+g}")
    hi, lo = V_PA, V_PA + 2
    a(f"v_cvt_pk_bf16_f32 v{hi}, v{S}, v{S+1}")
    a(f"v_cvt_pk_bf16_f32 v{hi+1}, v{S+2}, v{S+3}")
    u = V_T + 4
    a(f"v_lshlrev_b32 v{u}, 16, v{hi}")
    a(f"v_and_b32 v{u+1}, s{S_T1}, v{hi}")
    a(f"v_lshlrev_b32 v{u+2}, 16, v{hi+1}")
    a(f"v_and_b32 v{u+3}, s{S_T1}, v{hi+1}")
    for g in range(4):
        a(f"v_sub_f32 v{S+g}, v{S+g}, v{u+g}")
    a(f"v_cvt_pk_bf16_f32 v{lo}, v{S}, v{S+1}")
    a(f"v_cvt_pk_bf16_f32 v{lo+1}, v{S+2}, v{S+3}")
    a(f"s_lshl_b32 s{S_T0}, s{S_WAVE}, 10")
    a(f"v_lshl_add_u32 v{t1}, v{L}, 3, s{S_T0}")
    a(f"ds_write_b64 v{t1}, {vr(hi,2)} offset:{LDS_P}")
    a(f"ds_write_b64 v{t1}, {vr(lo,2)} offset:{LDS_P+512}")
    a(f"v_lshlrev_b32 v{S}, 16, v{lo}")
    a(f"v_and_b32 v{S+1}, s{S_T1}, v{lo}")
    a(f"v_lshlrev_b32 v{S+2}, 16, v{lo+1}")
    a(f"v_and_b32 v{S+3}, s{S_T1}, v{lo+1}")
    for g in range(4):
        a(f"v_add_f32 v{S+g}, v{S+g}, v{u+g}")
    a(f"v_mul_f32 v{V_CZ}, v{S}, v{V_VZ}")
    for g in range(1, 4):
        a(f"v_fmac_f32 v{V_CZ}, v{S+g}, v{V_VZ+g}")
    allred(V_L, "v_add_f32", t0)
    allred(V_CZ, "v_add_f32", t0)
    for i in range(16):
        a(f"v_mov_b32 v{V_ACC+i}, 0")
    a(f"v_mov_b32 v{V_CNT}, 8")
    a(f"s_cmp_lg_u32 s{S_CHUNK}, 7")
    a("s_cbranch_scc1 L_nocntload")
    a(f"v_mov_b32 v{t0}, 0")
    a(f"global_load_dword v{V_CNT}, v{t0}, {sr(S_CNT,2)} sc1")
    a("L_nocntload:")
    a(f"v_lshlrev_b32 v{t1}, 6, v{L}")
    a(f"s_lshl_b32 s{S_T0}, s{S_WAVE}, 3")
    a(f"v_add_u32 v{t1}, s{S_T0}, v{t1}")
    a(f"v_mov_b32 v{t2}, v{V_M}")
    a(f"v_mov_b32 v{t3}, v{V_L}")
    assert t2 % 2 == 1 or True
    a(f"s_mov_b64 {sr(S_EX,2)}, exec")
    a("s_mov_b64 exec, 0xf")
    a(f"ds_write_b32 v{t1}, v{t2} offset:{LDS_STAT}")
    a(f"ds_write_b32 v{t1}, v{t3} offset:{LDS_STAT+4}")
    a(f"s_mov_b64 exec, {sr(S_EX,2)}")
    a("s_waitcnt lgkmcnt(0)")

    stamp(5)
    def pa_read(uu):
        P = V_PA + 4 * (uu % 2)
        off = LDS_P + 256 * (uu % 2) + 32 * (uu // 2)
        a(f"ds_read_b64 {vr(P,2)}, v{V_PADDR} offset:{off}")
        a(f"ds_read_b64 {vr(P+2,2)}, v{V_PADDR} offset:{off+512}")
    pa_read(0)
    for uu in range(8):
        PK = V_PK if uu % 2 == 0 else V_PK2
        P = V_PA + 4 * (uu % 2)
        ns = [32 + 4 * uu + k for k in range(4)]
        for half in range(2):
            na, nb = ns[2 * half], ns[2 * half + 1]
            wait_for([na, nb])
            for n in (na, nb):
                for r in range(4):
                    a(f"v_cvt_f32_i32 v{slot(n)+r}, v{slot(n)+r}")
            for r in range(4):
                a(f"v_cvt_pk_bf16_f32 v{PK+2*r+half}, v{slot(na)+r}, v{slot(nb)+r}")
            issue_big(na + G)
            issue_big(nb + G)
        if uu < 7:
            pa_read(uu + 1)
            a("s_waitcnt lgkmcnt(2)")
        else:
            a("s_waitcnt lgkmcnt(0)")
            a("s_nop 0")
        for r in range(4):
            a(f"v_mfma_f32_4x4x4_16b_bf16 {vr(V_ACC+4*r,4)}, {vr(P,2)}, {vr(PK+2*r,2)}, {vr(V_ACC+4*r,4)}")
        for r in range(4):
            a(f"v_mfma_f32_4x4x4_16b_bf16 {vr(V_ACC+4*r,4)}, {vr(P+2,2)}, {vr(PK+2*r,2)}, {vr(V_ACC+4*r,4)}")

    stamp(6)
    a("s_nop 4")
    for i in range(4):
        a(f"v_permlane32_swap_b32 v{V_ACC+i}, v{V_ACC+8+i}")
        a(f"v_permlane32_swap_b32 v{V_ACC+4+i}, v{V_ACC+12+i}")
    X = V_PK
    for i in range(4):
        a(f"v_add_f32 v{X+2*i}, v{V_ACC+i}, v{V_ACC+8+i}")
        a(f"v_add_f32 v{X+2*i+1}, v{V_ACC+4+i}, v{V_ACC+12+i}")
    for i in range(4):
        a(f"v_subrev_f32_dpp v{X+2*i}, v{V_CZ}, v{X+2*i} quad_perm:[{i},{i},{i},{i}] row_mask:0xf bank_mask:0xf")
        a(f"v_subrev_f32_dpp v{X+2*i+1}, v{V_CZ}, v{X+2*i+1} quad_perm:[{i},{i},{i},{i}] row_mask:0xf bank_mask:0xf")
    a(f"s_lshl_b32 s{S_T0}, s{S_WAVE}, 11")
    a(f"v_lshl_add_u32 v{t1}, v{L}, 3, s{S_T0}")
    for i in range(4):
        a(f"ds_write_b64 v{t1}, {vr(X+2*i,2)} offset:{LDS_RED+512*i}")
    a("s_waitcnt lgkmcnt(0)")
    a("s_barrier")
    stamp(7)
    a(f"s_cmp_ge_u32 s{S_WAVE}, 4")
    a("s_cbranch_scc1 L_fin0" if stamps else "s_cbranch_scc1 L_end")
    Y = V_RING
    a(f"s_lshl_b32 s{S_T0}, s{S_WAVE}, 9")
    a(f"v_lshl_add_u32 v{t1}, v{L}, 3, s{S_T0}")
    a(f"v_and_b32 v{t2}, 7, v{L}")
    a(f"s_lshl_b32 s{S_T0}, s{S_WAVE}, 6")
    a(f"v_lshl_add_u32 v{t2}, v{t2}, 3, s{S_T0}")
    ST = V_PK2
    a(f"ds_read_b64 {vr(ST,2)}, v{t2} offset:{LDS_STAT}")
    for w in range(8):
        a(f"ds_read_b64 {vr(Y+2*w,2)}, v{t1} offset:{LDS_RED+2048*w}")
    def red8(reg, op, src=None):
        src = reg if src is None else src
        a(f"{op}_dpp v{reg}, v{src}, v{src} row_ror:4 row_mask:0xf bank_mask:0xf")
        a("s_nop 1")
        a(f"{op}_dpp v{reg}, v{reg}, v{reg} row_ror:2 row_mask:0xf bank_mask:0xf")
        a("s_nop 1")
        a(f"{op}_dpp v{reg}, v{reg}, v{reg} row_ror:1 row_mask:0xf bank_mask:0xf")
    def combine(st, ys, norm):
        red8(V_M, "v_max_f32", st)
        al = t3
        a(f"v_sub_f32 v{al}, v{st}, v{V_M}")
        a(f"v_exp_f32 v{al}, v{al}")
        a("s_nop 0")
        a(f"v_mul_f32 v{V_L}, v{al}, v{st+1}")
        a("s_nop 1")
        red8(V_L, "v_add_f32")
        if norm:
            a(f"v_rcp_f32 v{t0}, v{V_L}")
            a("s_nop 0")
            a(f"v_mul_f32 v{al}, v{al}, v{t0}")
        O0, O1 = V_S, V_S + 1
        a(f"v_mov_b32 v{O0}, 0")
        a(f"v_mov_b32 v{O1}, 0")
        for w in range(8):
            a(f"v_fmac_f32_dpp v{O0}, v{al}, v{ys+2*w} row_newbcast:{w} row_mask:0xf bank_mask:0xf")
            a(f"v_fmac_f32_dpp v{O1}, v{al}, v{ys+2*w+1} row_newbcast:{w} row_mask:0xf bank_mask:0xf")
        return O0, O1
    a("s_waitcnt lgkmcnt(8)")
    red8(V_M, "v_max_f32", ST)
    al = t3
    a(f"v_sub_f32 v{al}, v{ST}, v{V_M}")
    a(f"v_exp_f32 v{al}, v{al}")
    a("s_nop 0")
    a(f"v_mul_f32 v{V_L}, v{al}, v{ST+1}")
    a("s_nop 1")
    red8(V_L, "v_add_f32")
    O0, O1 = V_S, V_S + 1
    assert O0 % 2 == 0
    a(f"v_mov_b32 v{O0}, 0")
    a(f"v_mov_b32 v{O1}, 0")
    a("s_waitcnt lgkmcnt(0)")
    for w in range(8):
        a(f"v_fmac_f32_dpp v{O0}, v{al}, v{Y+2*w} row_newbcast:{w} row_mask:0xf bank_mask:0xf")
        a(f"v_fmac_f32_dpp v{O1}, v{al}, v{Y+2*w+1} row_newbcast:{w} row_mask:0xf bank_mask:0xf")
    a(f"v_min_u32 v{O0}, -2, v{O0}")
    a(f"v_min_u32 v{O1}, -2, v{O1}")
    ML = V_S + 2
    a(f"v_min_u32 v{ML}, -2, v{V_M}")
    a(f"v_min_u32 v{ML+1}, -2, v{V_L}")
    a(f"global_store_dwordx2 v{t1}, {vr(O0,2)}, {sr(S_SLOT,2)} sc1")
    a(f"s_lshl_b32 s{S_T0}, s{S_WAVE}, 3")
    a(f"v_mov_b32 v{t0}, s{S_T0}")
    a(f"s_mov_b64 {sr(S_EX,2)}, exec")
    a("s_mov_b64 exec, 1")
    a(f"global_store_dwordx2 v{t0}, {vr(ML,2)}, {sr(S_SLOT,2)} offset:2048 sc1")
    a(f"s_mov_b64 exec, {sr(S_EX,2)}")
    stamp(8)
    a(f"s_cmp_lg_u32 s{S_CHUNK}, 7")
    a("s_cbranch_scc1 L_fin0" if stamps else "s_cbranch_scc1 L_end")
    a(f"s_mov_b32 s{S_SPIN}, {spin}")
    a("L_cntloop:")
    a(f"v_cmp_gt_u32 vcc, 8, v{V_CNT}")
    a("s_cbranch_vccz L_cntok")
    a(f"s_sub_u32 s{S_SPIN}, s{S_SPIN}, 1")
    a("s_cbranch_scc1 L_end")
    a(f"v_mov_b32 v{t0}, 0")
    a(f"global_load_dword v{V_CNT}, v{t0}, {sr(S_CNT,2)} sc1")
    a("s_waitcnt vmcnt(0)")
    a("s_branch L_cntloop")
    a("L_cntok:")
    a(f"v_and_b32 v{t2}, 7, v{L}")
    a(f"v_lshlrev_b32 v{t2}, 12, v{t2}")
    a(f"v_add_u32 v{t2}, s{S_T0}, v{t2}")
    va = V_PK
    for c in range(8):
        a(f"v_add_u32 v{va+c}, {c*4096}, v{t1}")
    a("L_poll:")
    a(f"global_load_dwordx2 {vr(ST,2)}, v{t2}, {sr(S_PSLOT,2)} offset:2048 sc1")
    for c in range(8):
        a(f"global_load_dwordx2 {vr(Y+2*c,2)}, v{va+c}, {sr(S_PSLOT,2)} sc1")
    a("s_waitcnt vmcnt(0)")
    a(f"v_max3_u32 v{t0}, v{ST}, v{ST+1}, v{Y}")
    for i in range(1, 15, 2):
        a(f"v_max3_u32 v{t0}, v{t0}, v{Y+i}, v{Y+i+1}")
    a(f"v_max_u32 v{t0}, v{t0}, v{Y+15}")
    a(f"v_cmp_eq_u32 vcc, -1, v{t0}")
    a("s_cbranch_vccz L_ready")
    a(f"s_sub_u32 s{S_SPIN}, s{S_SPIN}, 1")
    a("s_cbranch_scc0 L_poll")
    a("s_branch L_end")
    a("L_ready:")
    stamp(9)
    red8(V_M, "v_max_f32", ST)
    a(f"v_sub_f32 v{al}, v{ST}, v{V_M}")
    a(f"v_exp_f32 v{al}, v{al}")
    a("s_nop 0")
    a(f"v_mul_f32 v{V_L}, v{al}, v{ST+1}")
    a("s_nop 1")
    red8(V_L, "v_add_f32")
    a(f"v_rcp_f32 v{t0}, v{V_L}")
    a(f"v_mov_b32 v{O0}, 0")
    a(f"v_mul_f32 v{al}, v{al}, v{t0}")
    a(f"v_mov_b32 v{O1}, 0")
    a("s_nop 0")
    for w in range(8):
        a(f"v_fmac_f32_dpp v{O0}, v{al}, v{Y+2*w} row_newbcast:{w} row_mask:0xf bank_mask:0xf")
        a(f"v_fmac_f32_dpp v{O1}, v{al}, v{Y+2*w+1} row_newbcast:{w} row_mask:0xf bank_mask:0xf")
    a(f"v_cvt_pk_bf16_f32 v{t0}, v{O0}, v{O1}")
    a(f"v_and_b32 v{t2}, 31, v{L}")
    a(f"v_lshlrev_b32 v{t2}, 3, v{t2}")
    a(f"v_lshrrev_b32 v{t3}, 5, v{L}")
    a(f"v_lshl_or_b32 v{t2}, v{t3}, 2, v{t2}")
    a(f"s_lshl_b32 s{S_T0}, s{S_PAIR}, 10")
    a(f"s_lshl_b32 s{S_T1}, s{S_WAVE}, 8")
    a(f"s_add_u32 s{S_T0}, s{S_T0}, s{S_T1}")
    a(f"v_add_u32 v{t2}, s{S_T0}, v{t2}")
    a(f"global_store_dword v{t2}, v{t0}, {sr(S_OUT,2)}")
    if stamps:
        stamp(10)
        a("L_fin0:")
        flush_stamps(11, "end")
        if "dbgstamps" in opts:
            a("s_mov_b64 exec, 1")
            def amax(dw, sreg, inv):
                if inv: a(f"s_not_b32 s{S_T1}, s{sreg}")
                else: a(f"s_mov_b32 s{S_T1}, s{sreg}")
                a(f"v_mov_b32 v78, s{S_T1}")
                a(f"v_mov_b32 v79, {dw*4}")
                a(f"global_atomic_umax v79, v78, {sr(S_DBG,2)} sc1")
                a("s_nop 1")
            amax(0, S_ST+0, True); amax(2, S_ST+0, False); amax(4, S_ST+6, False); amax(8, S_ST+6, True)
            amax(6, S_ST+12, False); amax(12, S_ST+12, True)
            a(f"s_cmp_ge_u32 s{S_WAVE}, 4")
            a("s_cbranch_scc1 L_end")
            amax(10, S_ST+16, False)
            a(f"s_cmp_lg_u32 s{S_CHUNK}, 7")
            a("s_cbranch_scc1 L_end")
            amax(14, S_ST+20, False)
    a("L_end:")
    a("s_endpgm")
    tail = f""".section .rodata,"a"
.p2align 6
.amdhsa_kernel {KNAME}_kernel
  .amdhsa_next_free_vgpr {NV}
  .amdhsa_next_free_sgpr {96 if stamps else 72}
  .amdhsa_accum_offset {(NV+3)//4*4}
  .amdhsa_group_segment_fixed_size 0
  .amdhsa_kernarg_size 80
  .amdhsa_user_sgpr_count 2
  .amdhsa_user_sgpr_kernarg_segment_ptr 1
  .amdhsa_system_sgpr_workgroup_id_x 1
  .amdhsa_float_denorm_mode_32 3
.end_amdhsa_kernel
"""
    return head + a.text() + tail

if __name__ == "__main__":
    ap = argparse.ArgumentParser()
    ap.add_argument("-G", type=int, default=16)
    ap.add_argument("--no-nt", action="store_true")
    ap.add_argument("--lds", type=int, default=0)
    ap.add_argument("--stamps", action="store_true")
    ap.add_argument("--opt", action="append", default=[])
    ap.add_argument("-o", default="cdna_kernels/" + KNAME + ".s")
    args = ap.parse_args()
    open(args.o, "w").write(gen(G=args.G, nt=not args.no_nt, lds_force=args.lds, stamps=args.stamps, opts=args.opt))
    print("wrote", args.o)
```

```python
import sys, math, argparse

KNAME = "standalone__kv_cache_quant_int4_int2_kv_with_per_channel_or_per_token_scales__decode"

class Asm:
    def __init__(self):
        self.lines = []
    def __call__(self, s=""):
        for l in s.split("\n"):
            self.lines.append("    " + l.strip() if l.strip() and not l.strip().endswith(":") else l.strip())
    def text(self):
        return "\n".join(self.lines) + "\n"

def vr(a, n=1):
    return f"v{a}" if n == 1 else f"v[{a}:{a+n-1}]"
def sr(a, n=1):
    return f"s{a}" if n == 1 else f"s[{a}:{a+n-1}]"

def gen(G=16, nt=True, lds_force=0, spin=1 << 16, stamps=False, opts=()):
    a = Asm()
    NW = 8
    NT = " nt" if nt else ""
    S_WG = 2; S_WAVE = 3
    S_Q, S_QK, S_QV, S_KS, S_KZ, S_VS, S_VZ, S_OUT = 4, 6, 8, 10, 12, 14, 16, 18
    S_DBG, S_WS = 20, 22
    S_KSRD = 24
    S_VSRD = 28
    S_OFF = 32
    S_PAIR = 40; S_CHUNK = 41; S_T0 = 42; S_T1 = 43
    S_SLOT = 44
    S_PSLOT = 46
    S_CNT = 48
    S_OUTP = 50
    S_SPIN = 52
    S_B = 56
    S_EX = 64
    V_LANE = 0
    V_OFFK = 1; V_OFFV = 2
    V_T = 3
    V_BHI = 12
    V_BLO = 16
    V_NEGC = 20
    V_PADDR = 21
    V_CNT = 22
    V_M = 23; V_L = 24; V_CZ = 25
    V_S = 26
    V_VS = 30
    V_VZ = 34
    V_PK = 38
    V_PK2 = 46
    V_D = 54
    V_ACC = 54
    V_PA = 70
    V_RING = 80
    NV = V_RING + 4 * G
    assert NV <= 256
    V_Q = 38
    V_KSR = 42
    V_KZR = 46

    LDS_P = 0
    LDS_RED = 8192
    LDS_STAT = 8192 + 16384
    LDS_TOTAL = LDS_STAT + 256
    lds = max(LDS_TOTAL, lds_force)
    SLOT = 4096
    C = (128 ** -0.5) * math.log2(math.e)
    import struct
    Cbits = struct.unpack("<I", struct.pack("<f", C))[0]

    queue = []
    def issue(tag): queue.append(tag)
    def wait_for(tags):
        idx = max(queue.index(t) for t in tags if t in queue) if any(t in queue for t in tags) else -1
        if idx < 0: return
        n = len(queue) - 1 - idx
        assert n <= 63
        a(f"s_waitcnt vmcnt({n})")
        del queue[:idx + 1]

    S_ST = 70
    def stamp(i):
        if stamps:
            a(f"s_memrealtime s[{S_ST+2*i}:{S_ST+2*i+1}]")
    def flush_stamps(n, tag):
        if not stamps: return
        a("s_waitcnt lgkmcnt(0)")
        vx, va_ = 78, 79
        a(f"v_mov_b32 v{vx}, 0")
        for i in range(n):
            a(f"v_writelane_b32 v{vx}, s{S_ST+2*i}, {i}")
        a(f"s_getreg_b32 s{S_T1}, hwreg(HW_REG_HW_ID)")
        a(f"v_writelane_b32 v{vx}, s{S_T1}, 14")
        a(f"s_getreg_b32 s{S_T1}, hwreg(HW_REG_XCC_ID)")
        a(f"v_writelane_b32 v{vx}, s{S_T1}, 15")
        a(f"s_lshl_b32 s{S_T1}, s{S_WG}, 3")
        a(f"s_add_u32 s{S_T1}, s{S_T1}, s{S_WAVE}")
        a(f"s_lshl_b32 s{S_T1}, s{S_T1}, 6")
        a(f"s_add_u32 s{S_T1}, s{S_T1}, 0x8000000")
        a(f"v_lshl_add_u32 v{va_}, v{V_LANE}, 2, s{S_T1}")
        a(f"s_mov_b64 {sr(S_EX,2)}, exec")
        a("s_mov_b64 exec, 0xffff")
        a(f"global_store_dword v{va_}, v{vx}, {sr(S_WS,2)}")
        a(f"s_mov_b64 exec, {sr(S_EX,2)}")
    hdr = open("cdna_kernels/" + KNAME + ".s.ref").read().split("\n")
    out = []
    for l in hdr:
        if l.startswith("; @launch"):
            out.append(f"; @launch grid=(256,1,1) block=(512,1,1) lds={lds}")
            break
        out.append(l)
    head = "\n".join(out) + "\n"
    head += f""".amdgcn_target "amdgcn-amd-amdhsa--gfx950"
.text
.globl {KNAME}_kernel
.p2align 8
.type {KNAME}_kernel,@function
{KNAME}_kernel:
"""
    a(f"s_cmp_ge_u32 s{S_WG}, 256")
    a("s_cbranch_scc1 L_end")
    stamp(0)
    a(f"s_load_dwordx16 s[4:19], s[0:1], 0")
    a(f"s_load_dwordx4 s[20:23], s[0:1], 64")
    a(f"v_lshrrev_b32 v{V_T}, 6, v0")
    a(f"v_and_b32 v{V_LANE}, 63, v0")
    a(f"v_readfirstlane_b32 s{S_WAVE}, v{V_T}")
    L = V_LANE
    t0, t1, t2, t3 = V_T, V_T + 1, V_T + 2, V_T + 3
    a(f"v_and_b32 v{t0}, 3, v{L}")
    a(f"v_lshrrev_b32 v{t1}, 4, v{L}")
    a(f"v_bfe_u32 v{t2}, v{L}, 2, 2")
    a(f"v_lshlrev_b32 v{V_OFFK}, 4, v{t0}")
    a(f"v_lshl_or_b32 v{V_OFFK}, v{t1}, 6, v{V_OFFK}")
    a(f"v_and_b32 v{t3}, 1, v{t2}")
    a(f"v_lshl_or_b32 v{V_OFFK}, v{t3}, 9, v{V_OFFK}")
    a(f"v_lshrrev_b32 v{t3}, 1, v{t2}")
    a(f"v_lshl_or_b32 v{V_OFFK}, v{t3}, 12, v{V_OFFK}")
    a(f"v_lshlrev_b32 v{V_OFFV}, 4, v{L}")
    a(f"s_lshr_b32 s{S_PAIR}, s{S_WG}, 3")
    a(f"s_and_b32 s{S_CHUNK}, s{S_WG}, 7")
    a(f"s_lshl_b32 s{S_T0}, s{S_WG}, 18")
    a(f"s_lshl_b32 s{S_T1}, s{S_WAVE}, 15")
    a(f"s_add_u32 s{S_OFF}, s{S_T0}, s{S_T1}")
    for i in range(1, 8):
        a(f"s_add_u32 s{S_OFF+i}, s{S_OFF}, {i*4096}")
    vq, vks, vkz, vsc = V_T + 4, V_T + 5, V_T + 6, V_T + 7
    a(f"v_lshlrev_b32 v{vks}, 5, v{t1}")
    a(f"v_lshl_or_b32 v{vkz}, v{t0}, 3, v{vks}")
    a(f"v_lshl_or_b32 v{vks}, v{t2}, 3, v{vks}")
    a(f"v_lshl_or_b32 v{vq}, v{t0}, 8, v{vks}")
    a(f"v_lshrrev_b32 v{vsc}, 1, v{t1}")
    a(f"v_lshlrev_b32 v{vsc}, 4, v{vsc}")
    a(f"v_lshl_or_b32 v{vsc}, v{t2}, 5, v{vsc}")
    a(f"v_lshrrev_b32 v{V_PADDR}, 5, v{L}")
    a(f"v_lshlrev_b32 v{V_PADDR}, 7, v{V_PADDR}")
    a(f"v_lshl_or_b32 v{V_PADDR}, v{t0}, 3, v{V_PADDR}")
    a(f"s_lshl_b32 s{S_T1}, s{S_WAVE}, 10")
    a(f"v_add_u32 v{V_PADDR}, s{S_T1}, v{V_PADDR}")
    a("s_waitcnt lgkmcnt(0)")
    stamp(1)
    for srd, p in ((S_KSRD, S_QK), (S_VSRD, S_QV)):
        a(f"s_mov_b32 s{srd}, s{p}")
        a(f"s_and_b32 s{srd+1}, s{p+1}, 0xffff")
        a(f"s_mov_b32 s{srd+2}, 0x4000000")
        a(f"s_mov_b32 s{srd+3}, 0x20000")
    a(f"s_lshl_b32 s{S_T0}, s{S_PAIR}, 10")
    a(f"s_add_u32 s{S_Q}, s{S_Q}, s{S_T0}")
    a(f"s_addc_u32 s{S_Q+1}, s{S_Q+1}, 0")
    a(f"s_lshr_b32 s{S_T0}, s{S_WG}, 2")
    a(f"s_lshl_b32 s{S_T0}, s{S_T0}, 8")
    for p in (S_KS, S_KZ):
        a(f"s_add_u32 s{p}, s{p}, s{S_T0}")
        a(f"s_addc_u32 s{p+1}, s{p+1}, 0")
    a(f"s_lshr_b32 s{S_T0}, s{S_OFF}, 8")
    for p in (S_VS, S_VZ):
        a(f"s_add_u32 s{p}, s{p}, s{S_T0}")
        a(f"s_addc_u32 s{p+1}, s{p+1}, 0")
    a(f"s_lshl_b32 s{S_T0}, s{S_WG}, 12")
    a(f"s_add_u32 s{S_SLOT}, s{S_WS}, s{S_T0}")
    a(f"s_addc_u32 s{S_SLOT+1}, s{S_WS+1}, 0")
    a(f"s_lshl_b32 s{S_T0}, s{S_PAIR}, 15")
    a(f"s_add_u32 s{S_PSLOT}, s{S_WS}, s{S_T0}")
    a(f"s_addc_u32 s{S_PSLOT+1}, s{S_WS+1}, 0")
    a(f"s_lshl_b32 s{S_T0}, s{S_PAIR}, 3")
    if "dbgstamps" in opts:
        a(f"s_lshl_b32 s{S_T0}, s{S_PAIR}, 2")
        a(f"s_add_u32 s{S_T0}, s{S_T0}, 128")
    a(f"s_add_u32 s{S_CNT}, s{S_DBG}, s{S_T0}")
    a(f"s_addc_u32 s{S_CNT+1}, s{S_DBG+1}, 0")
    a(f"s_cmp_lg_u32 s{S_WAVE}, 0")
    a("s_cbranch_scc1 L_noclear")
    z = V_PK2 + 4
    for i in range(4):
        a(f"v_mov_b32 v{z+i}, -1")
    a(f"global_store_dwordx4 v{V_OFFV}, {vr(z,4)}, {sr(S_SLOT,2)} sc1")
    a(f"global_store_dwordx4 v{V_OFFV}, {vr(z,4)}, {sr(S_SLOT,2)} offset:1024 sc1")
    a(f"global_store_dwordx4 v{V_OFFV}, {vr(z,4)}, {sr(S_SLOT,2)} offset:2048 sc1")
    a("L_noclear:")
    a(f"global_load_dwordx2 {vr(V_Q,2)}, v{vq}, {sr(S_Q,2)}")
    a(f"global_load_dwordx2 {vr(V_Q+2,2)}, v{vq}, {sr(S_Q,2)} offset:128")
    a(f"global_load_dwordx2 {vr(V_KSR,2)}, v{vks}, {sr(S_KS,2)}")
    a(f"global_load_dwordx2 {vr(V_KSR+2,2)}, v{vks}, {sr(S_KS,2)} offset:128")
    a(f"global_load_dwordx2 {vr(V_KZR,2)}, v{vkz}, {sr(S_KZ,2)}")
    a(f"global_load_dwordx2 {vr(V_KZR+2,2)}, v{vkz}, {sr(S_KZ,2)} offset:128")
    for t in ("q0", "q1", "ks0", "ks1", "kz0", "kz1"): issue(t)
    a(f"global_load_dwordx4 {vr(V_VS,4)}, v{vsc}, {sr(S_VS,2)}"); issue("vs")
    a(f"global_load_dwordx4 {vr(V_VZ,4)}, v{vsc}, {sr(S_VZ,2)}"); issue("vz")

    def slot(n): return V_RING + 4 * (n % G)
    def issue_big(n):
        if n >= 64: return
        if n < 32:
            b, g, j = n // 8, (n // 2) % 4, n % 2
            a(f"buffer_load_dwordx4 {vr(slot(n),4)}, v{V_OFFK}, {sr(S_KSRD,4)}, s{S_OFF+2*b} offen offset:{g*1024+j*256}{NT}")
        else:
            m = n - 32
            uu, k = m // 4, m % 4
            a(f"buffer_load_dwordx4 {vr(slot(n),4)}, v{V_OFFV}, {sr(S_VSRD,4)}, s{S_OFF+uu} offen offset:{k*1024}{NT}")
        issue(n)
    for n in range(G):
        issue_big(n)

    wait_for(["q0", "q1", "ks0", "ks1", "kz0", "kz1"])
    stamp(2)
    a(f"s_cmp_lg_u32 s{S_WAVE}, 0")
    a("s_cbranch_scc1 L_nocount")
    a(f"v_mov_b32 v{t0}, 0")
    a(f"v_mov_b32 v{t1}, 1")
    a(f"s_mov_b64 {sr(S_EX,2)}, exec")
    a("s_mov_b64 exec, 1")
    a(f"global_atomic_add v{t0}, v{t1}, {sr(S_CNT,2)} sc1")
    a(f"s_mov_b64 exec, {sr(S_EX,2)}")
    a("L_nocount:")
    a(f"s_mov_b32 s{S_T0}, 0x{Cbits:08x}")
    a(f"s_mov_b32 s{S_T1}, 0xffff0000")
    x0, x1, y0, y1 = V_T, V_T + 1, V_T + 2, V_T + 3
    for n in range(4):
        a(f"v_lshlrev_b32 v{x0}, 16, v{V_Q+n}")
        a(f"v_and_b32 v{x1}, s{S_T1}, v{V_Q+n}")
        a(f"v_lshlrev_b32 v{y0}, 16, v{V_KSR+n}")
        a(f"v_and_b32 v{y1}, s{S_T1}, v{V_KSR+n}")
        a(f"v_mul_f32 v{x0}, v{x0}, v{y0}")
        a(f"v_mul_f32 v{x1}, v{x1}, v{y1}")
        a(f"v_mul_f32 v{x0}, s{S_T0}, v{x0}")
        a(f"v_mul_f32 v{x1}, s{S_T0}, v{x1}")
        a(f"v_cvt_pk_bf16_f32 v{V_BHI+n}, v{x0}, v{x1}")
        a(f"v_lshlrev_b32 v{y0}, 16, v{V_BHI+n}")
        a(f"v_and_b32 v{y1}, s{S_T1}, v{V_BHI+n}")
        a(f"v_sub_f32 v{x0}, v{x0}, v{y0}")
        a(f"v_sub_f32 v{x1}, v{x1}, v{y1}")
        a(f"v_cvt_pk_bf16_f32 v{V_BLO+n}, v{x0}, v{x1}")
    a("s_nop 1")
    D0 = V_D
    a(f"v_mfma_f32_16x16x32_bf16 {vr(D0,4)}, {vr(V_KZR,4)}, {vr(V_BHI,4)}, 0")
    a(f"v_mfma_f32_16x16x32_bf16 {vr(D0,4)}, {vr(V_KZR,4)}, {vr(V_BLO,4)}, {vr(D0,4)}")
    a("s_nop 7")
    for c in range(4):
        a(f"v_mov_b32_dpp v{V_NEGC}, v{D0+c} quad_perm:[0,1,2,3] row_mask:0xf bank_mask:0x{1<<c:x}")
    a("s_nop 1")
    a(f"v_add_f32_dpp v{V_NEGC}, v{V_NEGC}, v{V_NEGC} row_ror:4 row_mask:0xf bank_mask:0xf")
    a("s_nop 1")
    a(f"v_add_f32_dpp v{V_NEGC}, v{V_NEGC}, v{V_NEGC} row_ror:8 row_mask:0xf bank_mask:0xf")
    a(f"v_sub_f32 v{V_NEGC}, 0, v{V_NEGC}")

    def extract(b, g):
        D = V_D + 4 * ((4 * b + g) % 4)
        first = True
        for c in range(4):
            rot = (4 * (b - c)) % 16
            ctl = f"row_ror:{rot}" if rot else "quad_perm:[0,1,2,3]"
            src1 = V_NEGC if first else V_S + g
            a(f"v_add_f32_dpp v{V_S+g}, v{D+c}, v{src1} {ctl} row_mask:0xf bank_mask:0x{1<<b:x}")
            first = False
    pend = None
    for step in range(16):
        b, g = step // 4, step % 4
        n0, n1 = 2 * step, 2 * step + 1
        PK = V_PK + 4 * (step % 2)
        wait_for([n0, n1])
        if step == 0: stamp(3)
        for n in (n0, n1):
            for r in range(4):
                a(f"v_cvt_f32_i32 v{slot(n)+r}, v{slot(n)+r}")
        for jj, n in enumerate((n0, n1)):
            a(f"v_cvt_pk_bf16_f32 v{PK+2*jj}, v{slot(n)}, v{slot(n)+1}")
            a(f"v_cvt_pk_bf16_f32 v{PK+2*jj+1}, v{slot(n)+2}, v{slot(n)+3}")
        issue_big(n0 + G)
        issue_big(n1 + G)
        D = V_D + 4 * (step % 4)
        a(f"v_mfma_f32_16x16x32_bf16 {vr(D,4)}, {vr(PK,4)}, {vr(V_BHI,4)}, 0")
        a(f"v_mfma_f32_16x16x32_bf16 {vr(D,4)}, {vr(PK,4)}, {vr(V_BLO,4)}, {vr(D,4)}")
        if pend is not None:
            extract(*pend)
        pend = (b, g)
    a("s_nop 7")
    extract(*pend)

    stamp(4)
    S = V_S
    a(f"v_max3_f32 v{V_M}, v{S}, v{S+1}, v{S+2}")
    a(f"v_max_f32 v{V_M}, v{V_M}, v{S+3}")
    def allred(reg, op, tmp):
        a("s_nop 1")
        a(f"{op}_dpp v{reg}, v{reg}, v{reg} row_ror:4 row_mask:0xf bank_mask:0xf")
        a("s_nop 1")
        a(f"{op}_dpp v{reg}, v{reg}, v{reg} row_ror:8 row_mask:0xf bank_mask:0xf")
        a(f"v_mov_b32 v{tmp}, v{reg}")
        a("s_nop 1")
        a(f"v_permlane16_swap_b32 v{tmp}, v{reg}")
        a(f"{op} v{reg}, v{reg}, v{tmp}")
        a(f"v_mov_b32 v{tmp}, v{reg}")
        a("s_nop 1")
        a(f"v_permlane32_swap_b32 v{tmp}, v{reg}")
        a(f"{op} v{reg}, v{reg}, v{tmp}")
    allred(V_M, "v_max_f32", t0)
    for g in range(4):
        a(f"v_sub_f32 v{S+g}, v{S+g}, v{V_M}")
    for g in range(4):
        a(f"v_exp_f32 v{S+g}, v{S+g}")
    wait_for(["vs", "vz"])
    a(f"v_lshrrev_b32 v{t1}, 4, v{L}")
    a(f"v_and_b32 v{t1}, 1, v{t1}")
    a(f"v_lshlrev_b32 v{t1}, 4, v{t1}")
    a(f"v_sub_u32 v{t1}, 16, v{t1}")
    a(f"s_mov_b32 s{S_T1}, 0xffff0000")
    for base in (V_VS, V_VZ):
        for g in range(4):
            a(f"v_lshlrev_b32 v{base+g}, v{t1}, v{base+g}")
        for g in range(4):
            a(f"v_and_b32 v{base+g}, s{S_T1}, v{base+g}")
    a(f"v_add_f32 v{V_L}, v{S}, v{S+1}")
    a(f"v_add_f32 v{t0}, v{S+2}, v{S+3}")
    a(f"v_add_f32 v{V_L}, v{V_L}, v{t0}")
    for g in range(4):
        a(f"v_mul_f32 v{S+g}, v{S+g}, v{V_VS+g}")
    hi, lo = V_PA, V_PA + 2
    a(f"v_cvt_pk_bf16_f32 v{hi}, v{S}, v{S+1}")
    a(f"v_cvt_pk_bf16_f32 v{hi+1}, v{S+2}, v{S+3}")
    u = V_T + 4
    a(f"v_lshlrev_b32 v{u}, 16, v{hi}")
    a(f"v_and_b32 v{u+1}, s{S_T1}, v{hi}")
    a(f"v_lshlrev_b32 v{u+2}, 16, v{hi+1}")
    a(f"v_and_b32 v{u+3}, s{S_T1}, v{hi+1}")
    for g in range(4):
        a(f"v_sub_f32 v{S+g}, v{S+g}, v{u+g}")
    a(f"v_cvt_pk_bf16_f32 v{lo}, v{S}, v{S+1}")
    a(f"v_cvt_pk_bf16_f32 v{lo+1}, v{S+2}, v{S+3}")
    a(f"s_lshl_b32 s{S_T0}, s{S_WAVE}, 10")
    a(f"v_lshl_add_u32 v{t1}, v{L}, 3, s{S_T0}")
    a(f"ds_write_b64 v{t1}, {vr(hi,2)} offset:{LDS_P}")
    a(f"ds_write_b64 v{t1}, {vr(lo,2)} offset:{LDS_P+512}")
    a(f"v_lshlrev_b32 v{S}, 16, v{lo}")
    a(f"v_and_b32 v{S+1}, s{S_T1}, v{lo}")
    a(f"v_lshlrev_b32 v{S+2}, 16, v{lo+1}")
    a(f"v_and_b32 v{S+3}, s{S_T1}, v{lo+1}")
    for g in range(4):
        a(f"v_add_f32 v{S+g}, v{S+g}, v{u+g}")
    a(f"v_mul_f32 v{V_CZ}, v{S}, v{V_VZ}")
    for g in range(1, 4):
        a(f"v_fmac_f32 v{V_CZ}, v{S+g}, v{V_VZ+g}")
    allred(V_L, "v_add_f32", t0)
    allred(V_CZ, "v_add_f32", t0)
    for i in range(16):
        a(f"v_mov_b32 v{V_ACC+i}, 0")
    a(f"v_mov_b32 v{V_CNT}, 8")
    a(f"s_cmp_lg_u32 s{S_CHUNK}, 7")
    a("s_cbranch_scc1 L_nocntload")
    a(f"v_mov_b32 v{t0}, 0")
    a(f"global_load_dword v{V_CNT}, v{t0}, {sr(S_CNT,2)} sc1")
    a("L_nocntload:")
    a(f"v_lshlrev_b32 v{t1}, 6, v{L}")
    a(f"s_lshl_b32 s{S_T0}, s{S_WAVE}, 3")
    a(f"v_add_u32 v{t1}, s{S_T0}, v{t1}")
    a(f"v_mov_b32 v{t2}, v{V_M}")
    a(f"v_mov_b32 v{t3}, v{V_L}")
    assert t2 % 2 == 1 or True
    a(f"s_mov_b64 {sr(S_EX,2)}, exec")
    a("s_mov_b64 exec, 0xf")
    a(f"ds_write_b32 v{t1}, v{t2} offset:{LDS_STAT}")
    a(f"ds_write_b32 v{t1}, v{t3} offset:{LDS_STAT+4}")
    a(f"s_mov_b64 exec, {sr(S_EX,2)}")
    a("s_waitcnt lgkmcnt(0)")

    stamp(5)
    def pa_read(uu):
        P = V_PA + 4 * (uu % 2)
        off = LDS_P + 256 * (uu % 2) + 32 * (uu // 2)
        a(f"ds_read_b64 {vr(P,2)}, v{V_PADDR} offset:{off}")
        a(f"ds_read_b64 {vr(P+2,2)}, v{V_PADDR} offset:{off+512}")
    pa_read(0)
    for uu in range(8):
        PK = V_PK if uu % 2 == 0 else V_PK2
        P = V_PA + 4 * (uu % 2)
        ns = [32 + 4 * uu + k for k in range(4)]
        for half in range(2):
            na, nb = ns[2 * half], ns[2 * half + 1]
            wait_for([na, nb])
            for n in (na, nb):
                for r in range(4):
                    a(f"v_cvt_f32_i32 v{slot(n)+r}, v{slot(n)+r}")
            for r in range(4):
                a(f"v_cvt_pk_bf16_f32 v{PK+2*r+half}, v{slot(na)+r}, v{slot(nb)+r}")
            issue_big(na + G)
            issue_big(nb + G)
        if uu < 7:
            pa_read(uu + 1)
            a("s_waitcnt lgkmcnt(2)")
        else:
            a("s_waitcnt lgkmcnt(0)")
            a("s_nop 0")
        for r in range(4):
            a(f"v_mfma_f32_4x4x4_16b_bf16 {vr(V_ACC+4*r,4)}, {vr(P,2)}, {vr(PK+2*r,2)}, {vr(V_ACC+4*r,4)}")
        for r in range(4):
            a(f"v_mfma_f32_4x4x4_16b_bf16 {vr(V_ACC+4*r,4)}, {vr(P+2,2)}, {vr(PK+2*r,2)}, {vr(V_ACC+4*r,4)}")

    stamp(6)
    a("s_nop 4")
    for i in range(4):
        a(f"v_permlane32_swap_b32 v{V_ACC+i}, v{V_ACC+8+i}")
        a(f"v_permlane32_swap_b32 v{V_ACC+4+i}, v{V_ACC+12+i}")
    X = V_PK
    for i in range(4):
        a(f"v_add_f32 v{X+2*i}, v{V_ACC+i}, v{V_ACC+8+i}")
        a(f"v_add_f32 v{X+2*i+1}, v{V_ACC+4+i}, v{V_ACC+12+i}")
    for i in range(4):
        a(f"v_subrev_f32_dpp v{X+2*i}, v{V_CZ}, v{X+2*i} quad_perm:[{i},{i},{i},{i}] row_mask:0xf bank_mask:0xf")
        a(f"v_subrev_f32_dpp v{X+2*i+1}, v{V_CZ}, v{X+2*i+1} quad_perm:[{i},{i},{i},{i}] row_mask:0xf bank_mask:0xf")
    a(f"s_lshl_b32 s{S_T0}, s{S_WAVE}, 11")
    a(f"v_lshl_add_u32 v{t1}, v{L}, 3, s{S_T0}")
    for i in range(4):
        a(f"ds_write_b64 v{t1}, {vr(X+2*i,2)} offset:{LDS_RED+512*i}")
    a("s_waitcnt lgkmcnt(0)")
    a("s_barrier")
    stamp(7)
    a(f"s_cmp_ge_u32 s{S_WAVE}, 4")
    a("s_cbranch_scc1 L_fin0" if stamps else "s_cbranch_scc1 L_end")
    Y = V_RING
    a(f"s_lshl_b32 s{S_T0}, s{S_WAVE}, 9")
    a(f"v_lshl_add_u32 v{t1}, v{L}, 3, s{S_T0}")
    a(f"v_and_b32 v{t2}, 7, v{L}")
    a(f"s_lshl_b32 s{S_T0}, s{S_WAVE}, 6")
    a(f"v_lshl_add_u32 v{t2}, v{t2}, 3, s{S_T0}")
    ST = V_PK2
    a(f"ds_read_b64 {vr(ST,2)}, v{t2} offset:{LDS_STAT}")
    for w in range(8):
        a(f"ds_read_b64 {vr(Y+2*w,2)}, v{t1} offset:{LDS_RED+2048*w}")
    def red8(reg, op, src=None):
        src = reg if src is None else src
        a(f"{op}_dpp v{reg}, v{src}, v{src} row_ror:4 row_mask:0xf bank_mask:0xf")
        a("s_nop 1")
        a(f"{op}_dpp v{reg}, v{reg}, v{reg} row_ror:2 row_mask:0xf bank_mask:0xf")
        a("s_nop 1")
        a(f"{op}_dpp v{reg}, v{reg}, v{reg} row_ror:1 row_mask:0xf bank_mask:0xf")
    def combine(st, ys, norm):
        red8(V_M, "v_max_f32", st)
        al = t3
        a(f"v_sub_f32 v{al}, v{st}, v{V_M}")
        a(f"v_exp_f32 v{al}, v{al}")
        a("s_nop 0")
        a(f"v_mul_f32 v{V_L}, v{al}, v{st+1}")
        a("s_nop 1")
        red8(V_L, "v_add_f32")
        if norm:
            a(f"v_rcp_f32 v{t0}, v{V_L}")
            a("s_nop 0")
            a(f"v_mul_f32 v{al}, v{al}, v{t0}")
        O0, O1 = V_S, V_S + 1
        a(f"v_mov_b32 v{O0}, 0")
        a(f"v_mov_b32 v{O1}, 0")
        for w in range(8):
            a(f"v_fmac_f32_dpp v{O0}, v{al}, v{ys+2*w} row_newbcast:{w} row_mask:0xf bank_mask:0xf")
            a(f"v_fmac_f32_dpp v{O1}, v{al}, v{ys+2*w+1} row_newbcast:{w} row_mask:0xf bank_mask:0xf")
        return O0, O1
    a("s_waitcnt lgkmcnt(8)")
    red8(V_M, "v_max_f32", ST)
    al = t3
    a(f"v_sub_f32 v{al}, v{ST}, v{V_M}")
    a(f"v_exp_f32 v{al}, v{al}")
    a("s_nop 0")
    a(f"v_mul_f32 v{V_L}, v{al}, v{ST+1}")
    a("s_nop 1")
    red8(V_L, "v_add_f32")
    O0, O1 = V_S, V_S + 1
    assert O0 % 2 == 0
    a(f"v_mov_b32 v{O0}, 0")
    a(f"v_mov_b32 v{O1}, 0")
    a("s_waitcnt lgkmcnt(0)")
    for w in range(8):
        a(f"v_fmac_f32_dpp v{O0}, v{al}, v{Y+2*w} row_newbcast:{w} row_mask:0xf bank_mask:0xf")
        a(f"v_fmac_f32_dpp v{O1}, v{al}, v{Y+2*w+1} row_newbcast:{w} row_mask:0xf bank_mask:0xf")
    a(f"v_min_u32 v{O0}, -2, v{O0}")
    a(f"v_min_u32 v{O1}, -2, v{O1}")
    ML = V_S + 2
    a(f"v_min_u32 v{ML}, -2, v{V_M}")
    a(f"v_min_u32 v{ML+1}, -2, v{V_L}")
    a(f"global_store_dwordx2 v{t1}, {vr(O0,2)}, {sr(S_SLOT,2)} sc1")
    a(f"s_lshl_b32 s{S_T0}, s{S_WAVE}, 3")
    a(f"v_mov_b32 v{t0}, s{S_T0}")
    a(f"s_mov_b64 {sr(S_EX,2)}, exec")
    a("s_mov_b64 exec, 1")
    a(f"global_store_dwordx2 v{t0}, {vr(ML,2)}, {sr(S_SLOT,2)} offset:2048 sc1")
    a(f"s_mov_b64 exec, {sr(S_EX,2)}")
    stamp(8)
    a(f"s_cmp_lg_u32 s{S_CHUNK}, 7")
    a("s_cbranch_scc1 L_fin0" if stamps else "s_cbranch_scc1 L_end")
    a(f"s_mov_b32 s{S_SPIN}, {spin}")
    a("L_cntloop:")
    a(f"v_cmp_gt_u32 vcc, 8, v{V_CNT}")
    a("s_cbranch_vccz L_cntok")
    a(f"s_sub_u32 s{S_SPIN}, s{S_SPIN}, 1")
    a("s_cbranch_scc1 L_end")
    a(f"v_mov_b32 v{t0}, 0")
    a(f"global_load_dword v{V_CNT}, v{t0}, {sr(S_CNT,2)} sc1")
    a("s_waitcnt vmcnt(0)")
    a("s_branch L_cntloop")
    a("L_cntok:")
    a(f"v_and_b32 v{t2}, 7, v{L}")
    a(f"v_lshlrev_b32 v{t2}, 12, v{t2}")
    a(f"v_add_u32 v{t2}, s{S_T0}, v{t2}")
    va = V_PK
    for c in range(8):
        a(f"v_add_u32 v{va+c}, {c*4096}, v{t1}")
    a("L_poll:")
    a(f"global_load_dwordx2 {vr(ST,2)}, v{t2}, {sr(S_PSLOT,2)} offset:2048 sc1")
    for c in range(8):
        a(f"global_load_dwordx2 {vr(Y+2*c,2)}, v{va+c}, {sr(S_PSLOT,2)} sc1")
    a("s_waitcnt vmcnt(0)")
    a(f"v_max3_u32 v{t0}, v{ST}, v{ST+1}, v{Y}")
    for i in range(1, 15, 2):
        a(f"v_max3_u32 v{t0}, v{t0}, v{Y+i}, v{Y+i+1}")
    a(f"v_max_u32 v{t0}, v{t0}, v{Y+15}")
    a(f"v_cmp_eq_u32 vcc, -1, v{t0}")
    a("s_cbranch_vccz L_ready")
    a(f"s_sub_u32 s{S_SPIN}, s{S_SPIN}, 1")
    a("s_cbranch_scc0 L_poll")
    a("s_branch L_end")
    a("L_ready:")
    stamp(9)
    red8(V_M, "v_max_f32", ST)
    a(f"v_sub_f32 v{al}, v{ST}, v{V_M}")
    a(f"v_exp_f32 v{al}, v{al}")
    a("s_nop 0")
    a(f"v_mul_f32 v{V_L}, v{al}, v{ST+1}")
    a("s_nop 1")
    red8(V_L, "v_add_f32")
    a(f"v_rcp_f32 v{t0}, v{V_L}")
    a(f"v_mov_b32 v{O0}, 0")
    a(f"v_mul_f32 v{al}, v{al}, v{t0}")
    a(f"v_mov_b32 v{O1}, 0")
    a("s_nop 0")
    for w in range(8):
        a(f"v_fmac_f32_dpp v{O0}, v{al}, v{Y+2*w} row_newbcast:{w} row_mask:0xf bank_mask:0xf")
        a(f"v_fmac_f32_dpp v{O1}, v{al}, v{Y+2*w+1} row_newbcast:{w} row_mask:0xf bank_mask:0xf")
    a(f"v_cvt_pk_bf16_f32 v{t0}, v{O0}, v{O1}")
    a(f"v_and_b32 v{t2}, 31, v{L}")
    a(f"v_lshlrev_b32 v{t2}, 3, v{t2}")
    a(f"v_lshrrev_b32 v{t3}, 5, v{L}")
    a(f"v_lshl_or_b32 v{t2}, v{t3}, 2, v{t2}")
    a(f"s_lshl_b32 s{S_T0}, s{S_PAIR}, 10")
    a(f"s_lshl_b32 s{S_T1}, s{S_WAVE}, 8")
    a(f"s_add_u32 s{S_T0}, s{S_T0}, s{S_T1}")
    a(f"v_add_u32 v{t2}, s{S_T0}, v{t2}")
    a(f"global_store_dword v{t2}, v{t0}, {sr(S_OUT,2)}")
    if stamps:
        stamp(10)
        a("L_fin0:")
        flush_stamps(11, "end")
        if "dbgstamps" in opts:
            which = [int(o[2:]) for o in opts if o.startswith("st")][0]
            a(f"s_cmp_ge_u32 s{S_WG}, 8")
            a("s_cbranch_scc1 L_end")
            a(f"s_cmp_lg_u32 s{S_WAVE}, 0")
            a("s_cbranch_scc1 L_end")
            a("s_mov_b64 exec, 1")
            a(f"s_lshl_b32 s{S_T1}, s{S_WG}, 2")
            a(f"v_mov_b32 v79, s{S_T1}")
            a(f"v_mov_b32 v78, s{S_ST}")
            a(f"global_store_dword v79, v78, {sr(S_DBG,2)} sc1")
            a(f"v_mov_b32 v77, s{S_ST+2*which}")
            a(f"global_store_dword v79, v77, {sr(S_DBG,2)} offset:32 sc1")
    a("L_end:")
    a("s_endpgm")
    tail = f""".section .rodata,"a"
.p2align 6
.amdhsa_kernel {KNAME}_kernel
  .amdhsa_next_free_vgpr {NV}
  .amdhsa_next_free_sgpr {96 if stamps else 72}
  .amdhsa_accum_offset {(NV+3)//4*4}
  .amdhsa_group_segment_fixed_size 0
  .amdhsa_kernarg_size 80
  .amdhsa_user_sgpr_count 2
  .amdhsa_user_sgpr_kernarg_segment_ptr 1
  .amdhsa_system_sgpr_workgroup_id_x 1
  .amdhsa_float_denorm_mode_32 3
.end_amdhsa_kernel
"""
    return head + a.text() + tail

if __name__ == "__main__":
    ap = argparse.ArgumentParser()
    ap.add_argument("-G", type=int, default=16)
    ap.add_argument("--no-nt", action="store_true")
    ap.add_argument("--lds", type=int, default=0)
    ap.add_argument("--stamps", action="store_true")
    ap.add_argument("--opt", action="append", default=[])
    ap.add_argument("-o", default="cdna_kernels/" + KNAME + ".s")
    args = ap.parse_args()
    open(args.o, "w").write(gen(G=args.G, nt=not args.no_nt, lds_force=args.lds, stamps=args.stamps, opts=args.opt))
    print("wrote", args.o)
```

```python
import sys, math, argparse, struct

KNAME = "standalone__kv_cache_quant_int4_int2_kv_with_per_channel_or_per_token_scales__decode"

class Asm:
    def __init__(self): self.lines = []
    def __call__(self, s=""):
        s = s.strip()
        self.lines.append(s if s.endswith(":") else "    " + s)
    def text(self): return "\n".join(self.lines) + "\n"

def vr(a, n=1): return f"v{a}" if n == 1 else f"v[{a}:{a+n-1}]"
def sr(a, n=1): return f"s{a}" if n == 1 else f"s[{a}:{a+n-1}]"
def f32bits(x): return struct.unpack("<I", struct.pack("<f", x))[0]

def gen(NW=4, G=16, nt=True, lds_force=0, spin=1 << 16, stamps=False, opts=()):
    a = Asm()
    NH = 8 // NW
    NP = 16 * NH
    NL = 2 * NP
    NT = " nt" if nt else ""
    use_lo = "nolo" not in opts
    S_WG = 2; S_WAVE = 3
    S_Q, S_QK, S_QV, S_KS, S_KZ, S_VS, S_VZ, S_OUT = 4, 6, 8, 10, 12, 14, 16, 18
    S_DBG, S_WS = 20, 22
    S_KSRD = 24; S_VSRD = 28
    S_BASE = 32
    S_RUN = 33
    S_PAIR = 40; S_CHUNK = 41; S_T0 = 42; S_T1 = 43
    S_SLOT = 44; S_PSLOT = 46; S_CNT = 48
    S_SPIN = 52
    S_EX = 64
    S_ST = 70
    V_LANE = 0; V_OFFK = 1; V_OFFV = 2
    V_T = 3
    V_BHI = 12; V_BLO = 16
    V_NEGC = 20; V_PADDR = 21; V_CNT = 22
    V_M = 23; V_L = 24; V_CZ = 25
    V_S = 26
    V_VS = 34
    V_VZ = 36
    V_PK = 38
    V_D = 54
    V_ACC = 54
    V_PA = 70
    V_X = 78
    V_VSOFF = 11
    V_RING = 80
    NV = V_RING + 4 * G
    NV = max(NV, V_RING + 24)
    assert NV <= 256
    V_Q = 38; V_KSR = 42; V_KZR = 46

    LDS_P = 0
    LDS_RED = NW * NH * 1024
    LDS_STAT = LDS_RED + NW * 2048
    LDS_TOTAL = LDS_STAT + 4 * NW * 8
    lds = max(LDS_TOTAL, lds_force)
    Cbits = f32bits((128 ** -0.5) * math.log2(math.e))

    queue = []
    def issue(tag): queue.append(tag)
    def wait_for(tags):
        idx = max((queue.index(t) for t in tags if t in queue), default=-1)
        if idx < 0: return
        n = len(queue) - 1 - idx
        assert n <= 63
        a(f"s_waitcnt vmcnt({n})")
        del queue[:idx + 1]

    def stamp(i):
        if stamps: a(f"s_memrealtime s[{S_ST+2*i}:{S_ST+2*i+1}]")
    def flush_stamps(n):
        a("s_waitcnt lgkmcnt(0)")
        vx, va_ = V_X, V_X + 1
        a(f"v_mov_b32 v{vx}, 0")
        for i in range(n): a(f"v_writelane_b32 v{vx}, s{S_ST+2*i}, {i}")
        a(f"s_getreg_b32 s{S_T1}, hwreg(HW_REG_HW_ID)")
        a(f"v_writelane_b32 v{vx}, s{S_T1}, 14")
        a(f"s_getreg_b32 s{S_T1}, hwreg(HW_REG_XCC_ID)")
        a(f"v_writelane_b32 v{vx}, s{S_T1}, 15")
        a(f"s_mul_i32 s{S_T1}, s{S_WG}, {NW}")
        a(f"s_add_u32 s{S_T1}, s{S_T1}, s{S_WAVE}")
        a(f"s_lshl_b32 s{S_T1}, s{S_T1}, 6")
        a(f"s_add_u32 s{S_T1}, s{S_T1}, 0x8000000")
        a(f"v_lshl_add_u32 v{va_}, v{V_LANE}, 2, s{S_T1}")
        a("s_mov_b64 exec, 0xffff")
        a(f"global_store_dword v{va_}, v{vx}, {sr(S_WS,2)}")

    hdr = open("cdna_kernels/" + KNAME + ".s.ref").read().split("\n")
    out = []
    for l in hdr:
        if l.startswith("; @launch"):
            out.append(f"; @launch grid=(256,1,1) block=({NW*64},1,1) lds={lds}")
            break
        out.append(l)
    head = "\n".join(out) + "\n"
    head += f""".amdgcn_target "amdgcn-amd-amdhsa--gfx950"
.text
.globl {KNAME}_kernel
.p2align 8
.type {KNAME}_kernel,@function
{KNAME}_kernel:
"""
    L = V_LANE
    t0, t1, t2, t3 = V_T, V_T + 1, V_T + 2, V_T + 3
    a(f"s_cmp_ge_u32 s{S_WG}, 256")
    a("s_cbranch_scc1 L_end")
    stamp(0)
    a("s_load_dwordx16 s[4:19], s[0:1], 0")
    a("s_load_dwordx4 s[20:23], s[0:1], 64")
    a(f"v_lshrrev_b32 v{t0}, 6, v0")
    a(f"v_and_b32 v{L}, 63, v0")
    a(f"v_readfirstlane_b32 s{S_WAVE}, v{t0}")
    a(f"v_and_b32 v{t0}, 3, v{L}")
    a(f"v_lshrrev_b32 v{t1}, 4, v{L}")
    a(f"v_bfe_u32 v{t2}, v{L}, 2, 2")
    a(f"v_lshlrev_b32 v{V_OFFK}, 4, v{t0}")
    a(f"v_lshl_or_b32 v{V_OFFK}, v{t1}, 6, v{V_OFFK}")
    a(f"v_lshl_or_b32 v{V_OFFK}, v{t2}, 9, v{V_OFFK}")
    a(f"v_lshlrev_b32 v{V_OFFV}, 4, v{L}")
    a(f"s_lshl_b32 s{S_T0}, s{S_WG}, 18")
    a(f"s_lshl_b32 s{S_T1}, s{S_WAVE}, 11")
    a(f"s_add_u32 s{S_BASE}, s{S_T0}, s{S_T1}")
    a(f"s_lshr_b32 s{S_PAIR}, s{S_WG}, 3")
    a(f"s_and_b32 s{S_CHUNK}, s{S_WG}, 7")
    vq, vks, vkz, vsc = V_T + 4, V_T + 5, V_T + 6, V_VSOFF
    a(f"v_lshlrev_b32 v{vks}, 5, v{t1}")
    a(f"v_lshl_or_b32 v{vkz}, v{t0}, 3, v{vks}")
    a(f"v_lshl_or_b32 v{vks}, v{t2}, 3, v{vks}")
    a(f"v_lshl_or_b32 v{vq}, v{t0}, 8, v{vks}")
    a(f"v_lshl_or_b32 v{vsc}, v{t2}, 2, v{t0}")
    a(f"v_mul_u32_u24 v{vsc}, {NW*8}, v{vsc}")
    a(f"v_lshl_or_b32 v{vsc}, v{t1}, 1, v{vsc}")
    a(f"s_lshl_b32 s{S_T1}, s{S_WAVE}, 3")
    a(f"v_add_u32 v{vsc}, s{S_T1}, v{vsc}")
    a("s_waitcnt lgkmcnt(0)")
    stamp(1)
    for srd, p in ((S_KSRD, S_QK), (S_VSRD, S_QV)):
        a(f"s_mov_b32 s{srd}, s{p}")
        a(f"s_and_b32 s{srd+1}, s{p+1}, 0xffff")
        a(f"s_mov_b32 s{srd+2}, 0x4000000")
        a(f"s_mov_b32 s{srd+3}, 0x20000")

    def slot(n): return V_RING + 4 * (n % G)
    def issue_big(n):
        if n >= 2 * NL: return
        isK = n < NL
        m = n if isK else n - NL
        piece, sub = m // 2, m % 2
        if sub == 0:
            a(f"s_add_u32 s{S_RUN}, s{S_BASE}, {piece*NW*2048}")
        if isK:
            a(f"buffer_load_dwordx4 {vr(slot(n),4)}, v{V_OFFK}, {sr(S_KSRD,4)}, s{S_RUN} offen offset:{sub*256}{NT}")
        else:
            a(f"buffer_load_dwordx4 {vr(slot(n),4)}, v{V_OFFV}, {sr(S_VSRD,4)}, s{S_RUN} offen offset:{sub*1024}{NT}")
        issue(n)

    def optv(name, default):
        for o in opts:
            if o.startswith(name + "="): return int(o.split("=")[1])
        return default
    nfirst = min(G, optv("nfirst", 0))
    for n in range(nfirst): issue_big(n)
    late_v = optv("latev", -1)
    clr_step = optv("clr", -1)
    a(f"s_lshl_b32 s{S_T0}, s{S_PAIR}, 10")
    a(f"s_add_u32 s{S_Q}, s{S_Q}, s{S_T0}")
    a(f"s_addc_u32 s{S_Q+1}, s{S_Q+1}, 0")
    a(f"s_lshr_b32 s{S_T0}, s{S_WG}, 2")
    a(f"s_lshl_b32 s{S_T0}, s{S_T0}, 8")
    for p in (S_KS, S_KZ):
        a(f"s_add_u32 s{p}, s{p}, s{S_T0}")
        a(f"s_addc_u32 s{p+1}, s{p+1}, 0")
    a(f"s_lshl_b32 s{S_T0}, s{S_WG}, 10")
    for p in (S_VS, S_VZ):
        a(f"s_add_u32 s{p}, s{p}, s{S_T0}")
        a(f"s_addc_u32 s{p+1}, s{p+1}, 0")
    a(f"global_load_dwordx2 {vr(V_Q,2)}, v{vq}, {sr(S_Q,2)}")
    a(f"global_load_dwordx2 {vr(V_Q+2,2)}, v{vq}, {sr(S_Q,2)} offset:128")
    a(f"global_load_dwordx2 {vr(V_KSR,2)}, v{vks}, {sr(S_KS,2)}")
    a(f"global_load_dwordx2 {vr(V_KSR+2,2)}, v{vks}, {sr(S_KS,2)} offset:128")
    a(f"global_load_dwordx2 {vr(V_KZR,2)}, v{vkz}, {sr(S_KZ,2)}")
    a(f"global_load_dwordx2 {vr(V_KZR+2,2)}, v{vkz}, {sr(S_KZ,2)} offset:128")
    for t in ("q0", "q1", "ks0", "ks1", "kz0", "kz1"): issue(t)
    def load_vsz():
        for hh in range(NH):
            a(f"global_load_ushort v{V_VS+hh}, v{V_VSOFF}, {sr(S_VS,2)} offset:{hh*16*NW*8}"); issue(f"vs{hh}")
            a(f"global_load_ushort v{V_VZ+hh}, v{V_VSOFF}, {sr(S_VZ,2)} offset:{hh*16*NW*8}"); issue(f"vz{hh}")
    if late_v < 0: load_vsz()
    for n in range(nfirst, G): issue_big(n)
    a(f"s_lshl_b32 s{S_T0}, s{S_WG}, 12")
    a(f"s_add_u32 s{S_SLOT}, s{S_WS}, s{S_T0}")
    a(f"s_addc_u32 s{S_SLOT+1}, s{S_WS+1}, 0")
    a(f"s_lshl_b32 s{S_T0}, s{S_PAIR}, 15")
    a(f"s_add_u32 s{S_PSLOT}, s{S_WS}, s{S_T0}")
    a(f"s_addc_u32 s{S_PSLOT+1}, s{S_WS+1}, 0")
    a(f"s_lshl_b32 s{S_T0}, s{S_PAIR}, 3")
    a(f"s_add_u32 s{S_CNT}, s{S_DBG}, s{S_T0}")
    a(f"s_addc_u32 s{S_CNT+1}, s{S_DBG+1}, 0")
    def poison():
        a(f"s_cmp_lg_u32 s{S_WAVE}, 0")
        a("s_cbranch_scc1 L_noclear")
        z = V_PA
        for i in range(4): a(f"v_mov_b32 v{z+i}, -1")
        a(f"global_store_dwordx4 v{V_OFFV}, {vr(z,4)}, {sr(S_SLOT,2)} sc1")
        a(f"global_store_dwordx4 v{V_OFFV}, {vr(z,4)}, {sr(S_SLOT,2)} offset:1024 sc1")
        a(f"global_store_dwordx4 v{V_OFFV}, {vr(z,4)}, {sr(S_SLOT,2)} offset:2048 sc1")
        a("L_noclear:")
    if clr_step < 0: poison()
    a(f"v_lshrrev_b32 v{V_PADDR}, 5, v{L}")
    a(f"v_lshlrev_b32 v{V_PADDR}, 7, v{V_PADDR}")
    a(f"v_lshl_or_b32 v{V_PADDR}, v{t0}, 3, v{V_PADDR}")
    a(f"s_mul_i32 s{S_T1}, s{S_WAVE}, {NH*1024}")
    a(f"v_add_u32 v{V_PADDR}, s{S_T1}, v{V_PADDR}")

    wait_for(["q0", "q1", "ks0", "ks1", "kz0", "kz1"])
    stamp(2)
    a(f"s_mov_b32 s{S_T0}, 0x{Cbits:08x}")
    a(f"s_mov_b32 s{S_T1}, 0xffff0000")
    x0, x1, y0, y1 = V_T, V_T + 1, V_T + 2, V_T + 3
    for n in range(4):
        a(f"v_lshlrev_b32 v{x0}, 16, v{V_Q+n}")
        a(f"v_and_b32 v{x1}, s{S_T1}, v{V_Q+n}")
        a(f"v_lshlrev_b32 v{y0}, 16, v{V_KSR+n}")
        a(f"v_and_b32 v{y1}, s{S_T1}, v{V_KSR+n}")
        a(f"v_mul_f32 v{x0}, v{x0}, v{y0}")
        a(f"v_mul_f32 v{x1}, v{x1}, v{y1}")
        a(f"v_mul_f32 v{x0}, s{S_T0}, v{x0}")
        a(f"v_mul_f32 v{x1}, s{S_T0}, v{x1}")
        a(f"v_cvt_pk_bf16_f32 v{V_BHI+n}, v{x0}, v{x1}")
        a(f"v_lshlrev_b32 v{y0}, 16, v{V_BHI+n}")
        a(f"v_and_b32 v{y1}, s{S_T1}, v{V_BHI+n}")
        a(f"v_sub_f32 v{x0}, v{x0}, v{y0}")
        a(f"v_sub_f32 v{x1}, v{x1}, v{y1}")
        a(f"v_cvt_pk_bf16_f32 v{V_BLO+n}, v{x0}, v{x1}")
    a("s_nop 1")
    D0 = V_D
    a(f"v_mfma_f32_16x16x32_bf16 {vr(D0,4)}, {vr(V_KZR,4)}, {vr(V_BHI,4)}, 0")
    a(f"v_mfma_f32_16x16x32_bf16 {vr(D0,4)}, {vr(V_KZR,4)}, {vr(V_BLO,4)}, {vr(D0,4)}")
    a("s_nop 7")
    for c in range(4):
        a(f"v_mov_b32_dpp v{V_NEGC}, v{D0+c} quad_perm:[0,1,2,3] row_mask:0xf bank_mask:0x{1<<c:x}")
    a("s_nop 1")
    a(f"v_add_f32_dpp v{V_NEGC}, v{V_NEGC}, v{V_NEGC} row_ror:4 row_mask:0xf bank_mask:0xf")
    a("s_nop 1")
    a(f"v_add_f32_dpp v{V_NEGC}, v{V_NEGC}, v{V_NEGC} row_ror:8 row_mask:0xf bank_mask:0xf")
    a(f"v_sub_f32 v{V_NEGC}, 0, v{V_NEGC}")

    def extract(s):
        hh, b, g = s // 16, (s // 4) % 4, s % 4
        D = V_D + 4 * (s % 4)
        first = True
        for c in range(4):
            rot = (4 * (b - c)) % 16
            ctl = f"row_ror:{rot}" if rot else "quad_perm:[0,1,2,3]"
            dst = V_S + 4 * hh + g
            src1 = V_NEGC if first else dst
            a(f"v_add_f32_dpp v{dst}, v{D+c}, v{src1} {ctl} row_mask:0xf bank_mask:0x{1<<b:x}")
            first = False
    pend = None
    for s in range(NP):
        n0, n1 = 2 * s, 2 * s + 1
        PK = V_PK + 4 * (s % 2)
        wait_for([n0, n1])
        if s == 0: stamp(3)
        for n in (n0, n1):
            for r in range(4): a(f"v_cvt_f32_i32 v{slot(n)+r}, v{slot(n)+r}")
        for jj, n in enumerate((n0, n1)):
            a(f"v_cvt_pk_bf16_f32 v{PK+2*jj}, v{slot(n)}, v{slot(n)+1}")
            a(f"v_cvt_pk_bf16_f32 v{PK+2*jj+1}, v{slot(n)+2}, v{slot(n)+3}")
        issue_big(n0 + G); issue_big(n1 + G)
        D = V_D + 4 * (s % 4)
        a(f"v_mfma_f32_16x16x32_bf16 {vr(D,4)}, {vr(PK,4)}, {vr(V_BHI,4)}, 0")
        a(f"v_mfma_f32_16x16x32_bf16 {vr(D,4)}, {vr(PK,4)}, {vr(V_BLO,4)}, {vr(D,4)}")
        if pend is not None: extract(pend)
        if s == 1:
            pass
        pend = s
        if s == late_v: load_vsz()
        if s == clr_step: poison()
        if s == max(clr_step, 0) + G // 2 + 1:
            a(f"s_cmp_lg_u32 s{S_WAVE}, 0")
            a("s_cbranch_scc1 L_nocount")
            a(f"v_mov_b32 v{t0}, 0")
            a(f"v_mov_b32 v{t1}, 1")
            a(f"s_mov_b64 {sr(S_EX,2)}, exec")
            a("s_mov_b64 exec, 1")
            a(f"global_atomic_add v{t0}, v{t1}, {sr(S_CNT,2)} sc1")
            a(f"s_mov_b64 exec, {sr(S_EX,2)}")
            a("L_nocount:")
    a("s_nop 7")
    extract(pend)
    stamp(4)

    S = V_S
    NS = 4 * NH
    a(f"v_max3_f32 v{V_M}, v{S}, v{S+1}, v{S+2}")
    i = 3
    while i < NS:
        if i + 1 < NS:
            a(f"v_max3_f32 v{V_M}, v{V_M}, v{S+i}, v{S+i+1}"); i += 2
        else:
            a(f"v_max_f32 v{V_M}, v{V_M}, v{S+i}"); i += 1
    def allred(reg, op, tmp):
        a("s_nop 1")
        a(f"{op}_dpp v{reg}, v{reg}, v{reg} row_ror:4 row_mask:0xf bank_mask:0xf")
        a("s_nop 1")
        a(f"{op}_dpp v{reg}, v{reg}, v{reg} row_ror:8 row_mask:0xf bank_mask:0xf")
        a(f"v_mov_b32 v{tmp}, v{reg}")
        a("s_nop 1")
        a(f"v_permlane16_swap_b32 v{tmp}, v{reg}")
        a(f"{op} v{reg}, v{reg}, v{tmp}")
        a(f"v_mov_b32 v{tmp}, v{reg}")
        a("s_nop 1")
        a(f"v_permlane32_swap_b32 v{tmp}, v{reg}")
        a(f"{op} v{reg}, v{reg}, v{tmp}")
    allred(V_M, "v_max_f32", t0)
    for g in range(NS): a(f"v_sub_f32 v{S+g}, v{S+g}, v{V_M}")
    for g in range(NS): a(f"v_exp_f32 v{S+g}, v{S+g}")
    wait_for([f"vs{h}" for h in range(NH)] + [f"vz{h}" for h in range(NH)])
    for hh in range(NH):
        a(f"v_lshlrev_b32 v{V_VS+hh}, 16, v{V_VS+hh}")
        a(f"v_lshlrev_b32 v{V_VZ+hh}, 16, v{V_VZ+hh}")
    a(f"v_add_f32 v{V_L}, v{S}, v{S+1}")
    for g in range(2, NS): a(f"v_add_f32 v{V_L}, v{V_L}, v{S+g}")
    for hh in range(NH):
        for g in range(4):
            a(f"v_mul_f32_dpp v{S+4*hh+g}, v{V_VS+hh}, v{S+4*hh+g} quad_perm:[{g},{g},{g},{g}] row_mask:0xf bank_mask:0xf")
    a(f"s_mov_b32 s{S_T1}, 0xffff0000")
    a(f"s_mul_i32 s{S_T0}, s{S_WAVE}, {NH*1024}")
    a(f"v_lshl_add_u32 v{t1}, v{L}, 3, s{S_T0}")
    u = V_T + 4
    hi, lo = V_PA, V_PA + 2
    for hh in range(NH):
        Sh = S + 4 * hh
        hi, lo = V_PA + 4 * hh, V_PA + 4 * hh + 2
        a(f"v_cvt_pk_bf16_f32 v{hi}, v{Sh}, v{Sh+1}")
        a(f"v_cvt_pk_bf16_f32 v{hi+1}, v{Sh+2}, v{Sh+3}")
        a(f"v_lshlrev_b32 v{u}, 16, v{hi}")
        a(f"v_and_b32 v{u+1}, s{S_T1}, v{hi}")
        a(f"v_lshlrev_b32 v{u+2}, 16, v{hi+1}")
        a(f"v_and_b32 v{u+3}, s{S_T1}, v{hi+1}")
        a(f"ds_write_b64 v{t1}, {vr(hi,2)} offset:{LDS_P+hh*1024}")
        if use_lo:
            for g in range(4): a(f"v_sub_f32 v{Sh+g}, v{Sh+g}, v{u+g}")
            a(f"v_cvt_pk_bf16_f32 v{lo}, v{Sh}, v{Sh+1}")
            a(f"v_cvt_pk_bf16_f32 v{lo+1}, v{Sh+2}, v{Sh+3}")
            a(f"ds_write_b64 v{t1}, {vr(lo,2)} offset:{LDS_P+hh*1024+512}")
            a(f"v_lshlrev_b32 v{Sh}, 16, v{lo}")
            a(f"v_and_b32 v{Sh+1}, s{S_T1}, v{lo}")
            a(f"v_lshlrev_b32 v{Sh+2}, 16, v{lo+1}")
            a(f"v_and_b32 v{Sh+3}, s{S_T1}, v{lo+1}")
            for g in range(4): a(f"v_add_f32 v{Sh+g}, v{Sh+g}, v{u+g}")
        else:
            for g in range(4): a(f"v_mov_b32 v{Sh+g}, v{u+g}")
        if hh == 0:
            a(f"v_mul_f32_dpp v{V_CZ}, v{V_VZ+hh}, v{Sh} quad_perm:[0,0,0,0] row_mask:0xf bank_mask:0xf")
        else:
            a(f"v_fmac_f32_dpp v{V_CZ}, v{V_VZ+hh}, v{Sh} quad_perm:[0,0,0,0] row_mask:0xf bank_mask:0xf")
        for g in range(1, 4):
            a(f"v_fmac_f32_dpp v{V_CZ}, v{V_VZ+hh}, v{Sh+g} quad_perm:[{g},{g},{g},{g}] row_mask:0xf bank_mask:0xf")
    allred(V_L, "v_add_f32", t0)
    allred(V_CZ, "v_add_f32", t0)
    for i in range(16): a(f"v_mov_b32 v{V_ACC+i}, 0")
    if "warmout" in opts:
        a(f"s_cmp_lg_u32 s{S_CHUNK}, 7")
        a("s_cbranch_scc1 L_nowarm")
        a(f"v_mov_b32 v{t0}, 0")
        a(f"global_load_dword v{V_X}, v{t0}, {sr(S_OUT,2)}")
        a("L_nowarm:")
    a(f"v_mov_b32 v{V_CNT}, 8")
    a(f"s_cmp_lg_u32 s{S_CHUNK}, 7")
    a("s_cbranch_scc1 L_nocntload")
    a(f"v_mov_b32 v{t0}, 0")
    a(f"global_load_dword v{V_CNT}, v{t0}, {sr(S_CNT,2)} sc1")
    a("L_nocntload:")
    a(f"v_mul_u32_u24 v{t1}, {NW*8}, v{L}")
    a(f"s_lshl_b32 s{S_T0}, s{S_WAVE}, 3")
    a(f"v_add_u32 v{t1}, s{S_T0}, v{t1}")
    a(f"s_mov_b64 {sr(S_EX,2)}, exec")
    a("s_mov_b64 exec, 0xf")
    a(f"ds_write_b32 v{t1}, v{V_M} offset:{LDS_STAT}")
    a(f"ds_write_b32 v{t1}, v{V_L} offset:{LDS_STAT+4}")
    a(f"s_mov_b64 exec, {sr(S_EX,2)}")
    a("s_waitcnt lgkmcnt(0)")
    stamp(5)

    def pa_read(unit, sub):
        hh, b = unit // 4, unit % 4
        P = V_PA + 4 * sub
        off = LDS_P + hh * 1024 + 256 * sub + 32 * b
        a(f"ds_read_b64 {vr(P,2)}, v{V_PADDR} offset:{off}")
        if use_lo: a(f"ds_read_b64 {vr(P+2,2)}, v{V_PADDR} offset:{off+512}")
    nP = 2 if use_lo else 1
    NU = 4 * NH
    for unit in range(NU):
        base = NL + 8 * unit
        pa_read(unit, 0); pa_read(unit, 1)
        for kp in range(2):
            ns = [base + 4 * kp + i for i in range(4)]
            wait_for(ns)
            for n in ns:
                for r in range(4): a(f"v_cvt_f32_i32 v{slot(n)+r}, v{slot(n)+r}")
            for sub in range(2):
                for r in range(4):
                    a(f"v_cvt_pk_bf16_f32 v{V_PK+8*sub+2*r+kp}, v{slot(ns[sub])+r}, v{slot(ns[2+sub])+r}")
            for n in ns: issue_big(n + G)
        a("s_waitcnt lgkmcnt(0)")
        a("s_nop 0")
        for sub in range(2):
            P = V_PA + 4 * sub
            for r in range(4):
                a(f"v_mfma_f32_4x4x4_16b_bf16 {vr(V_ACC+4*r,4)}, {vr(P,2)}, {vr(V_PK+8*sub+2*r,2)}, {vr(V_ACC+4*r,4)}")
            if use_lo:
                for r in range(4):
                    a(f"v_mfma_f32_4x4x4_16b_bf16 {vr(V_ACC+4*r,4)}, {vr(P+2,2)}, {vr(V_PK+8*sub+2*r,2)}, {vr(V_ACC+4*r,4)}")
    stamp(6)

    a("s_nop 4")
    for i in range(4):
        a(f"v_permlane32_swap_b32 v{V_ACC+i}, v{V_ACC+8+i}")
        a(f"v_permlane32_swap_b32 v{V_ACC+4+i}, v{V_ACC+12+i}")
    X = V_PK
    for i in range(4):
        a(f"v_add_f32 v{X+2*i}, v{V_ACC+i}, v{V_ACC+8+i}")
        a(f"v_add_f32 v{X+2*i+1}, v{V_ACC+4+i}, v{V_ACC+12+i}")
    for i in range(4):
        a(f"v_subrev_f32_dpp v{X+2*i}, v{V_CZ}, v{X+2*i} quad_perm:[{i},{i},{i},{i}] row_mask:0xf bank_mask:0xf")
        a(f"v_subrev_f32_dpp v{X+2*i+1}, v{V_CZ}, v{X+2*i+1} quad_perm:[{i},{i},{i},{i}] row_mask:0xf bank_mask:0xf")
    a(f"s_lshl_b32 s{S_T0}, s{S_WAVE}, 11")
    a(f"v_lshl_add_u32 v{t1}, v{L}, 3, s{S_T0}")
    for i in range(4):
        a(f"ds_write_b64 v{t1}, {vr(X+2*i,2)} offset:{LDS_RED+512*i}")
    a("s_waitcnt lgkmcnt(0)")
    a("s_barrier")
    stamp(7)
    if NW > 4:
        a(f"s_cmp_ge_u32 s{S_WAVE}, 4")
        a("s_cbranch_scc1 L_fin0" if stamps else "s_cbranch_scc1 L_end")
    Y = V_RING
    a(f"s_lshl_b32 s{S_T0}, s{S_WAVE}, 9")
    a(f"v_lshl_add_u32 v{t1}, v{L}, 3, s{S_T0}")
    a(f"v_and_b32 v{t2}, {NW-1}, v{L}")
    a(f"s_mul_i32 s{S_T0}, s{S_WAVE}, {NW*8}")
    a(f"v_lshl_add_u32 v{t2}, v{t2}, 3, s{S_T0}")
    ST = V_PK + 8
    a(f"ds_read_b64 {vr(ST,2)}, v{t2} offset:{LDS_STAT}")
    for w in range(NW):
        a(f"ds_read_b64 {vr(Y+2*w,2)}, v{t1} offset:{LDS_RED+2048*w}")
    def redn(n, reg, op, src=None):
        src = reg if src is None else src
        r = n // 2
        first = True
        while r >= 1:
            if not first: a("s_nop 1")
            s_ = src if first else reg
            a(f"{op}_dpp v{reg}, v{s_}, v{s_} row_ror:{r} row_mask:0xf bank_mask:0xf")
            first = False
            r //= 2
    al = t3
    O0, O1 = V_S, V_S + 1
    def weights(n, norm):
        redn(n, V_M, "v_max_f32", ST)
        a(f"v_sub_f32 v{al}, v{ST}, v{V_M}")
        a(f"v_exp_f32 v{al}, v{al}")
        a(f"v_mov_b32 v{O0}, 0")
        a(f"v_mul_f32 v{V_L}, v{al}, v{ST+1}")
        a(f"v_mov_b32 v{O1}, 0")
        a("s_nop 0")
        redn(n, V_L, "v_add_f32")
        if norm:
            a(f"v_rcp_f32 v{t0}, v{V_L}")
            a("s_nop 0")
            a(f"v_mul_f32 v{al}, v{al}, v{t0}")
            a("s_nop 1")
    def accumulate(n):
        for w in range(n):
            a(f"v_fmac_f32_dpp v{O0}, v{al}, v{Y+2*w} row_newbcast:{w} row_mask:0xf bank_mask:0xf")
            a(f"v_fmac_f32_dpp v{O1}, v{al}, v{Y+2*w+1} row_newbcast:{w} row_mask:0xf bank_mask:0xf")
    a(f"s_waitcnt lgkmcnt({NW})")
    weights(NW, False)
    a("s_waitcnt lgkmcnt(0)")
    accumulate(NW)
    a(f"v_min_u32 v{O0}, -2, v{O0}")
    a(f"v_min_u32 v{O1}, -2, v{O1}")
    ML = V_S + 2
    a(f"v_min_u32 v{ML}, -2, v{V_M}")
    a(f"v_min_u32 v{ML+1}, -2, v{V_L}")
    a(f"global_store_dwordx2 v{t1}, {vr(O0,2)}, {sr(S_SLOT,2)} sc1")
    a(f"s_lshl_b32 s{S_T0}, s{S_WAVE}, 3")
    a(f"v_mov_b32 v{t0}, s{S_T0}")
    a(f"s_mov_b64 {sr(S_EX,2)}, exec")
    a("s_mov_b64 exec, 1")
    a(f"global_store_dwordx2 v{t0}, {vr(ML,2)}, {sr(S_SLOT,2)} offset:2048 sc1")
    a(f"s_mov_b64 exec, {sr(S_EX,2)}")
    stamp(8)
    a(f"s_cmp_lg_u32 s{S_CHUNK}, 7")
    a("s_cbranch_scc1 L_fin0" if stamps else "s_cbranch_scc1 L_end")
    a(f"s_mov_b32 s{S_SPIN}, {spin}")
    a("L_cntloop:")
    a(f"v_cmp_gt_u32 vcc, 8, v{V_CNT}")
    a("s_cbranch_vccz L_cntok")
    a(f"s_sub_u32 s{S_SPIN}, s{S_SPIN}, 1")
    a("s_cbranch_scc1 L_end")
    a(f"v_mov_b32 v{t0}, 0")
    a(f"global_load_dword v{V_CNT}, v{t0}, {sr(S_CNT,2)} sc1")
    a("s_waitcnt vmcnt(0)")
    a("s_branch L_cntloop")
    a("L_cntok:")
    a(f"v_and_b32 v{t2}, 7, v{L}")
    a(f"v_lshlrev_b32 v{t2}, 12, v{t2}")
    a(f"v_add_u32 v{t2}, s{S_T0}, v{t2}")
    va = V_PK
    for c in range(8): a(f"v_add_u32 v{va+c}, {c*4096}, v{t1}")
    a("L_poll:")
    a(f"global_load_dwordx2 {vr(ST,2)}, v{t2}, {sr(S_PSLOT,2)} offset:2048 sc1")
    for c in range(8):
        a(f"global_load_dwordx2 {vr(Y+2*c,2)}, v{va+c}, {sr(S_PSLOT,2)} sc1")
    a("s_waitcnt vmcnt(0)")
    a(f"v_max3_u32 v{t0}, v{ST}, v{ST+1}, v{Y}")
    for i in range(1, 15, 2): a(f"v_max3_u32 v{t0}, v{t0}, v{Y+i}, v{Y+i+1}")
    a(f"v_max_u32 v{t0}, v{t0}, v{Y+15}")
    a(f"v_cmp_eq_u32 vcc, -1, v{t0}")
    a("s_cbranch_vccz L_ready")
    a(f"s_sub_u32 s{S_SPIN}, s{S_SPIN}, 1")
    a("s_cbranch_scc0 L_poll")
    a("s_branch L_end")
    a("L_ready:")
    stamp(9)
    weights(8, True)
    accumulate(8)
    a(f"v_cvt_pk_bf16_f32 v{t0}, v{O0}, v{O1}")
    a(f"v_and_b32 v{t2}, 31, v{L}")
    a(f"v_lshlrev_b32 v{t2}, 3, v{t2}")
    a(f"v_lshrrev_b32 v{t3}, 5, v{L}")
    a(f"v_lshl_or_b32 v{t2}, v{t3}, 2, v{t2}")
    a(f"s_lshl_b32 s{S_T0}, s{S_PAIR}, 10")
    a(f"s_lshl_b32 s{S_T1}, s{S_WAVE}, 8")
    a(f"s_add_u32 s{S_T0}, s{S_T0}, s{S_T1}")
    a(f"v_add_u32 v{t2}, s{S_T0}, v{t2}")
    a(f"global_store_dword v{t2}, v{t0}, {sr(S_OUT,2)}")
    if stamps:
        stamp(10)
        a("L_fin0:")
        flush_stamps(11)
    a("L_end:")
    a("s_endpgm")
    tail = f""".section .rodata,"a"
.p2align 6
.amdhsa_kernel {KNAME}_kernel
  .amdhsa_next_free_vgpr {NV}
  .amdhsa_next_free_sgpr {96 if stamps else 72}
  .amdhsa_accum_offset {(NV+3)//4*4}
  .amdhsa_group_segment_fixed_size 0
  .amdhsa_kernarg_size 80
  .amdhsa_user_sgpr_count 2
  .amdhsa_user_sgpr_kernarg_segment_ptr 1
  .amdhsa_system_sgpr_workgroup_id_x 1
  .amdhsa_float_denorm_mode_32 3
.end_amdhsa_kernel
"""
    return head + a.text() + tail, lds

if __name__ == "__main__":
    ap = argparse.ArgumentParser()
    ap.add_argument("--nw", type=int, default=4)
    ap.add_argument("-G", type=int, default=16)
    ap.add_argument("--no-nt", action="store_true")
    ap.add_argument("--lds", type=int, default=0)
    ap.add_argument("--stamps", action="store_true")
    ap.add_argument("--opt", action="append", default=[])
    ap.add_argument("-o", default="cdna_kernels/" + KNAME + ".s")
    args = ap.parse_args()
    s, lds = gen(NW=args.nw, G=args.G, nt=not args.no_nt, lds_force=args.lds, stamps=args.stamps, opts=args.opt)
    open(args.o, "w").write(s)
    print(lds)
```

```python
import sys, math, argparse, struct

KNAME = "standalone__kv_cache_quant_int4_int2_kv_with_per_channel_or_per_token_scales__decode"

class Asm:
    def __init__(self): self.lines = []
    def __call__(self, s=""):
        s = s.strip()
        self.lines.append(s if s.endswith(":") else "    " + s)
    def text(self): return "\n".join(self.lines) + "\n"

def vr(a, n=1): return f"v{a}" if n == 1 else f"v[{a}:{a+n-1}]"
def sr(a, n=1): return f"s{a}" if n == 1 else f"s[{a}:{a+n-1}]"
def f32bits(x): return struct.unpack("<I", struct.pack("<f", x))[0]

def gen(NW=4, G=16, nt=True, lds_force=0, spin=1 << 16, stamps=False, opts=()):
    a = Asm()
    NH = 8 // NW
    NP = 16 * NH
    NL = 2 * NP
    NT = " nt" if nt else ""
    use_lo = "nolo" not in opts
    S_WG = 2; S_WAVE = 3
    S_Q, S_QK, S_QV, S_KS, S_KZ, S_VS, S_VZ, S_OUT = 4, 6, 8, 10, 12, 14, 16, 18
    S_DBG, S_WS = 20, 22
    S_KSRD = 24; S_VSRD = 28
    S_BASE = 32
    S_RUN = 33
    S_PAIR = 40; S_CHUNK = 41; S_T0 = 42; S_T1 = 43
    S_SLOT = 44; S_PSLOT = 46; S_CNT = 48
    S_SPIN = 52
    S_EX = 64
    S_ST = 70
    V_LANE = 0; V_OFFK = 1; V_OFFV = 2
    V_T = 3
    V_BHI = 12; V_BLO = 16
    V_NEGC = 20; V_PADDR = 21; V_CNT = 22
    V_M = 23; V_L = 24; V_CZ = 25
    V_S = 26
    V_VS = 34
    V_VZ = 36
    V_PK = 38
    V_D = 54
    V_ACC = 54
    V_PA = 70
    V_X = 78
    V_VSOFF = 11
    V_RING = 80
    NV = V_RING + 4 * G
    NV = max(NV, V_RING + 24)
    assert NV <= 256
    V_Q = 38; V_KSR = 42; V_KZR = 46

    LDS_P = 0
    LDS_RED = NW * NH * 1024
    LDS_STAT = LDS_RED + NW * 2048
    LDS_TOTAL = LDS_STAT + 4 * NW * 8
    lds = max(LDS_TOTAL, lds_force)
    Cbits = f32bits((128 ** -0.5) * math.log2(math.e))

    queue = []
    def issue(tag): queue.append(tag)
    def wait_for(tags):
        idx = max((queue.index(t) for t in tags if t in queue), default=-1)
        if idx < 0: return
        n = len(queue) - 1 - idx
        assert n <= 63
        a(f"s_waitcnt vmcnt({n})")
        del queue[:idx + 1]

    def stamp(i):
        if stamps: a(f"s_memrealtime s[{S_ST+2*i}:{S_ST+2*i+1}]")
    def flush_stamps(n):
        a("s_waitcnt lgkmcnt(0)")
        vx, va_ = V_X, V_X + 1
        a(f"v_mov_b32 v{vx}, 0")
        for i in range(n): a(f"v_writelane_b32 v{vx}, s{S_ST+2*i}, {i}")
        a(f"s_getreg_b32 s{S_T1}, hwreg(HW_REG_HW_ID)")
        a(f"v_writelane_b32 v{vx}, s{S_T1}, 14")
        a(f"s_getreg_b32 s{S_T1}, hwreg(HW_REG_XCC_ID)")
        a(f"v_writelane_b32 v{vx}, s{S_T1}, 15")
        a(f"s_mul_i32 s{S_T1}, s{S_WG}, {NW}")
        a(f"s_add_u32 s{S_T1}, s{S_T1}, s{S_WAVE}")
        a(f"s_lshl_b32 s{S_T1}, s{S_T1}, 6")
        a(f"s_add_u32 s{S_T1}, s{S_T1}, 0x8000000")
        a(f"v_lshl_add_u32 v{va_}, v{V_LANE}, 2, s{S_T1}")
        a("s_mov_b64 exec, 0xffff")
        a(f"global_store_dword v{va_}, v{vx}, {sr(S_WS,2)}")

    hdr = open("cdna_kernels/" + KNAME + ".s.ref").read().split("\n")
    out = []
    for l in hdr:
        if l.startswith("; @launch"):
            out.append(f"; @launch grid=(256,1,1) block=({NW*64},1,1) lds={lds}")
            break
        out.append(l)
    head = "\n".join(out) + "\n"
    head += f""".amdgcn_target "amdgcn-amd-amdhsa--gfx950"
.text
.globl {KNAME}_kernel
.p2align 8
.type {KNAME}_kernel,@function
{KNAME}_kernel:
"""
    L = V_LANE
    t0, t1, t2, t3 = V_T, V_T + 1, V_T + 2, V_T + 3
    a(f"s_cmp_ge_u32 s{S_WG}, 256")
    a("s_cbranch_scc1 L_end")
    stamp(0)
    a("s_load_dwordx16 s[4:19], s[0:1], 0")
    a("s_load_dwordx4 s[20:23], s[0:1], 64")
    a(f"v_lshrrev_b32 v{t0}, 6, v0")
    a(f"v_and_b32 v{L}, 63, v0")
    a(f"v_readfirstlane_b32 s{S_WAVE}, v{t0}")
    a(f"v_and_b32 v{t0}, 3, v{L}")
    a(f"v_lshrrev_b32 v{t1}, 4, v{L}")
    a(f"v_bfe_u32 v{t2}, v{L}, 2, 2")
    a(f"v_lshlrev_b32 v{V_OFFK}, 4, v{t0}")
    a(f"v_lshl_or_b32 v{V_OFFK}, v{t1}, 6, v{V_OFFK}")
    a(f"v_lshl_or_b32 v{V_OFFK}, v{t2}, 9, v{V_OFFK}")
    a(f"v_lshlrev_b32 v{V_OFFV}, 4, v{L}")
    a(f"s_lshl_b32 s{S_T0}, s{S_WG}, 18")
    a(f"s_lshl_b32 s{S_T1}, s{S_WAVE}, 11")
    a(f"s_add_u32 s{S_BASE}, s{S_T0}, s{S_T1}")
    a(f"s_lshr_b32 s{S_PAIR}, s{S_WG}, 3")
    a(f"s_and_b32 s{S_CHUNK}, s{S_WG}, 7")
    vq, vks, vkz, vsc = V_T + 4, V_T + 5, V_T + 6, V_VSOFF
    a(f"v_lshlrev_b32 v{vks}, 5, v{t1}")
    a(f"v_lshl_or_b32 v{vkz}, v{t0}, 3, v{vks}")
    a(f"v_lshl_or_b32 v{vks}, v{t2}, 3, v{vks}")
    a(f"v_lshl_or_b32 v{vq}, v{t0}, 8, v{vks}")
    a(f"v_lshl_or_b32 v{vsc}, v{t2}, 2, v{t0}")
    a(f"v_mul_u32_u24 v{vsc}, {NW*8}, v{vsc}")
    a(f"v_lshl_or_b32 v{vsc}, v{t1}, 1, v{vsc}")
    a(f"s_lshl_b32 s{S_T1}, s{S_WAVE}, 3")
    a(f"v_add_u32 v{vsc}, s{S_T1}, v{vsc}")
    a("s_waitcnt lgkmcnt(0)")
    stamp(1)
    for srd, p in ((S_KSRD, S_QK), (S_VSRD, S_QV)):
        a(f"s_mov_b32 s{srd}, s{p}")
        a(f"s_and_b32 s{srd+1}, s{p+1}, 0xffff")
        a(f"s_mov_b32 s{srd+2}, 0x4000000")
        a(f"s_mov_b32 s{srd+3}, 0x20000")

    def slot(n): return V_RING + 4 * (n % G)
    def issue_big(n):
        if n >= 2 * NL: return
        isK = n < NL
        m = n if isK else n - NL
        piece, sub = m // 2, m % 2
        if sub == 0:
            a(f"s_add_u32 s{S_RUN}, s{S_BASE}, {piece*NW*2048}")
        if isK:
            a(f"buffer_load_dwordx4 {vr(slot(n),4)}, v{V_OFFK}, {sr(S_KSRD,4)}, s{S_RUN} offen offset:{sub*256}{NT}")
        else:
            a(f"buffer_load_dwordx4 {vr(slot(n),4)}, v{V_OFFV}, {sr(S_VSRD,4)}, s{S_RUN} offen offset:{sub*1024}{NT}")
        issue(n)

    def optv(name, default):
        for o in opts:
            if o.startswith(name + "="): return int(o.split("=")[1])
        return default
    nfirst = min(G, optv("nfirst", 0))
    for n in range(nfirst): issue_big(n)
    late_v = optv("latev", -1)
    clr_step = optv("clr", -1)
    a(f"s_lshl_b32 s{S_T0}, s{S_PAIR}, 10")
    a(f"s_add_u32 s{S_Q}, s{S_Q}, s{S_T0}")
    a(f"s_addc_u32 s{S_Q+1}, s{S_Q+1}, 0")
    a(f"s_lshr_b32 s{S_T0}, s{S_WG}, 2")
    a(f"s_lshl_b32 s{S_T0}, s{S_T0}, 8")
    for p in (S_KS, S_KZ):
        a(f"s_add_u32 s{p}, s{p}, s{S_T0}")
        a(f"s_addc_u32 s{p+1}, s{p+1}, 0")
    a(f"s_lshl_b32 s{S_T0}, s{S_WG}, 10")
    for p in (S_VS, S_VZ):
        a(f"s_add_u32 s{p}, s{p}, s{S_T0}")
        a(f"s_addc_u32 s{p+1}, s{p+1}, 0")
    a(f"global_load_dwordx2 {vr(V_Q,2)}, v{vq}, {sr(S_Q,2)}")
    a(f"global_load_dwordx2 {vr(V_Q+2,2)}, v{vq}, {sr(S_Q,2)} offset:128")
    a(f"global_load_dwordx2 {vr(V_KSR,2)}, v{vks}, {sr(S_KS,2)}")
    a(f"global_load_dwordx2 {vr(V_KSR+2,2)}, v{vks}, {sr(S_KS,2)} offset:128")
    a(f"global_load_dwordx2 {vr(V_KZR,2)}, v{vkz}, {sr(S_KZ,2)}")
    a(f"global_load_dwordx2 {vr(V_KZR+2,2)}, v{vkz}, {sr(S_KZ,2)} offset:128")
    for t in ("q0", "q1", "ks0", "ks1", "kz0", "kz1"): issue(t)
    def load_vsz():
        for hh in range(NH):
            a(f"global_load_ushort v{V_VS+hh}, v{V_VSOFF}, {sr(S_VS,2)} offset:{hh*16*NW*8}"); issue(f"vs{hh}")
            a(f"global_load_ushort v{V_VZ+hh}, v{V_VSOFF}, {sr(S_VZ,2)} offset:{hh*16*NW*8}"); issue(f"vz{hh}")
    if late_v < 0: load_vsz()
    for n in range(nfirst, G): issue_big(n)
    a(f"s_lshl_b32 s{S_T0}, s{S_WG}, 12")
    a(f"s_add_u32 s{S_SLOT}, s{S_WS}, s{S_T0}")
    a(f"s_addc_u32 s{S_SLOT+1}, s{S_WS+1}, 0")
    a(f"s_lshl_b32 s{S_T0}, s{S_PAIR}, 15")
    a(f"s_add_u32 s{S_PSLOT}, s{S_WS}, s{S_T0}")
    a(f"s_addc_u32 s{S_PSLOT+1}, s{S_WS+1}, 0")
    a(f"s_lshl_b32 s{S_T0}, s{S_PAIR}, 3")
    a(f"s_add_u32 s{S_CNT}, s{S_DBG}, s{S_T0}")
    a(f"s_addc_u32 s{S_CNT+1}, s{S_DBG+1}, 0")
    def poison():
        a(f"s_cmp_lg_u32 s{S_WAVE}, 0")
        a("s_cbranch_scc1 L_noclear")
        z = V_PA
        for i in range(4): a(f"v_mov_b32 v{z+i}, -1")
        a(f"global_store_dwordx4 v{V_OFFV}, {vr(z,4)}, {sr(S_SLOT,2)} sc1")
        a(f"global_store_dwordx4 v{V_OFFV}, {vr(z,4)}, {sr(S_SLOT,2)} offset:1024 sc1")
        a(f"global_store_dwordx4 v{V_OFFV}, {vr(z,4)}, {sr(S_SLOT,2)} offset:2048 sc1")
        a("L_noclear:")
    if clr_step < 0: poison()
    a(f"v_lshrrev_b32 v{V_PADDR}, 5, v{L}")
    a(f"v_lshlrev_b32 v{V_PADDR}, 7, v{V_PADDR}")
    a(f"v_lshl_or_b32 v{V_PADDR}, v{t0}, 3, v{V_PADDR}")
    a(f"s_mul_i32 s{S_T1}, s{S_WAVE}, {NH*1024}")
    a(f"v_add_u32 v{V_PADDR}, s{S_T1}, v{V_PADDR}")

    wait_for(["q0", "q1", "ks0", "ks1", "kz0", "kz1"])
    stamp(2)
    a(f"s_mov_b32 s{S_T0}, 0x{Cbits:08x}")
    a(f"s_mov_b32 s{S_T1}, 0xffff0000")
    x0, x1, y0, y1 = V_T, V_T + 1, V_T + 2, V_T + 3
    for n in range(4):
        a(f"v_lshlrev_b32 v{x0}, 16, v{V_Q+n}")
        a(f"v_and_b32 v{x1}, s{S_T1}, v{V_Q+n}")
        a(f"v_lshlrev_b32 v{y0}, 16, v{V_KSR+n}")
        a(f"v_and_b32 v{y1}, s{S_T1}, v{V_KSR+n}")
        a(f"v_mul_f32 v{x0}, v{x0}, v{y0}")
        a(f"v_mul_f32 v{x1}, v{x1}, v{y1}")
        a(f"v_mul_f32 v{x0}, s{S_T0}, v{x0}")
        a(f"v_mul_f32 v{x1}, s{S_T0}, v{x1}")
        a(f"v_cvt_pk_bf16_f32 v{V_BHI+n}, v{x0}, v{x1}")
        a(f"v_lshlrev_b32 v{y0}, 16, v{V_BHI+n}")
        a(f"v_and_b32 v{y1}, s{S_T1}, v{V_BHI+n}")
        a(f"v_sub_f32 v{x0}, v{x0}, v{y0}")
        a(f"v_sub_f32 v{x1}, v{x1}, v{y1}")
        a(f"v_cvt_pk_bf16_f32 v{V_BLO+n}, v{x0}, v{x1}")
    a("s_nop 1")
    D0 = V_D
    a(f"v_mfma_f32_16x16x32_bf16 {vr(D0,4)}, {vr(V_KZR,4)}, {vr(V_BHI,4)}, 0")
    a(f"v_mfma_f32_16x16x32_bf16 {vr(D0,4)}, {vr(V_KZR,4)}, {vr(V_BLO,4)}, {vr(D0,4)}")
    a("s_nop 7")
    for c in range(4):
        a(f"v_mov_b32_dpp v{V_NEGC}, v{D0+c} quad_perm:[0,1,2,3] row_mask:0xf bank_mask:0x{1<<c:x}")
    a("s_nop 1")
    a(f"v_add_f32_dpp v{V_NEGC}, v{V_NEGC}, v{V_NEGC} row_ror:4 row_mask:0xf bank_mask:0xf")
    a("s_nop 1")
    a(f"v_add_f32_dpp v{V_NEGC}, v{V_NEGC}, v{V_NEGC} row_ror:8 row_mask:0xf bank_mask:0xf")
    a(f"v_sub_f32 v{V_NEGC}, 0, v{V_NEGC}")

    def extract(s):
        hh, b, g = s // 16, (s // 4) % 4, s % 4
        D = V_D + 4 * (s % 4)
        first = True
        for c in range(4):
            rot = (4 * (b - c)) % 16
            ctl = f"row_ror:{rot}" if rot else "quad_perm:[0,1,2,3]"
            dst = V_S + 4 * hh + g
            src1 = V_NEGC if first else dst
            a(f"v_add_f32_dpp v{dst}, v{D+c}, v{src1} {ctl} row_mask:0xf bank_mask:0x{1<<b:x}")
            first = False
    pend = None
    for s in range(NP):
        n0, n1 = 2 * s, 2 * s + 1
        PK = V_PK + 4 * (s % 2)
        wait_for([n0, n1])
        if s == 0: stamp(3)
        for n in (n0, n1):
            for r in range(4): a(f"v_cvt_f32_i32 v{slot(n)+r}, v{slot(n)+r}")
        for jj, n in enumerate((n0, n1)):
            a(f"v_cvt_pk_bf16_f32 v{PK+2*jj}, v{slot(n)}, v{slot(n)+1}")
            a(f"v_cvt_pk_bf16_f32 v{PK+2*jj+1}, v{slot(n)+2}, v{slot(n)+3}")
        issue_big(n0 + G); issue_big(n1 + G)
        D = V_D + 4 * (s % 4)
        a(f"v_mfma_f32_16x16x32_bf16 {vr(D,4)}, {vr(PK,4)}, {vr(V_BHI,4)}, 0")
        a(f"v_mfma_f32_16x16x32_bf16 {vr(D,4)}, {vr(PK,4)}, {vr(V_BLO,4)}, {vr(D,4)}")
        if pend is not None: extract(pend)
        if s == 1:
            pass
        pend = s
        if s == late_v: load_vsz()
        if s == clr_step: poison()
        if s == max(clr_step, 0) + G // 2 + 1:
            a(f"s_cmp_lg_u32 s{S_WAVE}, 0")
            a("s_cbranch_scc1 L_nocount")
            a(f"v_mov_b32 v{t0}, 0")
            a(f"v_mov_b32 v{t1}, 1")
            a(f"s_mov_b64 {sr(S_EX,2)}, exec")
            a("s_mov_b64 exec, 1")
            a(f"global_atomic_add v{t0}, v{t1}, {sr(S_CNT,2)} sc1")
            a(f"s_mov_b64 exec, {sr(S_EX,2)}")
            a("L_nocount:")
    a("s_nop 7")
    extract(pend)
    stamp(4)

    S = V_S
    NS = 4 * NH
    a(f"v_max3_f32 v{V_M}, v{S}, v{S+1}, v{S+2}")
    i = 3
    while i < NS:
        if i + 1 < NS:
            a(f"v_max3_f32 v{V_M}, v{V_M}, v{S+i}, v{S+i+1}"); i += 2
        else:
            a(f"v_max_f32 v{V_M}, v{V_M}, v{S+i}"); i += 1
    def allred(reg, op, tmp):
        a("s_nop 1")
        a(f"{op}_dpp v{reg}, v{reg}, v{reg} row_ror:4 row_mask:0xf bank_mask:0xf")
        a("s_nop 1")
        a(f"{op}_dpp v{reg}, v{reg}, v{reg} row_ror:8 row_mask:0xf bank_mask:0xf")
        a(f"v_mov_b32 v{tmp}, v{reg}")
        a("s_nop 1")
        a(f"v_permlane16_swap_b32 v{tmp}, v{reg}")
        a(f"{op} v{reg}, v{reg}, v{tmp}")
        a(f"v_mov_b32 v{tmp}, v{reg}")
        a("s_nop 1")
        a(f"v_permlane32_swap_b32 v{tmp}, v{reg}")
        a(f"{op} v{reg}, v{reg}, v{tmp}")
    allred(V_M, "v_max_f32", t0)
    for g in range(NS): a(f"v_sub_f32 v{S+g}, v{S+g}, v{V_M}")
    for g in range(NS): a(f"v_exp_f32 v{S+g}, v{S+g}")
    wait_for([f"vs{h}" for h in range(NH)] + [f"vz{h}" for h in range(NH)])
    for hh in range(NH):
        a(f"v_lshlrev_b32 v{V_VS+hh}, 16, v{V_VS+hh}")
        a(f"v_lshlrev_b32 v{V_VZ+hh}, 16, v{V_VZ+hh}")
    a(f"v_add_f32 v{V_L}, v{S}, v{S+1}")
    for g in range(2, NS): a(f"v_add_f32 v{V_L}, v{V_L}, v{S+g}")
    for hh in range(NH):
        for g in range(4):
            a(f"v_mul_f32_dpp v{S+4*hh+g}, v{V_VS+hh}, v{S+4*hh+g} quad_perm:[{g},{g},{g},{g}] row_mask:0xf bank_mask:0xf")
    a(f"s_mov_b32 s{S_T1}, 0xffff0000")
    a(f"s_mul_i32 s{S_T0}, s{S_WAVE}, {NH*1024}")
    a(f"v_lshl_add_u32 v{t1}, v{L}, 3, s{S_T0}")
    u = V_T + 4
    hi, lo = V_PA, V_PA + 2
    for hh in range(NH):
        Sh = S + 4 * hh
        hi, lo = V_PA + 4 * hh, V_PA + 4 * hh + 2
        a(f"v_cvt_pk_bf16_f32 v{hi}, v{Sh}, v{Sh+1}")
        a(f"v_cvt_pk_bf16_f32 v{hi+1}, v{Sh+2}, v{Sh+3}")
        a(f"v_lshlrev_b32 v{u}, 16, v{hi}")
        a(f"v_and_b32 v{u+1}, s{S_T1}, v{hi}")
        a(f"v_lshlrev_b32 v{u+2}, 16, v{hi+1}")
        a(f"v_and_b32 v{u+3}, s{S_T1}, v{hi+1}")
        a(f"ds_write_b64 v{t1}, {vr(hi,2)} offset:{LDS_P+hh*1024}")
        if use_lo:
            for g in range(4): a(f"v_sub_f32 v{Sh+g}, v{Sh+g}, v{u+g}")
            a(f"v_cvt_pk_bf16_f32 v{lo}, v{Sh}, v{Sh+1}")
            a(f"v_cvt_pk_bf16_f32 v{lo+1}, v{Sh+2}, v{Sh+3}")
            a(f"ds_write_b64 v{t1}, {vr(lo,2)} offset:{LDS_P+hh*1024+512}")
            a(f"v_lshlrev_b32 v{Sh}, 16, v{lo}")
            a(f"v_and_b32 v{Sh+1}, s{S_T1}, v{lo}")
            a(f"v_lshlrev_b32 v{Sh+2}, 16, v{lo+1}")
            a(f"v_and_b32 v{Sh+3}, s{S_T1}, v{lo+1}")
            for g in range(4): a(f"v_add_f32 v{Sh+g}, v{Sh+g}, v{u+g}")
        else:
            for g in range(4): a(f"v_mov_b32 v{Sh+g}, v{u+g}")
        if hh == 0:
            a(f"v_mul_f32_dpp v{V_CZ}, v{V_VZ+hh}, v{Sh} quad_perm:[0,0,0,0] row_mask:0xf bank_mask:0xf")
        else:
            a(f"v_fmac_f32_dpp v{V_CZ}, v{V_VZ+hh}, v{Sh} quad_perm:[0,0,0,0] row_mask:0xf bank_mask:0xf")
        for g in range(1, 4):
            a(f"v_fmac_f32_dpp v{V_CZ}, v{V_VZ+hh}, v{Sh+g} quad_perm:[{g},{g},{g},{g}] row_mask:0xf bank_mask:0xf")
    allred(V_L, "v_add_f32", t0)
    allred(V_CZ, "v_add_f32", t0)
    for i in range(16): a(f"v_mov_b32 v{V_ACC+i}, 0")
    if "warmout" in opts:
        a(f"s_cmp_lg_u32 s{S_CHUNK}, 7")
        a("s_cbranch_scc1 L_nowarm")
        a(f"v_mov_b32 v{t0}, 0")
        a(f"global_load_dword v{V_X}, v{t0}, {sr(S_OUT,2)}")
        a("L_nowarm:")
    a(f"v_mov_b32 v{V_CNT}, 8")
    a(f"s_cmp_lg_u32 s{S_CHUNK}, 7")
    a("s_cbranch_scc1 L_nocntload")
    a(f"v_mov_b32 v{t0}, 0")
    a(f"global_load_dword v{V_CNT}, v{t0}, {sr(S_CNT,2)} sc1")
    a("L_nocntload:")
    a(f"v_mul_u32_u24 v{t1}, {NW*8}, v{L}")
    a(f"s_lshl_b32 s{S_T0}, s{S_WAVE}, 3")
    a(f"v_add_u32 v{t1}, s{S_T0}, v{t1}")
    a(f"s_mov_b64 {sr(S_EX,2)}, exec")
    a("s_mov_b64 exec, 0xf")
    a(f"ds_write_b32 v{t1}, v{V_M} offset:{LDS_STAT}")
    a(f"ds_write_b32 v{t1}, v{V_L} offset:{LDS_STAT+4}")
    a(f"s_mov_b64 exec, {sr(S_EX,2)}")
    a("s_waitcnt lgkmcnt(0)")
    stamp(5)

    def pa_read(unit, sub):
        hh, b = unit // 4, unit % 4
        P = V_PA + 4 * sub
        off = LDS_P + hh * 1024 + 256 * sub + 32 * b
        a(f"ds_read_b64 {vr(P,2)}, v{V_PADDR} offset:{off}")
        if use_lo: a(f"ds_read_b64 {vr(P+2,2)}, v{V_PADDR} offset:{off+512}")
    nP = 2 if use_lo else 1
    NU = 4 * NH
    for unit in range(NU):
        base = NL + 8 * unit
        pa_read(unit, 0); pa_read(unit, 1)
        for kp in range(2):
            ns = [base + 4 * kp + i for i in range(4)]
            wait_for(ns)
            for n in ns:
                for r in range(4): a(f"v_cvt_f32_i32 v{slot(n)+r}, v{slot(n)+r}")
            for sub in range(2):
                for r in range(4):
                    a(f"v_cvt_pk_bf16_f32 v{V_PK+8*sub+2*r+kp}, v{slot(ns[sub])+r}, v{slot(ns[2+sub])+r}")
            for n in ns: issue_big(n + G)
        a("s_waitcnt lgkmcnt(0)")
        a("s_nop 0")
        for sub in range(2):
            P = V_PA + 4 * sub
            for r in range(4):
                a(f"v_mfma_f32_4x4x4_16b_bf16 {vr(V_ACC+4*r,4)}, {vr(P,2)}, {vr(V_PK+8*sub+2*r,2)}, {vr(V_ACC+4*r,4)}")
            if use_lo:
                for r in range(4):
                    a(f"v_mfma_f32_4x4x4_16b_bf16 {vr(V_ACC+4*r,4)}, {vr(P+2,2)}, {vr(V_PK+8*sub+2*r,2)}, {vr(V_ACC+4*r,4)}")
    stamp(6)

    a("s_nop 4")
    for i in range(4):
        a(f"v_permlane32_swap_b32 v{V_ACC+i}, v{V_ACC+8+i}")
        a(f"v_permlane32_swap_b32 v{V_ACC+4+i}, v{V_ACC+12+i}")
    X = V_PK
    for i in range(4):
        a(f"v_add_f32 v{X+2*i}, v{V_ACC+i}, v{V_ACC+8+i}")
        a(f"v_add_f32 v{X+2*i+1}, v{V_ACC+4+i}, v{V_ACC+12+i}")
    for i in range(4):
        a(f"v_subrev_f32_dpp v{X+2*i}, v{V_CZ}, v{X+2*i} quad_perm:[{i},{i},{i},{i}] row_mask:0xf bank_mask:0xf")
        a(f"v_subrev_f32_dpp v{X+2*i+1}, v{V_CZ}, v{X+2*i+1} quad_perm:[{i},{i},{i},{i}] row_mask:0xf bank_mask:0xf")
    a(f"s_lshl_b32 s{S_T0}, s{S_WAVE}, 11")
    a(f"v_lshl_add_u32 v{t1}, v{L}, 3, s{S_T0}")
    for i in range(4):
        a(f"ds_write_b64 v{t1}, {vr(X+2*i,2)} offset:{LDS_RED+512*i}")
    a("s_waitcnt lgkmcnt(0)")
    a("s_barrier")
    stamp(7)
    if NW > 4:
        a(f"s_cmp_ge_u32 s{S_WAVE}, 4")
        a("s_cbranch_scc1 L_fin0" if stamps else "s_cbranch_scc1 L_end")
    Y = V_RING
    a(f"s_lshl_b32 s{S_T0}, s{S_WAVE}, 9")
    a(f"v_lshl_add_u32 v{t1}, v{L}, 3, s{S_T0}")
    a(f"v_and_b32 v{t2}, {NW-1}, v{L}")
    a(f"s_mul_i32 s{S_T0}, s{S_WAVE}, {NW*8}")
    a(f"v_lshl_add_u32 v{t2}, v{t2}, 3, s{S_T0}")
    ST = V_PK + 8
    a(f"ds_read_b64 {vr(ST,2)}, v{t2} offset:{LDS_STAT}")
    for w in range(NW):
        a(f"ds_read_b64 {vr(Y+2*w,2)}, v{t1} offset:{LDS_RED+2048*w}")
    def redn(n, reg, op, src=None):
        src = reg if src is None else src
        r = n // 2
        first = True
        while r >= 1:
            if not first: a("s_nop 1")
            s_ = src if first else reg
            a(f"{op}_dpp v{reg}, v{s_}, v{s_} row_ror:{r} row_mask:0xf bank_mask:0xf")
            first = False
            r //= 2
    al = t3
    O0, O1 = V_S, V_S + 1
    def weights(n, norm):
        redn(n, V_M, "v_max_f32", ST)
        a(f"v_sub_f32 v{al}, v{ST}, v{V_M}")
        a(f"v_exp_f32 v{al}, v{al}")
        a(f"v_mov_b32 v{O0}, 0")
        a(f"v_mul_f32 v{V_L}, v{al}, v{ST+1}")
        a(f"v_mov_b32 v{O1}, 0")
        a("s_nop 0")
        redn(n, V_L, "v_add_f32")
        if norm:
            a(f"v_rcp_f32 v{t0}, v{V_L}")
            a("s_nop 0")
            a(f"v_mul_f32 v{al}, v{al}, v{t0}")
            a("s_nop 1")
    def accumulate(n):
        for w in range(n):
            a(f"v_fmac_f32_dpp v{O0}, v{al}, v{Y+2*w} row_newbcast:{w} row_mask:0xf bank_mask:0xf")
            a(f"v_fmac_f32_dpp v{O1}, v{al}, v{Y+2*w+1} row_newbcast:{w} row_mask:0xf bank_mask:0xf")
    a(f"s_waitcnt lgkmcnt({NW})")
    weights(NW, False)
    a("s_waitcnt lgkmcnt(0)")
    accumulate(NW)
    a(f"v_min_u32 v{O0}, -2, v{O0}")
    a(f"v_min_u32 v{O1}, -2, v{O1}")
    ML = V_S + 2
    a(f"v_min_u32 v{ML}, -2, v{V_M}")
    a(f"v_min_u32 v{ML+1}, -2, v{V_L}")
    a(f"global_store_dwordx2 v{t1}, {vr(O0,2)}, {sr(S_SLOT,2)} sc1")
    a(f"s_lshl_b32 s{S_T0}, s{S_WAVE}, 3")
    a(f"v_mov_b32 v{t0}, s{S_T0}")
    a(f"s_mov_b64 {sr(S_EX,2)}, exec")
    a("s_mov_b64 exec, 1")
    a(f"global_store_dwordx2 v{t0}, {vr(ML,2)}, {sr(S_SLOT,2)} offset:2048 sc1")
    a(f"s_mov_b64 exec, {sr(S_EX,2)}")
    stamp(8)
    a(f"s_cmp_lg_u32 s{S_CHUNK}, 7")
    a("s_cbranch_scc1 L_fin0" if stamps else "s_cbranch_scc1 L_end")
    a(f"s_mov_b32 s{S_SPIN}, {spin}")
    a("L_cntloop:")
    a(f"v_cmp_gt_u32 vcc, 8, v{V_CNT}")
    a("s_cbranch_vccz L_cntok")
    a(f"s_sub_u32 s{S_SPIN}, s{S_SPIN}, 1")
    a("s_cbranch_scc1 L_end")
    a(f"v_mov_b32 v{t0}, 0")
    a(f"global_load_dword v{V_CNT}, v{t0}, {sr(S_CNT,2)} sc1")
    a("s_waitcnt vmcnt(0)")
    a("s_branch L_cntloop")
    a("L_cntok:")
    a(f"v_and_b32 v{t2}, 7, v{L}")
    a(f"v_lshlrev_b32 v{t2}, 12, v{t2}")
    a(f"v_add_u32 v{t2}, s{S_T0}, v{t2}")
    va = V_PK
    for c in range(8): a(f"v_add_u32 v{va+c}, {c*4096}, v{t1}")
    a("L_poll:")
    a(f"global_load_dwordx2 {vr(ST,2)}, v{t2}, {sr(S_PSLOT,2)} offset:2048 sc1")
    for c in range(8):
        a(f"global_load_dwordx2 {vr(Y+2*c,2)}, v{va+c}, {sr(S_PSLOT,2)} sc1")
    a("s_waitcnt vmcnt(0)")
    a(f"v_max3_u32 v{t0}, v{ST}, v{ST+1}, v{Y}")
    for i in range(1, 15, 2): a(f"v_max3_u32 v{t0}, v{t0}, v{Y+i}, v{Y+i+1}")
    a(f"v_max_u32 v{t0}, v{t0}, v{Y+15}")
    a(f"v_cmp_eq_u32 vcc, -1, v{t0}")
    a("s_cbranch_vccz L_ready")
    a(f"s_sub_u32 s{S_SPIN}, s{S_SPIN}, 1")
    a("s_cbranch_scc0 L_poll")
    a("s_branch L_end")
    a("L_ready:")
    stamp(9)
    weights(8, True)
    accumulate(8)
    a(f"v_cvt_pk_bf16_f32 v{t0}, v{O0}, v{O1}")
    a(f"v_and_b32 v{t2}, 31, v{L}")
    a(f"v_lshlrev_b32 v{t2}, 3, v{t2}")
    a(f"v_lshrrev_b32 v{t3}, 5, v{L}")
    a(f"v_lshl_or_b32 v{t2}, v{t3}, 2, v{t2}")
    a(f"s_lshl_b32 s{S_T0}, s{S_PAIR}, 10")
    a(f"s_lshl_b32 s{S_T1}, s{S_WAVE}, 8")
    a(f"s_add_u32 s{S_T0}, s{S_T0}, s{S_T1}")
    a(f"v_add_u32 v{t2}, s{S_T0}, v{t2}")
    a(f"global_store_dword v{t2}, v{t0}, {sr(S_OUT,2)}")
    if stamps and optv("amp", 0):
        stamp(10)
        a("s_waitcnt lgkmcnt(0)")
        K_, ia, ib = optv("amp", 0), optv("ampa", 0), optv("ampb", 10)
        a(f"s_sub_u32 s{S_T0}, s{S_ST+2*ib}, s{S_ST+2*ia}")
        a(f"s_min_u32 s{S_T0}, s{S_T0}, 20000")
        a(f"s_mul_i32 s{S_T0}, s{S_T0}, {K_}")
        a(f"s_add_u32 s{S_T0}, s{S_T0}, s{S_ST+20}")
        a("L_amp:")
        a(f"s_memrealtime s[{S_ST+22}:{S_ST+23}]")
        a("s_waitcnt lgkmcnt(0)")
        a(f"s_sub_u32 s{S_T1}, s{S_ST+22}, s{S_T0}")
        a(f"s_cmp_lt_i32 s{S_T1}, 0")
        a("s_cbranch_scc1 L_amp")
        a("L_fin0:")
    elif stamps:
        stamp(10)
        a("L_fin0:")
        flush_stamps(11)
    a("L_end:")
    a("s_endpgm")
    tail = f""".section .rodata,"a"
.p2align 6
.amdhsa_kernel {KNAME}_kernel
  .amdhsa_next_free_vgpr {NV}
  .amdhsa_next_free_sgpr {96 if stamps else 72}
  .amdhsa_accum_offset {(NV+3)//4*4}
  .amdhsa_group_segment_fixed_size 0
  .amdhsa_kernarg_size 80
  .amdhsa_user_sgpr_count 2
  .amdhsa_user_sgpr_kernarg_segment_ptr 1
  .amdhsa_system_sgpr_workgroup_id_x 1
  .amdhsa_float_denorm_mode_32 3
.end_amdhsa_kernel
"""
    return head + a.text() + tail, lds

if __name__ == "__main__":
    ap = argparse.ArgumentParser()
    ap.add_argument("--nw", type=int, default=4)
    ap.add_argument("-G", type=int, default=16)
    ap.add_argument("--no-nt", action="store_true")
    ap.add_argument("--lds", type=int, default=0)
    ap.add_argument("--stamps", action="store_true")
    ap.add_argument("--opt", action="append", default=[])
    ap.add_argument("-o", default="cdna_kernels/" + KNAME + ".s")
    args = ap.parse_args()
    s, lds = gen(NW=args.nw, G=args.G, nt=not args.no_nt, lds_force=args.lds, stamps=args.stamps, opts=args.opt)
    open(args.o, "w").write(s)
    print(lds)
```

```python
import sys, math, argparse, struct

KNAME = "standalone__kv_cache_quant_int4_int2_kv_with_per_channel_or_per_token_scales__decode"

class Asm:
    def __init__(self): self.lines = []
    def __call__(self, s=""):
        s = s.strip()
        self.lines.append(s if s.endswith(":") else "    " + s)
    def text(self): return "\n".join(self.lines) + "\n"

def vr(a, n=1): return f"v{a}" if n == 1 else f"v[{a}:{a+n-1}]"
def sr(a, n=1): return f"s{a}" if n == 1 else f"s[{a}:{a+n-1}]"
def f32bits(x): return struct.unpack("<I", struct.pack("<f", x))[0]

def gen(NW=4, G=16, nt=True, lds_force=0, spin=1 << 16, stamps=False, opts=()):
    a = Asm()
    NH = 8 // NW
    NP = 16 * NH
    NL = 2 * NP
    NT = " nt" if nt else ""
    use_lo = "nolo" not in opts
    S_WG = 2; S_WAVE = 3
    S_Q, S_QK, S_QV, S_KS, S_KZ, S_VS, S_VZ, S_OUT = 4, 6, 8, 10, 12, 14, 16, 18
    S_DBG, S_WS = 20, 22
    S_KSRD = 24; S_VSRD = 28
    S_BASE = 32
    S_RUN = 33
    S_PAIR = 40; S_CHUNK = 41; S_T0 = 42; S_T1 = 43
    S_SLOT = 44; S_PSLOT = 46; S_CNT = 48
    S_SPIN = 52
    S_LIN = 53
    S_EX = 64
    S_ST = 70
    V_LANE = 0; V_OFFK = 1; V_OFFV = 2
    V_T = 3
    V_BHI = 12; V_BLO = 16
    V_NEGC = 20; V_PADDR = 21; V_CNT = 22
    V_M = 23; V_L = 24; V_CZ = 25
    V_S = 26
    V_VS = 34
    V_VZ = 36
    V_PK = 38
    V_D = 54
    V_ACC = 54
    V_PA = 70
    V_X = 78
    V_VSOFF = 11
    V_RING = 80
    NV = V_RING + 4 * G
    NV = max(NV, V_RING + 24)
    assert NV <= 256
    V_Q = 38; V_KSR = 42; V_KZR = 46

    LDS_P = 0
    LDS_RED = NW * NH * 1024
    LDS_STAT = LDS_RED + NW * 2048
    LDS_TOTAL = LDS_STAT + 4 * NW * 8
    lds = max(LDS_TOTAL, lds_force)
    Cbits = f32bits((128 ** -0.5) * math.log2(math.e))

    queue = []
    def issue(tag): queue.append(tag)
    def wait_for(tags):
        idx = max((queue.index(t) for t in tags if t in queue), default=-1)
        if idx < 0: return
        n = len(queue) - 1 - idx
        assert n <= 63
        a(f"s_waitcnt vmcnt({n})")
        del queue[:idx + 1]

    def stamp(i):
        if stamps: a(f"s_memrealtime s[{S_ST+2*i}:{S_ST+2*i+1}]")
    def flush_stamps(n):
        a("s_waitcnt lgkmcnt(0)")
        vx, va_ = V_X, V_X + 1
        a(f"v_mov_b32 v{vx}, 0")
        for i in range(n): a(f"v_writelane_b32 v{vx}, s{S_ST+2*i}, {i}")
        a(f"s_getreg_b32 s{S_T1}, hwreg(HW_REG_HW_ID)")
        a(f"v_writelane_b32 v{vx}, s{S_T1}, 14")
        a(f"s_getreg_b32 s{S_T1}, hwreg(HW_REG_XCC_ID)")
        a(f"v_writelane_b32 v{vx}, s{S_T1}, 15")
        a(f"s_mul_i32 s{S_T1}, s{S_WG}, {NW}")
        a(f"s_add_u32 s{S_T1}, s{S_T1}, s{S_WAVE}")
        a(f"s_lshl_b32 s{S_T1}, s{S_T1}, 6")
        a(f"s_add_u32 s{S_T1}, s{S_T1}, 0x8000000")
        a(f"v_lshl_add_u32 v{va_}, v{V_LANE}, 2, s{S_T1}")
        a("s_mov_b64 exec, 0xffff")
        a(f"global_store_dword v{va_}, v{vx}, {sr(S_WS,2)}")

    hdr = open("cdna_kernels/" + KNAME + ".s.ref").read().split("\n")
    out = []
    for l in hdr:
        if l.startswith("; @launch"):
            out.append(f"; @launch grid=(256,1,1) block=({NW*64},1,1) lds={lds}")
            break
        out.append(l)
    head = "\n".join(out) + "\n"
    head += f""".amdgcn_target "amdgcn-amd-amdhsa--gfx950"
.text
.globl {KNAME}_kernel
.p2align 8
.type {KNAME}_kernel,@function
{KNAME}_kernel:
"""
    L = V_LANE
    t0, t1, t2, t3 = V_T, V_T + 1, V_T + 2, V_T + 3
    a(f"s_cmp_ge_u32 s{S_WG}, 256")
    a("s_cbranch_scc1 L_end")
    stamp(0)
    a("s_load_dwordx16 s[4:19], s[0:1], 0")
    a("s_load_dwordx4 s[20:23], s[0:1], 64")
    a(f"v_lshrrev_b32 v{t0}, 6, v0")
    a(f"v_and_b32 v{L}, 63, v0")
    a(f"v_readfirstlane_b32 s{S_WAVE}, v{t0}")
    a(f"v_and_b32 v{t0}, 3, v{L}")
    a(f"v_lshrrev_b32 v{t1}, 4, v{L}")
    a(f"v_bfe_u32 v{t2}, v{L}, 2, 2")
    a(f"v_lshlrev_b32 v{V_OFFK}, 4, v{t0}")
    a(f"v_lshl_or_b32 v{V_OFFK}, v{t1}, 6, v{V_OFFK}")
    a(f"v_lshl_or_b32 v{V_OFFK}, v{t2}, 9, v{V_OFFK}")
    a(f"v_lshlrev_b32 v{V_OFFV}, 4, v{L}")
    if "lin" in opts:
        a(f"s_lshr_b32 s{S_PAIR}, s{S_WG}, 3")
        a(f"s_and_b32 s{S_CHUNK}, s{S_WG}, 7")
    else:
        a(f"s_and_b32 s{S_PAIR}, s{S_WG}, 31")
        a(f"s_lshr_b32 s{S_CHUNK}, s{S_WG}, 5")
    a(f"s_lshl_b32 s{S_LIN}, s{S_PAIR}, 3")
    a(f"s_add_u32 s{S_LIN}, s{S_LIN}, s{S_CHUNK}")
    a(f"s_lshl_b32 s{S_T0}, s{S_LIN}, 18")
    a(f"s_lshl_b32 s{S_T1}, s{S_WAVE}, 11")
    a(f"s_add_u32 s{S_BASE}, s{S_T0}, s{S_T1}")
    vq, vks, vkz, vsc = V_T + 4, V_T + 5, V_T + 6, V_VSOFF
    a(f"v_lshlrev_b32 v{vks}, 5, v{t1}")
    a(f"v_lshl_or_b32 v{vkz}, v{t0}, 3, v{vks}")
    a(f"v_lshl_or_b32 v{vks}, v{t2}, 3, v{vks}")
    a(f"v_lshl_or_b32 v{vq}, v{t0}, 8, v{vks}")
    a(f"v_lshl_or_b32 v{vsc}, v{t2}, 2, v{t0}")
    a(f"v_mul_u32_u24 v{vsc}, {NW*8}, v{vsc}")
    a(f"v_lshl_or_b32 v{vsc}, v{t1}, 1, v{vsc}")
    a(f"s_lshl_b32 s{S_T1}, s{S_WAVE}, 3")
    a(f"v_add_u32 v{vsc}, s{S_T1}, v{vsc}")
    a("s_waitcnt lgkmcnt(0)")
    stamp(1)
    for srd, p in ((S_KSRD, S_QK), (S_VSRD, S_QV)):
        a(f"s_mov_b32 s{srd}, s{p}")
        a(f"s_and_b32 s{srd+1}, s{p+1}, 0xffff")
        a(f"s_mov_b32 s{srd+2}, 0x4000000")
        a(f"s_mov_b32 s{srd+3}, 0x20000")

    def slot(n): return V_RING + 4 * (n % G)
    def issue_big(n):
        if n >= 2 * NL: return
        isK = n < NL
        m = n if isK else n - NL
        piece, sub = m // 2, m % 2
        if sub == 0:
            a(f"s_add_u32 s{S_RUN}, s{S_BASE}, {piece*NW*2048}")
        if isK:
            a(f"buffer_load_dwordx4 {vr(slot(n),4)}, v{V_OFFK}, {sr(S_KSRD,4)}, s{S_RUN} offen offset:{sub*256}{NT}")
        else:
            a(f"buffer_load_dwordx4 {vr(slot(n),4)}, v{V_OFFV}, {sr(S_VSRD,4)}, s{S_RUN} offen offset:{sub*1024}{NT}")
        issue(n)

    def optv(name, default):
        for o in opts:
            if o.startswith(name + "="): return int(o.split("=")[1])
        return default
    nfirst = min(G, optv("nfirst", 0))
    for n in range(nfirst): issue_big(n)
    late_v = optv("latev", -1)
    clr_step = optv("clr", -1)
    a(f"s_lshl_b32 s{S_T0}, s{S_PAIR}, 10")
    a(f"s_add_u32 s{S_Q}, s{S_Q}, s{S_T0}")
    a(f"s_addc_u32 s{S_Q+1}, s{S_Q+1}, 0")
    a(f"s_lshr_b32 s{S_T0}, s{S_LIN}, 2")
    a(f"s_lshl_b32 s{S_T0}, s{S_T0}, 8")
    for p in (S_KS, S_KZ):
        a(f"s_add_u32 s{p}, s{p}, s{S_T0}")
        a(f"s_addc_u32 s{p+1}, s{p+1}, 0")
    a(f"s_lshl_b32 s{S_T0}, s{S_LIN}, 10")
    for p in (S_VS, S_VZ):
        a(f"s_add_u32 s{p}, s{p}, s{S_T0}")
        a(f"s_addc_u32 s{p+1}, s{p+1}, 0")
    a(f"global_load_dwordx2 {vr(V_Q,2)}, v{vq}, {sr(S_Q,2)}")
    a(f"global_load_dwordx2 {vr(V_Q+2,2)}, v{vq}, {sr(S_Q,2)} offset:128")
    a(f"global_load_dwordx2 {vr(V_KSR,2)}, v{vks}, {sr(S_KS,2)}")
    a(f"global_load_dwordx2 {vr(V_KSR+2,2)}, v{vks}, {sr(S_KS,2)} offset:128")
    a(f"global_load_dwordx2 {vr(V_KZR,2)}, v{vkz}, {sr(S_KZ,2)}")
    a(f"global_load_dwordx2 {vr(V_KZR+2,2)}, v{vkz}, {sr(S_KZ,2)} offset:128")
    for t in ("q0", "q1", "ks0", "ks1", "kz0", "kz1"): issue(t)
    def load_vsz():
        for hh in range(NH):
            a(f"global_load_ushort v{V_VS+hh}, v{V_VSOFF}, {sr(S_VS,2)} offset:{hh*16*NW*8}"); issue(f"vs{hh}")
            a(f"global_load_ushort v{V_VZ+hh}, v{V_VSOFF}, {sr(S_VZ,2)} offset:{hh*16*NW*8}"); issue(f"vz{hh}")
    if late_v < 0: load_vsz()
    for n in range(nfirst, G): issue_big(n)
    if "touchv" in opts:
        a(f"v_mov_b32 v{V_X}, 0")
        a(f"buffer_load_dword v{V_X+1}, v{V_X}, {sr(S_VSRD,4)}, s{S_BASE} offen{NT}"); issue("touchv")
    a(f"s_lshl_b32 s{S_T0}, s{S_LIN}, 12")
    a(f"s_add_u32 s{S_SLOT}, s{S_WS}, s{S_T0}")
    a(f"s_addc_u32 s{S_SLOT+1}, s{S_WS+1}, 0")
    a(f"s_lshl_b32 s{S_T0}, s{S_PAIR}, 15")
    a(f"s_add_u32 s{S_PSLOT}, s{S_WS}, s{S_T0}")
    a(f"s_addc_u32 s{S_PSLOT+1}, s{S_WS+1}, 0")
    a(f"s_lshl_b32 s{S_T0}, s{S_PAIR}, 3")
    a(f"s_add_u32 s{S_CNT}, s{S_DBG}, s{S_T0}")
    a(f"s_addc_u32 s{S_CNT+1}, s{S_DBG+1}, 0")
    def poison():
        a(f"s_cmp_lg_u32 s{S_WAVE}, 0")
        a("s_cbranch_scc1 L_noclear")
        z = V_PA
        for i in range(4): a(f"v_mov_b32 v{z+i}, -1")
        a(f"global_store_dwordx4 v{V_OFFV}, {vr(z,4)}, {sr(S_SLOT,2)} sc1")
        a(f"global_store_dwordx4 v{V_OFFV}, {vr(z,4)}, {sr(S_SLOT,2)} offset:1024 sc1")
        a(f"global_store_dwordx4 v{V_OFFV}, {vr(z,4)}, {sr(S_SLOT,2)} offset:2048 sc1")
        a("L_noclear:")
    if clr_step < 0: poison()
    a(f"v_lshrrev_b32 v{V_PADDR}, 5, v{L}")
    a(f"v_lshlrev_b32 v{V_PADDR}, 7, v{V_PADDR}")
    a(f"v_lshl_or_b32 v{V_PADDR}, v{t0}, 3, v{V_PADDR}")
    a(f"s_mul_i32 s{S_T1}, s{S_WAVE}, {NH*1024}")
    a(f"v_add_u32 v{V_PADDR}, s{S_T1}, v{V_PADDR}")

    wait_for(["q0", "q1", "ks0", "ks1", "kz0", "kz1"])
    stamp(2)
    a(f"s_mov_b32 s{S_T0}, 0x{Cbits:08x}")
    a(f"s_mov_b32 s{S_T1}, 0xffff0000")
    x0, x1, y0, y1 = V_T, V_T + 1, V_T + 2, V_T + 3
    for n in range(4):
        a(f"v_lshlrev_b32 v{x0}, 16, v{V_Q+n}")
        a(f"v_and_b32 v{x1}, s{S_T1}, v{V_Q+n}")
        a(f"v_lshlrev_b32 v{y0}, 16, v{V_KSR+n}")
        a(f"v_and_b32 v{y1}, s{S_T1}, v{V_KSR+n}")
        a(f"v_mul_f32 v{x0}, v{x0}, v{y0}")
        a(f"v_mul_f32 v{x1}, v{x1}, v{y1}")
        a(f"v_mul_f32 v{x0}, s{S_T0}, v{x0}")
        a(f"v_mul_f32 v{x1}, s{S_T0}, v{x1}")
        a(f"v_cvt_pk_bf16_f32 v{V_BHI+n}, v{x0}, v{x1}")
        a(f"v_lshlrev_b32 v{y0}, 16, v{V_BHI+n}")
        a(f"v_and_b32 v{y1}, s{S_T1}, v{V_BHI+n}")
        a(f"v_sub_f32 v{x0}, v{x0}, v{y0}")
        a(f"v_sub_f32 v{x1}, v{x1}, v{y1}")
        a(f"v_cvt_pk_bf16_f32 v{V_BLO+n}, v{x0}, v{x1}")
    a("s_nop 1")
    D0 = V_D
    a(f"v_mfma_f32_16x16x32_bf16 {vr(D0,4)}, {vr(V_KZR,4)}, {vr(V_BHI,4)}, 0")
    a(f"v_mfma_f32_16x16x32_bf16 {vr(D0,4)}, {vr(V_KZR,4)}, {vr(V_BLO,4)}, {vr(D0,4)}")
    a("s_nop 7")
    for c in range(4):
        a(f"v_mov_b32_dpp v{V_NEGC}, v{D0+c} quad_perm:[0,1,2,3] row_mask:0xf bank_mask:0x{1<<c:x}")
    a("s_nop 1")
    a(f"v_add_f32_dpp v{V_NEGC}, v{V_NEGC}, v{V_NEGC} row_ror:4 row_mask:0xf bank_mask:0xf")
    a("s_nop 1")
    a(f"v_add_f32_dpp v{V_NEGC}, v{V_NEGC}, v{V_NEGC} row_ror:8 row_mask:0xf bank_mask:0xf")
    a(f"v_sub_f32 v{V_NEGC}, 0, v{V_NEGC}")

    def extract(s):
        hh, b, g = s // 16, (s // 4) % 4, s % 4
        D = V_D + 4 * (s % 4)
        first = True
        for c in range(4):
            rot = (4 * (b - c)) % 16
            ctl = f"row_ror:{rot}" if rot else "quad_perm:[0,1,2,3]"
            dst = V_S + 4 * hh + g
            src1 = V_NEGC if first else dst
            a(f"v_add_f32_dpp v{dst}, v{D+c}, v{src1} {ctl} row_mask:0xf bank_mask:0x{1<<b:x}")
            first = False
    pend = None
    for s in range(NP):
        n0, n1 = 2 * s, 2 * s + 1
        PK = V_PK + 4 * (s % 2)
        wait_for([n0, n1])
        if s == 0: stamp(3)
        for n in (n0, n1):
            for r in range(4): a(f"v_cvt_f32_i32 v{slot(n)+r}, v{slot(n)+r}")
        for jj, n in enumerate((n0, n1)):
            a(f"v_cvt_pk_bf16_f32 v{PK+2*jj}, v{slot(n)}, v{slot(n)+1}")
            a(f"v_cvt_pk_bf16_f32 v{PK+2*jj+1}, v{slot(n)+2}, v{slot(n)+3}")
        issue_big(n0 + G); issue_big(n1 + G)
        D = V_D + 4 * (s % 4)
        a(f"v_mfma_f32_16x16x32_bf16 {vr(D,4)}, {vr(PK,4)}, {vr(V_BHI,4)}, 0")
        a(f"v_mfma_f32_16x16x32_bf16 {vr(D,4)}, {vr(PK,4)}, {vr(V_BLO,4)}, {vr(D,4)}")
        if pend is not None: extract(pend)
        if s == 1:
            pass
        pend = s
        if s == late_v: load_vsz()
        if s == clr_step: poison()
        if s == max(clr_step, 0) + G // 2 + 1:
            a(f"s_cmp_lg_u32 s{S_WAVE}, 0")
            a("s_cbranch_scc1 L_nocount")
            a(f"v_mov_b32 v{t0}, 0")
            a(f"v_mov_b32 v{t1}, 1")
            a(f"s_mov_b64 {sr(S_EX,2)}, exec")
            a("s_mov_b64 exec, 1")
            a(f"global_atomic_add v{t0}, v{t1}, {sr(S_CNT,2)} sc1")
            a(f"s_mov_b64 exec, {sr(S_EX,2)}")
            a("L_nocount:")
    a("s_nop 7")
    extract(pend)
    stamp(4)

    S = V_S
    NS = 4 * NH
    a(f"v_max3_f32 v{V_M}, v{S}, v{S+1}, v{S+2}")
    i = 3
    while i < NS:
        if i + 1 < NS:
            a(f"v_max3_f32 v{V_M}, v{V_M}, v{S+i}, v{S+i+1}"); i += 2
        else:
            a(f"v_max_f32 v{V_M}, v{V_M}, v{S+i}"); i += 1
    def allred(reg, op, tmp):
        a("s_nop 1")
        a(f"{op}_dpp v{reg}, v{reg}, v{reg} row_ror:4 row_mask:0xf bank_mask:0xf")
        a("s_nop 1")
        a(f"{op}_dpp v{reg}, v{reg}, v{reg} row_ror:8 row_mask:0xf bank_mask:0xf")
        a(f"v_mov_b32 v{tmp}, v{reg}")
        a("s_nop 1")
        a(f"v_permlane16_swap_b32 v{tmp}, v{reg}")
        a(f"{op} v{reg}, v{reg}, v{tmp}")
        a(f"v_mov_b32 v{tmp}, v{reg}")
        a("s_nop 1")
        a(f"v_permlane32_swap_b32 v{tmp}, v{reg}")
        a(f"{op} v{reg}, v{reg}, v{tmp}")
    allred(V_M, "v_max_f32", t0)
    for g in range(NS): a(f"v_sub_f32 v{S+g}, v{S+g}, v{V_M}")
    for g in range(NS): a(f"v_exp_f32 v{S+g}, v{S+g}")
    wait_for([f"vs{h}" for h in range(NH)] + [f"vz{h}" for h in range(NH)])
    for hh in range(NH):
        a(f"v_lshlrev_b32 v{V_VS+hh}, 16, v{V_VS+hh}")
        a(f"v_lshlrev_b32 v{V_VZ+hh}, 16, v{V_VZ+hh}")
    a(f"v_add_f32 v{V_L}, v{S}, v{S+1}")
    for g in range(2, NS): a(f"v_add_f32 v{V_L}, v{V_L}, v{S+g}")
    for hh in range(NH):
        for g in range(4):
            a(f"v_mul_f32_dpp v{S+4*hh+g}, v{V_VS+hh}, v{S+4*hh+g} quad_perm:[{g},{g},{g},{g}] row_mask:0xf bank_mask:0xf")
    a(f"s_mov_b32 s{S_T1}, 0xffff0000")
    a(f"s_mul_i32 s{S_T0}, s{S_WAVE}, {NH*1024}")
    a(f"v_lshl_add_u32 v{t1}, v{L}, 3, s{S_T0}")
    u = V_T + 4
    hi, lo = V_PA, V_PA + 2
    for hh in range(NH):
        Sh = S + 4 * hh
        hi, lo = V_PA + 4 * hh, V_PA + 4 * hh + 2
        a(f"v_cvt_pk_bf16_f32 v{hi}, v{Sh}, v{Sh+1}")
        a(f"v_cvt_pk_bf16_f32 v{hi+1}, v{Sh+2}, v{Sh+3}")
        a(f"v_lshlrev_b32 v{u}, 16, v{hi}")
        a(f"v_and_b32 v{u+1}, s{S_T1}, v{hi}")
        a(f"v_lshlrev_b32 v{u+2}, 16, v{hi+1}")
        a(f"v_and_b32 v{u+3}, s{S_T1}, v{hi+1}")
        a(f"ds_write_b64 v{t1}, {vr(hi,2)} offset:{LDS_P+hh*1024}")
        if use_lo:
            for g in range(4): a(f"v_sub_f32 v{Sh+g}, v{Sh+g}, v{u+g}")
            a(f"v_cvt_pk_bf16_f32 v{lo}, v{Sh}, v{Sh+1}")
            a(f"v_cvt_pk_bf16_f32 v{lo+1}, v{Sh+2}, v{Sh+3}")
            a(f"ds_write_b64 v{t1}, {vr(lo,2)} offset:{LDS_P+hh*1024+512}")
            a(f"v_lshlrev_b32 v{Sh}, 16, v{lo}")
            a(f"v_and_b32 v{Sh+1}, s{S_T1}, v{lo}")
            a(f"v_lshlrev_b32 v{Sh+2}, 16, v{lo+1}")
            a(f"v_and_b32 v{Sh+3}, s{S_T1}, v{lo+1}")
            for g in range(4): a(f"v_add_f32 v{Sh+g}, v{Sh+g}, v{u+g}")
        else:
            for g in range(4): a(f"v_mov_b32 v{Sh+g}, v{u+g}")
        if hh == 0:
            a(f"v_mul_f32_dpp v{V_CZ}, v{V_VZ+hh}, v{Sh} quad_perm:[0,0,0,0] row_mask:0xf bank_mask:0xf")
        else:
            a(f"v_fmac_f32_dpp v{V_CZ}, v{V_VZ+hh}, v{Sh} quad_perm:[0,0,0,0] row_mask:0xf bank_mask:0xf")
        for g in range(1, 4):
            a(f"v_fmac_f32_dpp v{V_CZ}, v{V_VZ+hh}, v{Sh+g} quad_perm:[{g},{g},{g},{g}] row_mask:0xf bank_mask:0xf")
    allred(V_L, "v_add_f32", t0)
    allred(V_CZ, "v_add_f32", t0)
    for i in range(16): a(f"v_mov_b32 v{V_ACC+i}, 0")
    if "warmout" in opts:
        a(f"s_cmp_lg_u32 s{S_CHUNK}, 7")
        a("s_cbranch_scc1 L_nowarm")
        a(f"v_mov_b32 v{t0}, 0")
        a(f"global_load_dword v{V_X}, v{t0}, {sr(S_OUT,2)}")
        a("L_nowarm:")
    a(f"v_mov_b32 v{V_CNT}, 8")
    a(f"s_cmp_lg_u32 s{S_CHUNK}, 7")
    a("s_cbranch_scc1 L_nocntload")
    a(f"v_mov_b32 v{t0}, 0")
    a(f"global_load_dword v{V_CNT}, v{t0}, {sr(S_CNT,2)} sc1")
    a("L_nocntload:")
    a(f"v_mul_u32_u24 v{t1}, {NW*8}, v{L}")
    a(f"s_lshl_b32 s{S_T0}, s{S_WAVE}, 3")
    a(f"v_add_u32 v{t1}, s{S_T0}, v{t1}")
    a(f"s_mov_b64 {sr(S_EX,2)}, exec")
    a("s_mov_b64 exec, 0xf")
    a(f"ds_write_b32 v{t1}, v{V_M} offset:{LDS_STAT}")
    a(f"ds_write_b32 v{t1}, v{V_L} offset:{LDS_STAT+4}")
    a(f"s_mov_b64 exec, {sr(S_EX,2)}")
    a("s_waitcnt lgkmcnt(0)")
    stamp(5)

    def pa_read(unit, sub):
        hh, b = unit // 4, unit % 4
        P = V_PA + 4 * sub
        off = LDS_P + hh * 1024 + 256 * sub + 32 * b
        a(f"ds_read_b64 {vr(P,2)}, v{V_PADDR} offset:{off}")
        if use_lo: a(f"ds_read_b64 {vr(P+2,2)}, v{V_PADDR} offset:{off+512}")
    nP = 2 if use_lo else 1
    NU = 4 * NH
    for unit in range(NU):
        base = NL + 8 * unit
        pa_read(unit, 0); pa_read(unit, 1)
        for kp in range(2):
            ns = [base + 4 * kp + i for i in range(4)]
            wait_for(ns)
            for n in ns:
                for r in range(4): a(f"v_cvt_f32_i32 v{slot(n)+r}, v{slot(n)+r}")
            for sub in range(2):
                for r in range(4):
                    a(f"v_cvt_pk_bf16_f32 v{V_PK+8*sub+2*r+kp}, v{slot(ns[sub])+r}, v{slot(ns[2+sub])+r}")
            for n in ns: issue_big(n + G)
        a("s_waitcnt lgkmcnt(0)")
        a("s_nop 0")
        for sub in range(2):
            P = V_PA + 4 * sub
            for r in range(4):
                a(f"v_mfma_f32_4x4x4_16b_bf16 {vr(V_ACC+4*r,4)}, {vr(P,2)}, {vr(V_PK+8*sub+2*r,2)}, {vr(V_ACC+4*r,4)}")
            if use_lo:
                for r in range(4):
                    a(f"v_mfma_f32_4x4x4_16b_bf16 {vr(V_ACC+4*r,4)}, {vr(P+2,2)}, {vr(V_PK+8*sub+2*r,2)}, {vr(V_ACC+4*r,4)}")
    stamp(6)

    a("s_nop 4")
    for i in range(4):
        a(f"v_permlane32_swap_b32 v{V_ACC+i}, v{V_ACC+8+i}")
        a(f"v_permlane32_swap_b32 v{V_ACC+4+i}, v{V_ACC+12+i}")
    X = V_PK
    for i in range(4):
        a(f"v_add_f32 v{X+2*i}, v{V_ACC+i}, v{V_ACC+8+i}")
        a(f"v_add_f32 v{X+2*i+1}, v{V_ACC+4+i}, v{V_ACC+12+i}")
    for i in range(4):
        a(f"v_subrev_f32_dpp v{X+2*i}, v{V_CZ}, v{X+2*i} quad_perm:[{i},{i},{i},{i}] row_mask:0xf bank_mask:0xf")
        a(f"v_subrev_f32_dpp v{X+2*i+1}, v{V_CZ}, v{X+2*i+1} quad_perm:[{i},{i},{i},{i}] row_mask:0xf bank_mask:0xf")
    a(f"s_lshl_b32 s{S_T0}, s{S_WAVE}, 11")
    a(f"v_lshl_add_u32 v{t1}, v{L}, 3, s{S_T0}")
    for i in range(4):
        a(f"ds_write_b64 v{t1}, {vr(X+2*i,2)} offset:{LDS_RED+512*i}")
    a("s_waitcnt lgkmcnt(0)")
    a("s_barrier")
    stamp(7)
    if NW > 4:
        a(f"s_cmp_ge_u32 s{S_WAVE}, 4")
        a("s_cbranch_scc1 L_fin0" if stamps else "s_cbranch_scc1 L_end")
    Y = V_RING
    a(f"s_lshl_b32 s{S_T0}, s{S_WAVE}, 9")
    a(f"v_lshl_add_u32 v{t1}, v{L}, 3, s{S_T0}")
    a(f"v_and_b32 v{t2}, {NW-1}, v{L}")
    a(f"s_mul_i32 s{S_T0}, s{S_WAVE}, {NW*8}")
    a(f"v_lshl_add_u32 v{t2}, v{t2}, 3, s{S_T0}")
    ST = V_PK + 8
    a(f"ds_read_b64 {vr(ST,2)}, v{t2} offset:{LDS_STAT}")
    for w in range(NW):
        a(f"ds_read_b64 {vr(Y+2*w,2)}, v{t1} offset:{LDS_RED+2048*w}")
    def redn(n, reg, op, src=None):
        src = reg if src is None else src
        r = n // 2
        first = True
        while r >= 1:
            if not first: a("s_nop 1")
            s_ = src if first else reg
            a(f"{op}_dpp v{reg}, v{s_}, v{s_} row_ror:{r} row_mask:0xf bank_mask:0xf")
            first = False
            r //= 2
    al = t3
    O0, O1 = V_S, V_S + 1
    def weights(n, norm):
        redn(n, V_M, "v_max_f32", ST)
        a(f"v_sub_f32 v{al}, v{ST}, v{V_M}")
        a(f"v_exp_f32 v{al}, v{al}")
        a(f"v_mov_b32 v{O0}, 0")
        a(f"v_mul_f32 v{V_L}, v{al}, v{ST+1}")
        a(f"v_mov_b32 v{O1}, 0")
        a("s_nop 0")
        redn(n, V_L, "v_add_f32")
        if norm:
            a(f"v_rcp_f32 v{t0}, v{V_L}")
            a("s_nop 0")
            a(f"v_mul_f32 v{al}, v{al}, v{t0}")
            a("s_nop 1")
    def accumulate(n):
        for w in range(n):
            a(f"v_fmac_f32_dpp v{O0}, v{al}, v{Y+2*w} row_newbcast:{w} row_mask:0xf bank_mask:0xf")
            a(f"v_fmac_f32_dpp v{O1}, v{al}, v{Y+2*w+1} row_newbcast:{w} row_mask:0xf bank_mask:0xf")
    a(f"s_waitcnt lgkmcnt({NW})")
    weights(NW, False)
    a("s_waitcnt lgkmcnt(0)")
    accumulate(NW)
    a(f"v_min_u32 v{O0}, -2, v{O0}")
    a(f"v_min_u32 v{O1}, -2, v{O1}")
    ML = V_S + 2
    a(f"v_min_u32 v{ML}, -2, v{V_M}")
    a(f"v_min_u32 v{ML+1}, -2, v{V_L}")
    a(f"global_store_dwordx2 v{t1}, {vr(O0,2)}, {sr(S_SLOT,2)} sc1")
    a(f"s_lshl_b32 s{S_T0}, s{S_WAVE}, 3")
    a(f"v_mov_b32 v{t0}, s{S_T0}")
    a(f"s_mov_b64 {sr(S_EX,2)}, exec")
    a("s_mov_b64 exec, 1")
    a(f"global_store_dwordx2 v{t0}, {vr(ML,2)}, {sr(S_SLOT,2)} offset:2048 sc1")
    a(f"s_mov_b64 exec, {sr(S_EX,2)}")
    stamp(8)
    a(f"s_cmp_lg_u32 s{S_CHUNK}, 7")
    a("s_cbranch_scc1 L_fin0" if stamps else "s_cbranch_scc1 L_end")
    a(f"s_mov_b32 s{S_SPIN}, {spin}")
    a("L_cntloop:")
    a(f"v_cmp_gt_u32 vcc, 8, v{V_CNT}")
    a("s_cbranch_vccz L_cntok")
    a(f"s_sub_u32 s{S_SPIN}, s{S_SPIN}, 1")
    a("s_cbranch_scc1 L_end")
    a(f"v_mov_b32 v{t0}, 0")
    a(f"global_load_dword v{V_CNT}, v{t0}, {sr(S_CNT,2)} sc1")
    a("s_waitcnt vmcnt(0)")
    a("s_branch L_cntloop")
    a("L_cntok:")
    a(f"v_and_b32 v{t2}, 7, v{L}")
    a(f"v_lshlrev_b32 v{t2}, 12, v{t2}")
    a(f"v_add_u32 v{t2}, s{S_T0}, v{t2}")
    va = V_PK
    for c in range(8): a(f"v_add_u32 v{va+c}, {c*4096}, v{t1}")
    a("L_poll:")
    a(f"global_load_dwordx2 {vr(ST,2)}, v{t2}, {sr(S_PSLOT,2)} offset:2048 sc1")
    for c in range(8):
        a(f"global_load_dwordx2 {vr(Y+2*c,2)}, v{va+c}, {sr(S_PSLOT,2)} sc1")
    a("s_waitcnt vmcnt(0)")
    a(f"v_max3_u32 v{t0}, v{ST}, v{ST+1}, v{Y}")
    for i in range(1, 15, 2): a(f"v_max3_u32 v{t0}, v{t0}, v{Y+i}, v{Y+i+1}")
    a(f"v_max_u32 v{t0}, v{t0}, v{Y+15}")
    a(f"v_cmp_eq_u32 vcc, -1, v{t0}")
    a("s_cbranch_vccz L_ready")
    a(f"s_sub_u32 s{S_SPIN}, s{S_SPIN}, 1")
    a("s_cbranch_scc0 L_poll")
    a("s_branch L_end")
    a("L_ready:")
    stamp(9)
    weights(8, True)
    accumulate(8)
    a(f"v_cvt_pk_bf16_f32 v{t0}, v{O0}, v{O1}")
    a(f"v_and_b32 v{t2}, 31, v{L}")
    a(f"v_lshlrev_b32 v{t2}, 3, v{t2}")
    a(f"v_lshrrev_b32 v{t3}, 5, v{L}")
    a(f"v_lshl_or_b32 v{t2}, v{t3}, 2, v{t2}")
    a(f"s_lshl_b32 s{S_T0}, s{S_PAIR}, 10")
    a(f"s_lshl_b32 s{S_T1}, s{S_WAVE}, 8")
    a(f"s_add_u32 s{S_T0}, s{S_T0}, s{S_T1}")
    a(f"v_add_u32 v{t2}, s{S_T0}, v{t2}")
    a(f"global_store_dword v{t2}, v{t0}, {sr(S_OUT,2)}")
    if stamps and optv("amp", 0):
        stamp(10)
        a("s_waitcnt lgkmcnt(0)")
        K_, ia, ib = optv("amp", 0), optv("ampa", 0), optv("ampb", 10)
        a(f"s_sub_u32 s{S_T0}, s{S_ST+2*ib}, s{S_ST+2*ia}")
        a(f"s_min_u32 s{S_T0}, s{S_T0}, 20000")
        a(f"s_mul_i32 s{S_T0}, s{S_T0}, {K_}")
        a(f"s_add_u32 s{S_T0}, s{S_T0}, s{S_ST+20}")
        a("L_amp:")
        a(f"s_memrealtime s[{S_ST+22}:{S_ST+23}]")
        a("s_waitcnt lgkmcnt(0)")
        a(f"s_sub_u32 s{S_T1}, s{S_ST+22}, s{S_T0}")
        a(f"s_cmp_lt_i32 s{S_T1}, 0")
        a("s_cbranch_scc1 L_amp")
        a("L_fin0:")
    elif stamps:
        stamp(10)
        a("L_fin0:")
        flush_stamps(11)
    a("L_end:")
    a("s_endpgm")
    tail = f""".section .rodata,"a"
.p2align 6
.amdhsa_kernel {KNAME}_kernel
  .amdhsa_next_free_vgpr {NV}
  .amdhsa_next_free_sgpr {96 if stamps else 72}
  .amdhsa_accum_offset {(NV+3)//4*4}
  .amdhsa_group_segment_fixed_size 0
  .amdhsa_kernarg_size 80
  .amdhsa_user_sgpr_count 2
  .amdhsa_user_sgpr_kernarg_segment_ptr 1
  .amdhsa_system_sgpr_workgroup_id_x 1
  .amdhsa_float_denorm_mode_32 3
.end_amdhsa_kernel
"""
    return head + a.text() + tail, lds

if __name__ == "__main__":
    ap = argparse.ArgumentParser()
    ap.add_argument("--nw", type=int, default=4)
    ap.add_argument("-G", type=int, default=16)
    ap.add_argument("--no-nt", action="store_true")
    ap.add_argument("--lds", type=int, default=0)
    ap.add_argument("--stamps", action="store_true")
    ap.add_argument("--opt", action="append", default=[])
    ap.add_argument("-o", default="cdna_kernels/" + KNAME + ".s")
    args = ap.parse_args()
    s, lds = gen(NW=args.nw, G=args.G, nt=not args.no_nt, lds_force=args.lds, stamps=args.stamps, opts=args.opt)
    open(args.o, "w").write(s)
    print(lds)
```

```python
import sys, math, argparse, struct

KNAME = "standalone__kv_cache_quant_int4_int2_kv_with_per_channel_or_per_token_scales__decode"

class Asm:
    def __init__(self): self.lines = []
    def __call__(self, s=""):
        s = s.strip()
        self.lines.append(s if s.endswith(":") else "    " + s)
    def text(self): return "\n".join(self.lines) + "\n"

def vr(a, n=1): return f"v{a}" if n == 1 else f"v[{a}:{a+n-1}]"
def sr(a, n=1): return f"s{a}" if n == 1 else f"s[{a}:{a+n-1}]"
def f32bits(x): return struct.unpack("<I", struct.pack("<f", x))[0]

def gen(NW=4, G=16, nt=True, lds_force=0, spin=1 << 16, stamps=False, opts=()):
    a = Asm()
    NH = 8 // NW
    NP = 16 * NH
    NL = 2 * NP
    NT = " nt" if nt else ""
    use_lo = "nolo" not in opts
    S_WG = 2; S_WAVE = 3
    S_Q, S_QK, S_QV, S_KS, S_KZ, S_VS, S_VZ, S_OUT = 4, 6, 8, 10, 12, 14, 16, 18
    S_DBG, S_WS = 20, 22
    S_KSRD = 24; S_VSRD = 28
    S_BASE = 32
    S_RUN = 33
    S_PAIR = 40; S_CHUNK = 41; S_T0 = 42; S_T1 = 43
    S_SLOT = 44; S_PSLOT = 46; S_CNT = 48
    S_SPIN = 52
    S_LIN = 53
    S_SAME = 54
    S_FF = 55
    S_EX = 64
    S_ST = 70
    V_LANE = 0; V_OFFK = 1; V_OFFV = 2
    V_T = 3
    V_BHI = 12; V_BLO = 16
    V_NEGC = 20; V_PADDR = 21; V_CNT = 22
    V_M = 23; V_L = 24; V_CZ = 25
    V_S = 26
    V_VS = 34
    V_VZ = 36
    V_PK = 38
    V_D = 54
    V_ACC = 54
    V_PA = 70
    V_X = 78
    V_VSOFF = 11
    V_XC = 79
    V_CELL = 80
    V_RING = 84
    NV = V_RING + 4 * G
    NV = max(NV, V_RING + 24)
    assert NV <= 256
    V_Q = 38; V_KSR = 42; V_KZR = 46

    LDS_P = 0
    LDS_RED = NW * NH * 1024
    LDS_STAT = LDS_RED + NW * 2048
    LDS_TOTAL = LDS_STAT + 4 * NW * 8
    lds = max(LDS_TOTAL, lds_force)
    Cbits = f32bits((128 ** -0.5) * math.log2(math.e))

    def optv(name, default):
        for o in opts:
            if o.startswith(name + "="): return int(o.split("=")[1])
        return default
    queue = []
    def issue(tag): queue.append(tag)
    def wait_for(tags):
        idx = max((queue.index(t) for t in tags if t in queue), default=-1)
        if idx < 0: return
        n = len(queue) - 1 - idx
        assert n <= 63
        a(f"s_waitcnt vmcnt({n})")
        del queue[:idx + 1]

    def stamp(i):
        if stamps: a(f"s_memrealtime s[{S_ST+2*i}:{S_ST+2*i+1}]")
    def flush_stamps(n):
        a("s_waitcnt lgkmcnt(0)")
        vx, va_ = V_X, V_X + 1
        a(f"v_mov_b32 v{vx}, 0")
        for i in range(n): a(f"v_writelane_b32 v{vx}, s{S_ST+2*i}, {i}")
        a(f"s_getreg_b32 s{S_T1}, hwreg(HW_REG_HW_ID)")
        a(f"v_writelane_b32 v{vx}, s{S_T1}, 14")
        a(f"s_getreg_b32 s{S_T1}, hwreg(HW_REG_XCC_ID)")
        a(f"v_writelane_b32 v{vx}, s{S_T1}, 15")
        a(f"s_mul_i32 s{S_T1}, s{S_WG}, {NW}")
        a(f"s_add_u32 s{S_T1}, s{S_T1}, s{S_WAVE}")
        a(f"s_lshl_b32 s{S_T1}, s{S_T1}, 6")
        a(f"s_add_u32 s{S_T1}, s{S_T1}, 0x8000000")
        a(f"v_lshl_add_u32 v{va_}, v{V_LANE}, 2, s{S_T1}")
        a("s_mov_b64 exec, 0xffff")
        a(f"global_store_dword v{va_}, v{vx}, {sr(S_WS,2)}")

    hdr = open("cdna_kernels/" + KNAME + ".s.ref").read().split("\n")
    out = []
    for l in hdr:
        if l.startswith("; @launch"):
            out.append(f"; @launch grid=(256,1,1) block=({NW*64},1,1) lds={lds}")
            break
        out.append(l)
    head = "\n".join(out) + "\n"
    head += f""".amdgcn_target "amdgcn-amd-amdhsa--gfx950"
.text
.globl {KNAME}_kernel
.p2align 8
.type {KNAME}_kernel,@function
{KNAME}_kernel:
"""
    L = V_LANE
    t0, t1, t2, t3 = V_T, V_T + 1, V_T + 2, V_T + 3
    a(f"s_cmp_ge_u32 s{S_WG}, 256")
    a("s_cbranch_scc1 L_end")
    stamp(0)
    a("s_load_dwordx16 s[4:19], s[0:1], 0")
    a("s_load_dwordx4 s[20:23], s[0:1], 64")
    a(f"v_lshrrev_b32 v{t0}, 6, v0")
    a(f"v_and_b32 v{L}, 63, v0")
    a(f"v_readfirstlane_b32 s{S_WAVE}, v{t0}")
    a(f"v_and_b32 v{t0}, 3, v{L}")
    a(f"v_lshrrev_b32 v{t1}, 4, v{L}")
    a(f"v_bfe_u32 v{t2}, v{L}, 2, 2")
    a(f"v_lshlrev_b32 v{V_OFFK}, 4, v{t0}")
    a(f"v_lshl_or_b32 v{V_OFFK}, v{t1}, 6, v{V_OFFK}")
    a(f"v_lshl_or_b32 v{V_OFFK}, v{t2}, 9, v{V_OFFK}")
    a(f"v_lshlrev_b32 v{V_OFFV}, 4, v{L}")
    if "lin" in opts:
        a(f"s_lshr_b32 s{S_PAIR}, s{S_WG}, 3")
        a(f"s_and_b32 s{S_CHUNK}, s{S_WG}, 7")
    else:
        a(f"s_add_u32 s{S_PAIR}, s{S_WG}, {optv('prot', 0)}")
        a(f"s_and_b32 s{S_PAIR}, s{S_PAIR}, 31")
        a(f"s_lshr_b32 s{S_CHUNK}, s{S_WG}, 5")
    a(f"s_lshl_b32 s{S_LIN}, s{S_PAIR}, 3")
    a(f"s_add_u32 s{S_LIN}, s{S_LIN}, s{S_CHUNK}")
    a(f"s_lshl_b32 s{S_T0}, s{S_LIN}, 18")
    a(f"s_lshl_b32 s{S_T1}, s{S_WAVE}, 11")
    a(f"s_add_u32 s{S_BASE}, s{S_T0}, s{S_T1}")
    vq, vks, vkz, vsc = V_T + 4, V_T + 5, V_T + 6, V_VSOFF
    a(f"v_lshlrev_b32 v{vks}, 5, v{t1}")
    a(f"v_lshl_or_b32 v{vkz}, v{t0}, 3, v{vks}")
    a(f"v_lshl_or_b32 v{vks}, v{t2}, 3, v{vks}")
    a(f"v_lshl_or_b32 v{vq}, v{t0}, 8, v{vks}")
    a(f"v_lshl_or_b32 v{vsc}, v{t2}, 2, v{t0}")
    a(f"v_mul_u32_u24 v{vsc}, {NW*8}, v{vsc}")
    a(f"v_lshl_or_b32 v{vsc}, v{t1}, 1, v{vsc}")
    a(f"s_lshl_b32 s{S_T1}, s{S_WAVE}, 3")
    a(f"v_add_u32 v{vsc}, s{S_T1}, v{vsc}")
    a("s_waitcnt lgkmcnt(0)")
    stamp(1)
    for srd, p in ((S_KSRD, S_QK), (S_VSRD, S_QV)):
        a(f"s_mov_b32 s{srd}, s{p}")
        a(f"s_and_b32 s{srd+1}, s{p+1}, 0xffff")
        a(f"s_mov_b32 s{srd+2}, 0x4000000")
        a(f"s_mov_b32 s{srd+3}, 0x20000")

    D0_ = optv("d0", G); N1 = optv("n1", 10**9)
    st = {"next": 0}
    def refill(done):
        depth = D0_ if done < N1 else min(G, D0_ + 2 * ((done - N1) // 2 + 1))
        while st["next"] < min(2 * NL, done + depth):
            issue_big(st["next"]); st["next"] += 1
    def slot(n): return V_RING + 4 * (n % G)
    def issue_big(n):
        if n >= 2 * NL: return
        isK = n < NL
        m = n if isK else n - NL
        piece, sub = m // 2, m % 2
        if sub == 0:
            a(f"s_add_u32 s{S_RUN}, s{S_BASE}, {piece*NW*2048}")
        if isK:
            a(f"buffer_load_dwordx4 {vr(slot(n),4)}, v{V_OFFK}, {sr(S_KSRD,4)}, s{S_RUN} offen offset:{sub*256}{NT}")
        else:
            a(f"buffer_load_dwordx4 {vr(slot(n),4)}, v{V_OFFV}, {sr(S_VSRD,4)}, s{S_RUN} offen offset:{sub*1024}{NT}")
        issue(n)

    nfirst = min(D0_, optv("nfirst", 0))
    for n in range(nfirst): issue_big(n)
    st["next"] = nfirst
    late_v = optv("latev", -1)
    clr_step = optv("clr", -1)
    a(f"s_lshl_b32 s{S_T0}, s{S_PAIR}, 10")
    a(f"s_add_u32 s{S_Q}, s{S_Q}, s{S_T0}")
    a(f"s_addc_u32 s{S_Q+1}, s{S_Q+1}, 0")
    a(f"s_lshr_b32 s{S_T0}, s{S_LIN}, 2")
    a(f"s_lshl_b32 s{S_T0}, s{S_T0}, 8")
    for p in (S_KS, S_KZ):
        a(f"s_add_u32 s{p}, s{p}, s{S_T0}")
        a(f"s_addc_u32 s{p+1}, s{p+1}, 0")
    a(f"s_lshl_b32 s{S_T0}, s{S_LIN}, 10")
    for p in (S_VS, S_VZ):
        a(f"s_add_u32 s{p}, s{p}, s{S_T0}")
        a(f"s_addc_u32 s{p+1}, s{p+1}, 0")
    a(f"global_load_dwordx2 {vr(V_Q,2)}, v{vq}, {sr(S_Q,2)}")
    a(f"global_load_dwordx2 {vr(V_Q+2,2)}, v{vq}, {sr(S_Q,2)} offset:128")
    a(f"global_load_dwordx2 {vr(V_KSR,2)}, v{vks}, {sr(S_KS,2)}")
    a(f"global_load_dwordx2 {vr(V_KSR+2,2)}, v{vks}, {sr(S_KS,2)} offset:128")
    a(f"global_load_dwordx2 {vr(V_KZR,2)}, v{vkz}, {sr(S_KZ,2)}")
    a(f"global_load_dwordx2 {vr(V_KZR+2,2)}, v{vkz}, {sr(S_KZ,2)} offset:128")
    for t in ("q0", "q1", "ks0", "ks1", "kz0", "kz1"): issue(t)
    def load_vsz():
        for hh in range(NH):
            a(f"global_load_ushort v{V_VS+hh}, v{V_VSOFF}, {sr(S_VS,2)} offset:{hh*16*NW*8}"); issue(f"vs{hh}")
            a(f"global_load_ushort v{V_VZ+hh}, v{V_VSOFF}, {sr(S_VZ,2)} offset:{hh*16*NW*8}"); issue(f"vz{hh}")
    if late_v < 0: load_vsz()
    refill(0)
    if "touchv" in opts:
        a(f"v_mov_b32 v{V_X}, 0")
        a(f"buffer_load_dword v{V_X+1}, v{V_X}, {sr(S_VSRD,4)}, s{S_BASE} offen{NT}"); issue("touchv")
    a(f"s_lshl_b32 s{S_T0}, s{S_LIN}, 12")
    a(f"s_add_u32 s{S_SLOT}, s{S_WS}, s{S_T0}")
    a(f"s_addc_u32 s{S_SLOT+1}, s{S_WS+1}, 0")
    a(f"s_lshl_b32 s{S_T0}, s{S_PAIR}, 15")
    a(f"s_add_u32 s{S_PSLOT}, s{S_WS}, s{S_T0}")
    a(f"s_addc_u32 s{S_PSLOT+1}, s{S_WS+1}, 0")
    a(f"s_lshl_b32 s{S_T0}, s{S_PAIR}, 7")
    a(f"s_add_u32 s{S_T0}, s{S_T0}, 0x100000")
    a(f"s_add_u32 s{S_CNT}, s{S_WS}, s{S_T0}")
    a(f"s_addc_u32 s{S_CNT+1}, s{S_WS+1}, 0")
    if "fh2" in opts:
        a(f"v_mov_b32 v{V_CELL+1}, 0")
        a(f"s_cmp_eq_u32 s{S_CHUNK}, 7")
        a(f"s_cselect_b32 s{S_SAME}, s{S_WAVE}, 1")
        a(f"s_cmp_lg_u32 s{S_SAME}, 0")
        a("s_cbranch_scc1 L_noearly")
        a(f"global_load_dword v{V_CELL}, v{V_CELL+1}, {sr(S_CNT,2)} sc1")
        a("L_noearly:")
    a(f"v_lshrrev_b32 v{V_PADDR}, 5, v{L}")
    a(f"v_lshlrev_b32 v{V_PADDR}, 5, v{V_PADDR}")
    a(f"v_lshl_or_b32 v{V_PADDR}, v{t0}, 3, v{V_PADDR}")
    a(f"s_mul_i32 s{S_T1}, s{S_WAVE}, {NH*1024}")
    a(f"v_add_u32 v{V_PADDR}, s{S_T1}, v{V_PADDR}")

    wait_for(["q0", "q1", "ks0", "ks1", "kz0", "kz1"])
    stamp(2)
    a(f"s_mov_b32 s{S_T0}, 0x{Cbits:08x}")
    a(f"s_mov_b32 s{S_T1}, 0xffff0000")
    x0, x1, y0, y1 = V_T, V_T + 1, V_T + 2, V_T + 3
    for n in range(4):
        a(f"v_lshlrev_b32 v{x0}, 16, v{V_Q+n}")
        a(f"v_and_b32 v{x1}, s{S_T1}, v{V_Q+n}")
        a(f"v_lshlrev_b32 v{y0}, 16, v{V_KSR+n}")
        a(f"v_and_b32 v{y1}, s{S_T1}, v{V_KSR+n}")
        a(f"v_mul_f32 v{x0}, v{x0}, v{y0}")
        a(f"v_mul_f32 v{x1}, v{x1}, v{y1}")
        a(f"v_mul_f32 v{x0}, s{S_T0}, v{x0}")
        a(f"v_mul_f32 v{x1}, s{S_T0}, v{x1}")
        a(f"v_cvt_pk_bf16_f32 v{V_BHI+n}, v{x0}, v{x1}")
        a(f"v_lshlrev_b32 v{y0}, 16, v{V_BHI+n}")
        a(f"v_and_b32 v{y1}, s{S_T1}, v{V_BHI+n}")
        a(f"v_sub_f32 v{x0}, v{x0}, v{y0}")
        a(f"v_sub_f32 v{x1}, v{x1}, v{y1}")
        a(f"v_cvt_pk_bf16_f32 v{V_BLO+n}, v{x0}, v{x1}")
    a("s_nop 1")
    D0 = V_D
    a(f"v_mfma_f32_16x16x32_bf16 {vr(D0,4)}, {vr(V_KZR,4)}, {vr(V_BHI,4)}, 0")
    a(f"v_mfma_f32_16x16x32_bf16 {vr(D0,4)}, {vr(V_KZR,4)}, {vr(V_BLO,4)}, {vr(D0,4)}")
    a("s_nop 7")
    for c in range(4):
        a(f"v_mov_b32_dpp v{V_NEGC}, v{D0+c} quad_perm:[0,1,2,3] row_mask:0xf bank_mask:0x{1<<c:x}")
    a("s_nop 1")
    a(f"v_add_f32_dpp v{V_NEGC}, v{V_NEGC}, v{V_NEGC} row_ror:4 row_mask:0xf bank_mask:0xf")
    a("s_nop 1")
    a(f"v_add_f32_dpp v{V_NEGC}, v{V_NEGC}, v{V_NEGC} row_ror:8 row_mask:0xf bank_mask:0xf")
    a(f"v_sub_f32 v{V_NEGC}, 0, v{V_NEGC}")

    def extract(s):
        hh, b, g = s // 16, (s // 4) % 4, s % 4
        D = V_D + 4 * (s % 4)
        first = True
        for c in range(4):
            rot = (4 * (b - c)) % 16
            ctl = f"row_ror:{rot}" if rot else "quad_perm:[0,1,2,3]"
            dst = V_S + 4 * hh + g
            src1 = V_NEGC if first else dst
            a(f"v_add_f32_dpp v{dst}, v{D+c}, v{src1} {ctl} row_mask:0xf bank_mask:0x{1<<b:x}")
            first = False
    pend = None
    for s in range(NP):
        n0, n1 = 2 * s, 2 * s + 1
        PK = V_PK + 4 * (s % 2)
        if "finek" in opts:
            for jj, n in enumerate((n0, n1)):
                wait_for([n])
                if s == 0 and jj == 0: stamp(3)
                for r in range(4): a(f"v_cvt_f32_i32 v{slot(n)+r}, v{slot(n)+r}")
                a(f"v_cvt_pk_bf16_f32 v{PK+2*jj}, v{slot(n)}, v{slot(n)+1}")
                a(f"v_cvt_pk_bf16_f32 v{PK+2*jj+1}, v{slot(n)+2}, v{slot(n)+3}")
                refill(n + 1)
            a("s_nop 0")
        else:
            wait_for([n0, n1])
            if s == 0: stamp(3)
            for n in (n0, n1):
                for r in range(4): a(f"v_cvt_f32_i32 v{slot(n)+r}, v{slot(n)+r}")
            for jj, n in enumerate((n0, n1)):
                a(f"v_cvt_pk_bf16_f32 v{PK+2*jj}, v{slot(n)}, v{slot(n)+1}")
                a(f"v_cvt_pk_bf16_f32 v{PK+2*jj+1}, v{slot(n)+2}, v{slot(n)+3}")
            refill(n1 + 1)
        D = V_D + 4 * (s % 4)
        a(f"v_mfma_f32_16x16x32_bf16 {vr(D,4)}, {vr(PK,4)}, {vr(V_BHI,4)}, 0")
        a(f"v_mfma_f32_16x16x32_bf16 {vr(D,4)}, {vr(PK,4)}, {vr(V_BLO,4)}, {vr(D,4)}")
        if pend is not None: extract(pend)
        if s == 1:
            pass
        pend = s
        if s == late_v: load_vsz()
        if "fh2" in opts and s == D0_ // 2 + 2:
            a(f"s_cmp_lg_u32 s{S_SAME}, 0")
            a("s_cbranch_scc1 L_noann")
            a(f"v_add_u32 v{V_CELL+2}, 1, v{V_CELL}")
            a(f"s_getreg_b32 s{S_T0}, hwreg(HW_REG_XCC_ID, 0, 4)")
            a(f"v_mov_b32 v{V_CELL+3}, s{S_T0}")
            a("s_mov_b64 exec, 1")
            a(f"global_store_dwordx2 v{V_CELL+1}, {vr(V_CELL+2,2)}, {sr(S_CNT,2)} offset:8 sc1")
            a("s_mov_b64 exec, -1")
            a("L_noann:")
    a("s_nop 7")
    extract(pend)
    stamp(4)

    S = V_S
    NS = 4 * NH
    a(f"v_max3_f32 v{V_M}, v{S}, v{S+1}, v{S+2}")
    i = 3
    while i < NS:
        if i + 1 < NS:
            a(f"v_max3_f32 v{V_M}, v{V_M}, v{S+i}, v{S+i+1}"); i += 2
        else:
            a(f"v_max_f32 v{V_M}, v{V_M}, v{S+i}"); i += 1
    def allred(reg, op, tmp):
        a("s_nop 1")
        a(f"{op}_dpp v{reg}, v{reg}, v{reg} row_ror:4 row_mask:0xf bank_mask:0xf")
        a("s_nop 1")
        a(f"{op}_dpp v{reg}, v{reg}, v{reg} row_ror:8 row_mask:0xf bank_mask:0xf")
        a(f"v_mov_b32 v{tmp}, v{reg}")
        a("s_nop 1")
        a(f"v_permlane16_swap_b32 v{tmp}, v{reg}")
        a(f"{op} v{reg}, v{reg}, v{tmp}")
        a(f"v_mov_b32 v{tmp}, v{reg}")
        a("s_nop 1")
        a(f"v_permlane32_swap_b32 v{tmp}, v{reg}")
        a(f"{op} v{reg}, v{reg}, v{tmp}")
    allred(V_M, "v_max_f32", t0)
    for g in range(NS): a(f"v_sub_f32 v{S+g}, v{S+g}, v{V_M}")
    for g in range(NS): a(f"v_exp_f32 v{S+g}, v{S+g}")
    wait_for([f"vs{h}" for h in range(NH)] + [f"vz{h}" for h in range(NH)])
    for hh in range(NH):
        a(f"v_lshlrev_b32 v{V_VS+hh}, 16, v{V_VS+hh}")
        a(f"v_lshlrev_b32 v{V_VZ+hh}, 16, v{V_VZ+hh}")
    a(f"v_add_f32 v{V_L}, v{S}, v{S+1}")
    for g in range(2, NS): a(f"v_add_f32 v{V_L}, v{V_L}, v{S+g}")
    for hh in range(NH):
        for g in range(4):
            a(f"v_mul_f32_dpp v{S+4*hh+g}, v{V_VS+hh}, v{S+4*hh+g} quad_perm:[{g},{g},{g},{g}] row_mask:0xf bank_mask:0xf")
    a(f"s_mov_b32 s{S_T1}, 0xffff0000")
    a(f"v_bfe_u32 v{t1}, v{L}, 2, 2")
    a(f"v_lshlrev_b32 v{t1}, 6, v{t1}")
    a(f"v_bfe_u32 v{t2}, v{L}, 4, 1")
    a(f"v_lshl_or_b32 v{t1}, v{t2}, 5, v{t1}")
    a(f"v_and_b32 v{t2}, 3, v{L}")
    a(f"v_lshl_or_b32 v{t1}, v{t2}, 3, v{t1}")
    a(f"v_lshrrev_b32 v{t2}, 5, v{L}")
    a(f"v_lshl_or_b32 v{t1}, v{t2}, 2, v{t1}")
    a(f"s_mul_i32 s{S_T0}, s{S_WAVE}, {NH*1024}")
    a(f"v_add_u32 v{t1}, s{S_T0}, v{t1}")
    u = V_T + 4
    w_ = V_PK
    hi, lo = V_PA, V_PA + 2
    LO_OFF = NH * 512
    for hh in range(NH):
        Sh = S + 4 * hh
        a(f"v_cvt_pk_bf16_f32 v{hi}, v{Sh}, v{Sh+1}")
        a(f"v_cvt_pk_bf16_f32 v{hi+1}, v{Sh+2}, v{Sh+3}")
        a(f"v_lshlrev_b32 v{u}, 16, v{hi}")
        a(f"v_and_b32 v{u+1}, s{S_T1}, v{hi}")
        a(f"v_lshlrev_b32 v{u+2}, 16, v{hi+1}")
        a(f"v_and_b32 v{u+3}, s{S_T1}, v{hi+1}")
        if use_lo:
            for g in range(4): a(f"v_sub_f32 v{Sh+g}, v{Sh+g}, v{u+g}")
            a(f"v_cvt_pk_bf16_f32 v{lo}, v{Sh}, v{Sh+1}")
            a(f"v_cvt_pk_bf16_f32 v{lo+1}, v{Sh+2}, v{Sh+3}")
            a(f"v_lshlrev_b32 v{w_}, 16, v{lo}")
            a(f"v_and_b32 v{w_+1}, s{S_T1}, v{lo}")
            a(f"v_lshlrev_b32 v{w_+2}, 16, v{lo+1}")
            a(f"v_and_b32 v{w_+3}, s{S_T1}, v{lo+1}")
            for g in range(4): a(f"v_add_f32 v{Sh+g}, v{w_+g}, v{u+g}")
            src = Sh
        else:
            src = u
        for g in range(4):
            op = "v_mul_f32_dpp" if (hh == 0 and g == 0) else "v_fmac_f32_dpp"
            a(f"{op} v{V_CZ}, v{V_VZ+hh}, v{src+g} quad_perm:[{g},{g},{g},{g}] row_mask:0xf bank_mask:0xf")
        for base, off in ((u, 0),) + (((w_, LO_OFF),) if use_lo else ()):
            a(f"v_permlane32_swap_b32 v{base}, v{base+1}")
            a(f"v_permlane32_swap_b32 v{base+2}, v{base+3}")
            a(f"v_cvt_pk_bf16_f32 v{base}, v{base}, v{base+1}")
            a(f"v_cvt_pk_bf16_f32 v{base+2}, v{base+2}, v{base+3}")
            a(f"ds_write_b32 v{t1}, v{base} offset:{LDS_P+off+(hh*2)*256}")
            a(f"ds_write_b32 v{t1}, v{base+2} offset:{LDS_P+off+(hh*2+1)*256}")
    allred(V_L, "v_add_f32", t0)
    allred(V_CZ, "v_add_f32", t0)
    for i in range(16): a(f"v_mov_b32 v{V_ACC+i}, 0")
    if "warmout" in opts:
        a(f"s_cmp_lg_u32 s{S_CHUNK}, 7")
        a("s_cbranch_scc1 L_nowarm")
        a(f"v_mov_b32 v{t0}, 0")
        a(f"global_load_dword v{V_X}, v{t0}, {sr(S_OUT,2)}")
        a("L_nowarm:")
    a(f"v_mov_b32 v{t0}, 0")
    if "fh2" in opts:
        a(f"global_load_dwordx4 {vr(V_CELL,4)}, v{t0}, {sr(S_CNT,2)} sc1")
    else:
        a(f"global_load_dword v{V_CELL}, v{t0}, {sr(S_CNT,2)} sc1")
    if "prewarm" in opts:
        a(f"s_cmp_lg_u32 s{S_CHUNK}, 7")
        a("s_cbranch_scc1 L_noprew")
        a(f"v_lshrrev_b32 v{t1}, 2, v{L}")
        a(f"v_and_b32 v{t1}, 7, v{t1}")
        a(f"v_lshlrev_b32 v{t1}, 12, v{t1}")
        a(f"v_and_b32 v{t2}, 3, v{L}")
        a(f"v_lshlrev_b32 v{t2}, 7, v{t2}")
        a(f"s_lshl_b32 s{S_T0}, s{S_WAVE}, 9")
        a(f"v_add_u32 v{t2}, s{S_T0}, v{t2}")
        a(f"v_mov_b32 v{t3}, 2048")
        a(f"v_cmp_gt_u32 vcc, 32, v{L}")
        a("s_nop 1")
        a(f"v_cndmask_b32 v{t2}, v{t3}, v{t2}, vcc")
        a(f"v_add_u32 v{t1}, v{t1}, v{t2}")
        a(f"global_load_dword v{V_X}, v{t1}, {sr(S_PSLOT,2)} sc1")
        a("L_noprew:")
    a(f"v_mul_u32_u24 v{t1}, {NW*8}, v{L}")
    a(f"s_lshl_b32 s{S_T0}, s{S_WAVE}, 3")
    a(f"v_add_u32 v{t1}, s{S_T0}, v{t1}")
    a(f"s_mov_b64 {sr(S_EX,2)}, exec")
    a("s_mov_b64 exec, 0xf")
    a(f"ds_write_b32 v{t1}, v{V_M} offset:{LDS_STAT}")
    a(f"ds_write_b32 v{t1}, v{V_L} offset:{LDS_STAT+4}")
    a(f"s_mov_b64 exec, {sr(S_EX,2)}")
    a("s_waitcnt lgkmcnt(0)")
    stamp(5)

    def pa_read(s_):
        hh, b, m = s_ // 16, (s_ // 4) % 4, (s_ % 4) // 2
        P = V_PA + 4 * ((s_ // 2) % 2)
        off = LDS_P + ((hh * 2 + m) * 4 + b) * 64
        a(f"ds_read_b64 {vr(P,2)}, v{V_PADDR} offset:{off}")
        if use_lo: a(f"ds_read_b64 {vr(P+2,2)}, v{V_PADDR} offset:{off+LO_OFF}")
    for s_ in range(NP):
        n0, n1 = NL + 2 * s_, NL + 2 * s_ + 1
        if s_ % 2 == 0: pa_read(s_)
        wait_for([n0, n1])
        for n in (n0, n1):
            for r in range(4): a(f"v_cvt_f32_i32 v{slot(n)+r}, v{slot(n)+r}")
        for r in range(4):
            a(f"v_cvt_pk_bf16_f32 v{V_PK+2*r+(s_%2)}, v{slot(n0)+r}, v{slot(n1)+r}")
        refill(n1 + 1)
        if s_ == NP - 6:
            a(f"v_add_u32 v{V_CNT}, 1, v{V_CELL}")
            a(f"s_movk_i32 s{S_FF}, 0xff")
            if "fh2" in opts:
                a(f"s_getreg_b32 s{S_T0}, hwreg(HW_REG_XCC_ID, 0, 4)")
                a(f"v_xor_b32 v{V_CELL+2}, v{V_CELL+2}, v{V_CNT}")
                a(f"v_xor_b32 v{V_CELL+3}, s{S_T0}, v{V_CELL+3}")
                a(f"v_or_b32 v{V_CELL+2}, v{V_CELL+2}, v{V_CELL+3}")
                a("s_nop 0")
                a(f"v_readfirstlane_b32 s{S_SAME}, v{V_CELL+2}")
        if s_ % 2 == 1:
            P = V_PA + 4 * ((s_ // 2) % 2)
            a("s_waitcnt lgkmcnt(0)")
            for r in range(4):
                a(f"v_mfma_f32_4x4x4_16b_bf16 {vr(V_ACC+4*r,4)}, {vr(P,2)}, {vr(V_PK+2*r,2)}, {vr(V_ACC+4*r,4)}")
            if use_lo:
                for r in range(4):
                    a(f"v_mfma_f32_4x4x4_16b_bf16 {vr(V_ACC+4*r,4)}, {vr(P+2,2)}, {vr(V_PK+2*r,2)}, {vr(V_ACC+4*r,4)}")
    stamp(6)

    a("s_nop 4")
    for i in range(4):
        a(f"v_permlane32_swap_b32 v{V_ACC+i}, v{V_ACC+8+i}")
        a(f"v_permlane32_swap_b32 v{V_ACC+4+i}, v{V_ACC+12+i}")
    X = V_PK
    for i in range(4):
        a(f"v_add_f32 v{X+2*i}, v{V_ACC+i}, v{V_ACC+8+i}")
        a(f"v_add_f32 v{X+2*i+1}, v{V_ACC+4+i}, v{V_ACC+12+i}")
    for i in range(4):
        a(f"v_subrev_f32_dpp v{X+2*i}, v{V_CZ}, v{X+2*i} quad_perm:[{i},{i},{i},{i}] row_mask:0xf bank_mask:0xf")
        a(f"v_subrev_f32_dpp v{X+2*i+1}, v{V_CZ}, v{X+2*i+1} quad_perm:[{i},{i},{i},{i}] row_mask:0xf bank_mask:0xf")
    a(f"s_lshl_b32 s{S_T0}, s{S_WAVE}, 11")
    a(f"v_lshl_add_u32 v{t1}, v{L}, 3, s{S_T0}")
    for i in range(4):
        a(f"ds_write_b64 v{t1}, {vr(X+2*i,2)} offset:{LDS_RED+512*i}")
    a("s_waitcnt lgkmcnt(0)")
    a("s_barrier")
    stamp(7)
    if NW > 4:
        a(f"s_cmp_ge_u32 s{S_WAVE}, 4")
        a("s_cbranch_scc1 L_fin0" if stamps else "s_cbranch_scc1 L_end")
    Y = V_RING
    a(f"s_lshl_b32 s{S_T0}, s{S_WAVE}, 9")
    a(f"v_lshl_add_u32 v{t1}, v{L}, 3, s{S_T0}")
    a(f"v_and_b32 v{t2}, {NW-1}, v{L}")
    a(f"s_mul_i32 s{S_T0}, s{S_WAVE}, {NW*8}")
    a(f"v_lshl_add_u32 v{t2}, v{t2}, 3, s{S_T0}")
    ST = V_PK + 8
    a(f"ds_read_b64 {vr(ST,2)}, v{t2} offset:{LDS_STAT}")
    for w in range(NW):
        a(f"ds_read_b64 {vr(Y+2*w,2)}, v{t1} offset:{LDS_RED+2048*w}")
    def redn(n, reg, op, src=None):
        src = reg if src is None else src
        r = n // 2
        first = True
        while r >= 1:
            if not first: a("s_nop 1")
            s_ = src if first else reg
            a(f"{op}_dpp v{reg}, v{s_}, v{s_} row_ror:{r} row_mask:0xf bank_mask:0xf")
            first = False
            r //= 2
    al = t3
    O0, O1 = V_S, V_S + 1
    def weights(n, norm):
        redn(n, V_M, "v_max_f32", ST)
        if not norm:
            a(f"v_and_b32 v{V_M}, 0xffffff00, v{V_M}")
        a(f"v_sub_f32 v{al}, v{ST}, v{V_M}")
        a(f"v_exp_f32 v{al}, v{al}")
        a(f"v_mov_b32 v{O0}, 0")
        a(f"v_mul_f32 v{V_L}, v{al}, v{ST+1}")
        a(f"v_mov_b32 v{O1}, 0")
        a("s_nop 0")
        redn(n, V_L, "v_add_f32")
        if norm:
            a(f"v_rcp_f32 v{t0}, v{V_L}")
            a("s_nop 0")
            a(f"v_mul_f32 v{al}, v{al}, v{t0}")
            a("s_nop 1")
    def accumulate(n):
        for w in range(n):
            a(f"v_fmac_f32_dpp v{O0}, v{al}, v{Y+2*w} row_newbcast:{w} row_mask:0xf bank_mask:0xf")
            a(f"v_fmac_f32_dpp v{O1}, v{al}, v{Y+2*w+1} row_newbcast:{w} row_mask:0xf bank_mask:0xf")
    a(f"s_waitcnt lgkmcnt({NW})")
    weights(NW, False)
    a("s_waitcnt lgkmcnt(0)")
    accumulate(NW)
    ML = V_S + 4
    a(f"v_bfi_b32 v{O0}, s{S_FF}, v{V_CNT}, v{O0}")
    a(f"v_bfi_b32 v{O1}, s{S_FF}, v{V_CNT}, v{O1}")
    a(f"v_bfi_b32 v{ML}, s{S_FF}, v{V_CNT}, v{V_M}")
    a(f"v_bfi_b32 v{ML+1}, s{S_FF}, v{V_CNT}, v{V_L}")
    a(f"v_mov_b32 v{ML+2}, v{V_CNT}")
    a(f"v_mov_b32 v{ML+3}, v{V_CNT}")
    a(f"s_lshl_b32 s{S_T0}, s{S_WAVE}, 4")
    a(f"v_mov_b32 v{t0}, s{S_T0}")
    def publish(fl):
        a(f"global_store_dwordx2 v{t1}, {vr(O0,2)}, {sr(S_SLOT,2)}{fl}")
        a("s_mov_b64 exec, 1")
        a(f"global_store_dwordx4 v{t0}, {vr(ML,4)}, {sr(S_SLOT,2)} offset:2048{fl}")
        a("s_mov_b64 exec, -1")
    if "fh2" in opts:
        a(f"s_cmp_eq_u32 s{S_SAME}, 0")
        a("s_cbranch_scc1 L_pubfast")
        publish(" sc1")
        a("s_branch L_pubdone")
        a("L_pubfast:")
        publish("")
        a("L_pubdone:")
    else:
        publish(" sc1")
    stamp(8)
    a(f"s_cmp_lg_u32 s{S_CHUNK}, 7")
    a("s_cbranch_scc1 L_fin0" if stamps else "s_cbranch_scc1 L_end")
    a(f"s_mov_b32 s{S_SPIN}, {spin}")
    a(f"v_and_b32 v{t2}, 7, v{L}")
    a(f"v_lshlrev_b32 v{t2}, 12, v{t2}")
    a(f"v_add_u32 v{t2}, s{S_T0}, v{t2}")
    va = V_PK
    ST = V_PK + 8
    for c in range(8): a(f"v_add_u32 v{va+c}, {c*4096}, v{t1}")
    a("L_poll:")
    a(f"global_load_dwordx4 {vr(ST,4)}, v{t2}, {sr(S_PSLOT,2)} offset:2048 sc1")
    for c in range(8):
        a(f"global_load_dwordx2 {vr(Y+2*c,2)}, v{va+c}, {sr(S_PSLOT,2)} sc1")
    a("s_waitcnt vmcnt(8)")
    a(f"v_xor_b32 v{t0}, v{ST}, v{V_CNT}")
    a(f"v_bitop3_b32 v{t0}, v{ST+1}, v{t0}, v{V_CNT} bitop3:0xde")
    a(f"v_xor_b32 v{t3}, v{ST+2}, v{V_CNT}")
    a(f"v_bitop3_b32 v{t3}, v{ST+3}, v{t3}, v{V_CNT} bitop3:0xde")
    for c in range(8):
        a(f"s_waitcnt vmcnt({7-c})")
        a(f"v_bitop3_b32 v{t0}, v{Y+2*c}, v{t0}, v{V_CNT} bitop3:0xde")
        a(f"v_bitop3_b32 v{t0}, v{Y+2*c+1}, v{t0}, v{V_CNT} bitop3:0xde")
    a(f"v_and_or_b32 v{t0}, v{t0}, s{S_FF}, v{t3}")
    a(f"v_cmp_ne_u32 vcc, 0, v{t0}")
    a("s_cbranch_vccz L_ready")
    a(f"s_sub_u32 s{S_SPIN}, s{S_SPIN}, 1")
    a("s_cbranch_scc0 L_poll")
    a("s_branch L_end")
    a("L_ready:")
    stamp(9)
    a(f"v_and_b32 v{ST}, 0xffffff00, v{ST}")
    a("s_nop 1")
    weights(8, True)
    accumulate(8)
    a(f"v_cvt_pk_bf16_f32 v{t0}, v{O0}, v{O1}")
    a(f"v_and_b32 v{t2}, 31, v{L}")
    a(f"v_lshlrev_b32 v{t2}, 3, v{t2}")
    a(f"v_lshrrev_b32 v{t3}, 5, v{L}")
    a(f"v_lshl_or_b32 v{t2}, v{t3}, 2, v{t2}")
    a(f"s_lshl_b32 s{S_T0}, s{S_PAIR}, 10")
    a(f"s_lshl_b32 s{S_T1}, s{S_WAVE}, 8")
    a(f"s_add_u32 s{S_T0}, s{S_T0}, s{S_T1}")
    a(f"v_add_u32 v{t2}, s{S_T0}, v{t2}")
    oflag = " sc1" if "outsc1" in opts else (" nt" if "outnt" in opts else "")
    a(f"global_store_dword v{t2}, v{t0}, {sr(S_OUT,2)}{oflag}")
    a(f"s_cmp_lg_u32 s{S_WAVE}, 0")
    a("s_cbranch_scc1 L_nocell")
    a(f"v_mov_b32 v{t3}, 0")
    a("s_mov_b64 exec, 1")
    a(f"global_store_dword v{t3}, v{V_CNT}, {sr(S_CNT,2)} sc1")
    a("s_mov_b64 exec, -1")
    a("L_nocell:")
    if stamps and optv("amp", 0):
        stamp(10)
        a("s_waitcnt lgkmcnt(0)")
        K_, ia, ib = optv("amp", 0), optv("ampa", 0), optv("ampb", 10)
        a(f"s_sub_u32 s{S_T0}, s{S_ST+2*ib}, s{S_ST+2*ia}")
        a(f"s_min_u32 s{S_T0}, s{S_T0}, 20000")
        a(f"s_mul_i32 s{S_T0}, s{S_T0}, {K_}")
        a(f"s_add_u32 s{S_T0}, s{S_T0}, s{S_ST+20}")
        a("L_amp:")
        a(f"s_memrealtime s[{S_ST+22}:{S_ST+23}]")
        a("s_waitcnt lgkmcnt(0)")
        a(f"s_sub_u32 s{S_T1}, s{S_ST+22}, s{S_T0}")
        a(f"s_cmp_lt_i32 s{S_T1}, 0")
        a("s_cbranch_scc1 L_amp")
        a("L_fin0:")
    elif stamps:
        stamp(10)
        a("L_fin0:")
        flush_stamps(11)
    a("L_end:")
    a("s_endpgm")
    tail = f""".section .rodata,"a"
.p2align 6
.amdhsa_kernel {KNAME}_kernel
  .amdhsa_next_free_vgpr {NV}
  .amdhsa_next_free_sgpr {96 if stamps else 72}
  .amdhsa_accum_offset {(NV+3)//4*4}
  .amdhsa_group_segment_fixed_size 0
  .amdhsa_kernarg_size 80
  .amdhsa_user_sgpr_count 2
  .amdhsa_user_sgpr_kernarg_segment_ptr 1
  .amdhsa_system_sgpr_workgroup_id_x 1
  .amdhsa_float_denorm_mode_32 3
.end_amdhsa_kernel
"""
    txt = a.text()
    def strip(txt, m0, m1, keep=lambda l: False):
        out=[]; on=False
        for l in txt.split("\n"):
            if m0 in l: on=True
            if m1 in l: on=False
            if on and not keep(l): continue
            out.append(l)
        return "\n".join(out)
    if "noprep" in opts: txt = strip(txt, "MARK prep0", "MARK prep1", lambda l: "s_memrealtime" in l)
    if "nosoft" in opts: txt = strip(txt, "MARK soft0", "MARK soft1", lambda l: False)
    if "novalu" in opts:
        txt = "\n".join(l for l in txt.split("\n") if not (("v_cvt_f32_i32" in l) or ("v_mfma" in l) or ("v_cvt_pk_bf16" in l and "v38" <= l.split()[1][:3] <= "v53") or "v_add_f32_dpp v2" in l or "v_add_f32_dpp v3" in l))
    if "nosmall" in opts:
        txt = "\n".join(l for l in txt.split("\n") if not ("global_load_dwordx2 v[38" in l or "global_load_dwordx2 v[4" in l or "global_load_ushort" in l))
    if "nohand" in opts:
        txt = "\n".join(l for l in txt.split("\n") if not ("global_store_dwordx4" in l or "global_atomic_add" in l or "global_load_dword v22" in l or "global_load_dword v78" in l or "buffer_load_dword v79" in l))
    if "klin" in opts:
        txt = txt.replace("v1, s[24:27], s33 offen offset:256", "v2, s[24:27], s33 offen offset:1024").replace("v1, s[24:27], s33 offen offset:0", "v2, s[24:27], s33 offen offset:0")
    return head + txt + tail, lds

if __name__ == "__main__":
    ap = argparse.ArgumentParser()
    ap.add_argument("--nw", type=int, default=4)
    ap.add_argument("-G", type=int, default=16)
    ap.add_argument("--no-nt", action="store_true")
    ap.add_argument("--lds", type=int, default=0)
    ap.add_argument("--stamps", action="store_true")
    ap.add_argument("--opt", action="append", default=[])
    ap.add_argument("-o", default="cdna_kernels/" + KNAME + ".s")
    args = ap.parse_args()
    s, lds = gen(NW=args.nw, G=args.G, nt=not args.no_nt, lds_force=args.lds, stamps=args.stamps, opts=args.opt)
    open(args.o, "w").write(s)
    print(lds)
```

```python
import sys, math, argparse, struct

KNAME = "standalone__kv_cache_quant_int4_int2_kv_with_per_channel_or_per_token_scales__decode"

class Asm:
    def __init__(self): self.lines = []
    def __call__(self, s=""):
        s = s.strip()
        self.lines.append(s if s.endswith(":") else "    " + s)
    def text(self): return "\n".join(self.lines) + "\n"

def vr(a, n=1): return f"v{a}" if n == 1 else f"v[{a}:{a+n-1}]"
def sr(a, n=1): return f"s{a}" if n == 1 else f"s[{a}:{a+n-1}]"
def f32bits(x): return struct.unpack("<I", struct.pack("<f", x))[0]

def gen(NW=4, G=16, nt=True, lds_force=0, spin=1 << 16, stamps=False, opts=()):
    a = Asm()
    NH = 8 // NW
    NP = 16 * NH
    NL = 2 * NP
    NT = " nt" if nt else ""
    use_lo = "nolo" not in opts
    S_WG = 2; S_WAVE = 3
    S_Q, S_QK, S_QV, S_KS, S_KZ, S_VS, S_VZ, S_OUT = 4, 6, 8, 10, 12, 14, 16, 18
    S_DBG, S_WS = 20, 22
    S_KSRD = 24; S_VSRD = 28
    S_BASE = 32
    S_RUN = 33
    S_PAIR = 40; S_CHUNK = 41; S_T0 = 42; S_T1 = 43
    S_SLOT = 44; S_PSLOT = 46; S_CNT = 48
    S_SPIN = 52
    S_LIN = 53
    S_SAME = 54
    S_FF = 55
    S_EX = 64
    S_ST = 70
    V_LANE = 0; V_OFFK = 1; V_OFFV = 2
    V_T = 3
    V_BHI = 12; V_BLO = 16
    V_NEGC = 20; V_PADDR = 21; V_CNT = 22
    V_M = 23; V_L = 24; V_CZ = 25
    V_S = 26
    V_VS = 34
    V_VZ = 36
    V_PK = 38
    V_D = 54
    V_ACC = 54
    V_PA = 70
    V_X = 78
    V_VSOFF = 11
    V_XC = 79
    V_CELL = 80
    V_RING = 84
    NV = V_RING + 4 * G
    NV = max(NV, V_RING + 24)
    assert NV <= 256
    V_Q = 38; V_KSR = 42; V_KZR = 46

    LDS_P = 0
    LDS_RED = NW * NH * 1024
    LDS_STAT = LDS_RED + NW * 2048
    LDS_TOTAL = LDS_STAT + 4 * NW * 8
    lds = max(LDS_TOTAL, lds_force)
    Cbits = f32bits((128 ** -0.5) * math.log2(math.e))

    def optv(name, default):
        for o in opts:
            if o.startswith(name + "="): return int(o.split("=")[1])
        return default
    queue = []
    def issue(tag): queue.append(tag)
    def wait_for(tags):
        idx = max((queue.index(t) for t in tags if t in queue), default=-1)
        if idx < 0: return
        n = len(queue) - 1 - idx
        assert n <= 63
        a(f"s_waitcnt vmcnt({n})")
        del queue[:idx + 1]

    def stamp(i):
        if stamps: a(f"s_memrealtime s[{S_ST+2*i}:{S_ST+2*i+1}]")
    def flush_stamps(n):
        a("s_waitcnt lgkmcnt(0)")
        vx, va_ = V_X, V_X + 1
        a(f"v_mov_b32 v{vx}, 0")
        for i in range(n): a(f"v_writelane_b32 v{vx}, s{S_ST+2*i}, {i}")
        a(f"s_getreg_b32 s{S_T1}, hwreg(HW_REG_HW_ID)")
        a(f"v_writelane_b32 v{vx}, s{S_T1}, 14")
        a(f"s_getreg_b32 s{S_T1}, hwreg(HW_REG_XCC_ID)")
        a(f"v_writelane_b32 v{vx}, s{S_T1}, 15")
        a(f"s_mul_i32 s{S_T1}, s{S_WG}, {NW}")
        a(f"s_add_u32 s{S_T1}, s{S_T1}, s{S_WAVE}")
        a(f"s_lshl_b32 s{S_T1}, s{S_T1}, 6")
        a(f"s_add_u32 s{S_T1}, s{S_T1}, 0x8000000")
        a(f"v_lshl_add_u32 v{va_}, v{V_LANE}, 2, s{S_T1}")
        a("s_mov_b64 exec, 0xffff")
        a(f"global_store_dword v{va_}, v{vx}, {sr(S_WS,2)}")

    hdr = open("cdna_kernels/" + KNAME + ".s.ref").read().split("\n")
    out = []
    for l in hdr:
        if l.startswith("; @launch"):
            out.append(f"; @launch grid=(256,1,1) block=({NW*64},1,1) lds={lds}")
            break
        out.append(l)
    head = "\n".join(out) + "\n"
    head += f""".amdgcn_target "amdgcn-amd-amdhsa--gfx950"
.text
.globl {KNAME}_kernel
.p2align 8
.type {KNAME}_kernel,@function
{KNAME}_kernel:
"""
    L = V_LANE
    t0, t1, t2, t3 = V_T, V_T + 1, V_T + 2, V_T + 3
    a(f"s_cmp_ge_u32 s{S_WG}, 256")
    a("s_cbranch_scc1 L_end")
    stamp(0)
    a("s_load_dwordx16 s[4:19], s[0:1], 0")
    a("s_load_dwordx4 s[20:23], s[0:1], 64")
    a(f"v_lshrrev_b32 v{t0}, 6, v0")
    a(f"v_and_b32 v{L}, 63, v0")
    a(f"v_readfirstlane_b32 s{S_WAVE}, v{t0}")
    a(f"v_and_b32 v{t0}, 3, v{L}")
    a(f"v_lshrrev_b32 v{t1}, 4, v{L}")
    a(f"v_bfe_u32 v{t2}, v{L}, 2, 2")
    a(f"v_lshlrev_b32 v{V_OFFK}, 4, v{t0}")
    a(f"v_lshl_or_b32 v{V_OFFK}, v{t1}, 6, v{V_OFFK}")
    a(f"v_lshl_or_b32 v{V_OFFK}, v{t2}, 9, v{V_OFFK}")
    a(f"v_lshlrev_b32 v{V_OFFV}, 4, v{L}")
    if "lin" in opts:
        a(f"s_lshr_b32 s{S_PAIR}, s{S_WG}, 3")
        a(f"s_and_b32 s{S_CHUNK}, s{S_WG}, 7")
    else:
        a(f"s_add_u32 s{S_PAIR}, s{S_WG}, {optv('prot', 0)}")
        a(f"s_and_b32 s{S_PAIR}, s{S_PAIR}, 31")
        a(f"s_lshr_b32 s{S_CHUNK}, s{S_WG}, 5")
    a(f"s_lshl_b32 s{S_LIN}, s{S_PAIR}, 3")
    a(f"s_add_u32 s{S_LIN}, s{S_LIN}, s{S_CHUNK}")
    a(f"s_lshl_b32 s{S_T0}, s{S_LIN}, 18")
    a(f"s_lshl_b32 s{S_T1}, s{S_WAVE}, 11")
    a(f"s_add_u32 s{S_BASE}, s{S_T0}, s{S_T1}")
    vq, vks, vkz, vsc = V_T + 4, V_T + 5, V_T + 6, V_VSOFF
    a(f"v_lshlrev_b32 v{vks}, 5, v{t1}")
    a(f"v_lshl_or_b32 v{vkz}, v{t0}, 3, v{vks}")
    a(f"v_lshl_or_b32 v{vks}, v{t2}, 3, v{vks}")
    a(f"v_lshl_or_b32 v{vq}, v{t0}, 8, v{vks}")
    a(f"v_lshl_or_b32 v{vsc}, v{t2}, 2, v{t0}")
    a(f"v_mul_u32_u24 v{vsc}, {NW*8}, v{vsc}")
    a(f"v_lshl_or_b32 v{vsc}, v{t1}, 1, v{vsc}")
    a(f"s_lshl_b32 s{S_T1}, s{S_WAVE}, 3")
    a(f"v_add_u32 v{vsc}, s{S_T1}, v{vsc}")
    a("s_waitcnt lgkmcnt(0)")
    stamp(1)
    for srd, p in ((S_KSRD, S_QK), (S_VSRD, S_QV)):
        a(f"s_mov_b32 s{srd}, s{p}")
        a(f"s_and_b32 s{srd+1}, s{p+1}, 0xffff")
        a(f"s_mov_b32 s{srd+2}, 0x4000000")
        a(f"s_mov_b32 s{srd+3}, 0x20000")

    D0_ = optv("d0", G); N1 = optv("n1", 10**9)
    st = {"next": 0}
    def refill(done):
        depth = D0_ if done < N1 else min(G, D0_ + 2 * ((done - N1) // 2 + 1))
        while st["next"] < min(2 * NL, done + depth):
            issue_big(st["next"]); st["next"] += 1
    def slot(n): return V_RING + 4 * (n % G)
    def issue_big(n):
        if n >= 2 * NL: return
        isK = n < NL
        m = n if isK else n - NL
        piece, sub = m // 2, m % 2
        if sub == 0:
            a(f"s_add_u32 s{S_RUN}, s{S_BASE}, {piece*NW*2048}")
        if isK:
            a(f"buffer_load_dwordx4 {vr(slot(n),4)}, v{V_OFFK}, {sr(S_KSRD,4)}, s{S_RUN} offen offset:{sub*256}{NT}")
        else:
            a(f"buffer_load_dwordx4 {vr(slot(n),4)}, v{V_OFFV}, {sr(S_VSRD,4)}, s{S_RUN} offen offset:{sub*1024}{NT}")
        issue(n)

    nfirst = min(D0_, optv("nfirst", 0))
    for n in range(nfirst): issue_big(n)
    st["next"] = nfirst
    late_v = optv("latev", -1)
    clr_step = optv("clr", -1)
    a(f"s_lshl_b32 s{S_T0}, s{S_PAIR}, 10")
    a(f"s_add_u32 s{S_Q}, s{S_Q}, s{S_T0}")
    a(f"s_addc_u32 s{S_Q+1}, s{S_Q+1}, 0")
    a(f"s_lshr_b32 s{S_T0}, s{S_LIN}, 2")
    a(f"s_lshl_b32 s{S_T0}, s{S_T0}, 8")
    for p in (S_KS, S_KZ):
        a(f"s_add_u32 s{p}, s{p}, s{S_T0}")
        a(f"s_addc_u32 s{p+1}, s{p+1}, 0")
    a(f"s_lshl_b32 s{S_T0}, s{S_LIN}, 10")
    for p in (S_VS, S_VZ):
        a(f"s_add_u32 s{p}, s{p}, s{S_T0}")
        a(f"s_addc_u32 s{p+1}, s{p+1}, 0")
    a(f"global_load_dwordx2 {vr(V_Q,2)}, v{vq}, {sr(S_Q,2)}")
    a(f"global_load_dwordx2 {vr(V_Q+2,2)}, v{vq}, {sr(S_Q,2)} offset:128")
    a(f"global_load_dwordx2 {vr(V_KSR,2)}, v{vks}, {sr(S_KS,2)}")
    a(f"global_load_dwordx2 {vr(V_KSR+2,2)}, v{vks}, {sr(S_KS,2)} offset:128")
    a(f"global_load_dwordx2 {vr(V_KZR,2)}, v{vkz}, {sr(S_KZ,2)}")
    a(f"global_load_dwordx2 {vr(V_KZR+2,2)}, v{vkz}, {sr(S_KZ,2)} offset:128")
    for t in ("q0", "q1", "ks0", "ks1", "kz0", "kz1"): issue(t)
    def load_vsz():
        for hh in range(NH):
            a(f"global_load_ushort v{V_VS+hh}, v{V_VSOFF}, {sr(S_VS,2)} offset:{hh*16*NW*8}"); issue(f"vs{hh}")
            a(f"global_load_ushort v{V_VZ+hh}, v{V_VSOFF}, {sr(S_VZ,2)} offset:{hh*16*NW*8}"); issue(f"vz{hh}")
    if late_v < 0: load_vsz()
    refill(0)
    if "touchv" in opts:
        a(f"v_mov_b32 v{V_X}, 0")
        a(f"buffer_load_dword v{V_X+1}, v{V_X}, {sr(S_VSRD,4)}, s{S_BASE} offen{NT}"); issue("touchv")
    a(f"s_lshl_b32 s{S_T0}, s{S_LIN}, 12")
    a(f"s_add_u32 s{S_SLOT}, s{S_WS}, s{S_T0}")
    a(f"s_addc_u32 s{S_SLOT+1}, s{S_WS+1}, 0")
    a(f"s_lshl_b32 s{S_T0}, s{S_PAIR}, 15")
    a(f"s_add_u32 s{S_PSLOT}, s{S_WS}, s{S_T0}")
    a(f"s_addc_u32 s{S_PSLOT+1}, s{S_WS+1}, 0")
    a(f"s_lshl_b32 s{S_T0}, s{S_PAIR}, 7")
    a(f"s_add_u32 s{S_T0}, s{S_T0}, 0x100000")
    a(f"s_add_u32 s{S_CNT}, s{S_WS}, s{S_T0}")
    a(f"s_addc_u32 s{S_CNT+1}, s{S_WS+1}, 0")
    if "fh2" in opts:
        a(f"v_mov_b32 v{V_CELL+1}, 0")
        a(f"s_cmp_eq_u32 s{S_CHUNK}, 7")
        a(f"s_cselect_b32 s{S_SAME}, s{S_WAVE}, 1")
        a(f"s_cmp_lg_u32 s{S_SAME}, 0")
        a("s_cbranch_scc1 L_noearly")
        a(f"global_load_dword v{V_CELL}, v{V_CELL+1}, {sr(S_CNT,2)} sc1")
        a("L_noearly:")
    def extras():
        if "warmout" in opts:
            a(f"s_cmp_lg_u32 s{S_CHUNK}, 7")
            a("s_cbranch_scc1 L_nowarm")
            a(f"v_mov_b32 v{t0}, 0")
            a(f"global_load_dword v{V_X}, v{t0}, {sr(S_OUT,2)}")
            a("L_nowarm:")
        a(f"v_mov_b32 v{t0}, 0")
        if "fh2" in opts:
            a(f"global_load_dwordx4 {vr(V_CELL,4)}, v{t0}, {sr(S_CNT,2)} sc1")
        else:
            a(f"global_load_dword v{V_CELL}, v{t0}, {sr(S_CNT,2)} sc1")
        if "prewarm" in opts:
            a(f"s_cmp_lg_u32 s{S_CHUNK}, 7")
            a("s_cbranch_scc1 L_noprew")
            a(f"v_lshrrev_b32 v{t1}, 2, v{L}")
            a(f"v_and_b32 v{t1}, 7, v{t1}")
            a(f"v_lshlrev_b32 v{t1}, 12, v{t1}")
            a(f"v_and_b32 v{t2}, 3, v{L}")
            a(f"v_lshlrev_b32 v{t2}, 7, v{t2}")
            a(f"s_lshl_b32 s{S_T0}, s{S_WAVE}, 9")
            a(f"v_add_u32 v{t2}, s{S_T0}, v{t2}")
            a(f"v_mov_b32 v{t3}, 2048")
            a(f"v_cmp_gt_u32 vcc, 32, v{L}")
            a("s_nop 1")
            a(f"v_cndmask_b32 v{t2}, v{t3}, v{t2}, vcc")
            a(f"v_add_u32 v{t1}, v{t1}, v{t2}")
            a(f"global_load_dword v{V_X}, v{t1}, {sr(S_PSLOT,2)} sc1")
            a("L_noprew:")
    a(f"v_lshrrev_b32 v{V_PADDR}, 5, v{L}")
    a(f"v_lshlrev_b32 v{V_PADDR}, 5, v{V_PADDR}")
    a(f"v_lshl_or_b32 v{V_PADDR}, v{t0}, 3, v{V_PADDR}")
    a(f"s_mul_i32 s{S_T1}, s{S_WAVE}, {NH*1024}")
    a(f"v_add_u32 v{V_PADDR}, s{S_T1}, v{V_PADDR}")

    if "early" in opts: extras()
    wait_for(["q0", "q1", "ks0", "ks1", "kz0", "kz1"])
    stamp(2)
    a(f"s_mov_b32 s{S_T0}, 0x{Cbits:08x}")
    a(f"s_mov_b32 s{S_T1}, 0xffff0000")
    x0, x1, y0, y1 = V_T, V_T + 1, V_T + 2, V_T + 3
    for n in range(4):
        a(f"v_lshlrev_b32 v{x0}, 16, v{V_Q+n}")
        a(f"v_and_b32 v{x1}, s{S_T1}, v{V_Q+n}")
        a(f"v_lshlrev_b32 v{y0}, 16, v{V_KSR+n}")
        a(f"v_and_b32 v{y1}, s{S_T1}, v{V_KSR+n}")
        a(f"v_mul_f32 v{x0}, v{x0}, v{y0}")
        a(f"v_mul_f32 v{x1}, v{x1}, v{y1}")
        a(f"v_mul_f32 v{x0}, s{S_T0}, v{x0}")
        a(f"v_mul_f32 v{x1}, s{S_T0}, v{x1}")
        a(f"v_cvt_pk_bf16_f32 v{V_BHI+n}, v{x0}, v{x1}")
        a(f"v_lshlrev_b32 v{y0}, 16, v{V_BHI+n}")
        a(f"v_and_b32 v{y1}, s{S_T1}, v{V_BHI+n}")
        a(f"v_sub_f32 v{x0}, v{x0}, v{y0}")
        a(f"v_sub_f32 v{x1}, v{x1}, v{y1}")
        a(f"v_cvt_pk_bf16_f32 v{V_BLO+n}, v{x0}, v{x1}")
    a("s_nop 1")
    D0 = V_D
    a(f"v_mfma_f32_16x16x32_bf16 {vr(D0,4)}, {vr(V_KZR,4)}, {vr(V_BHI,4)}, 0")
    a(f"v_mfma_f32_16x16x32_bf16 {vr(D0,4)}, {vr(V_KZR,4)}, {vr(V_BLO,4)}, {vr(D0,4)}")
    a("s_nop 7")
    for c in range(4):
        a(f"v_mov_b32_dpp v{V_NEGC}, v{D0+c} quad_perm:[0,1,2,3] row_mask:0xf bank_mask:0x{1<<c:x}")
    a("s_nop 1")
    a(f"v_add_f32_dpp v{V_NEGC}, v{V_NEGC}, v{V_NEGC} row_ror:4 row_mask:0xf bank_mask:0xf")
    a("s_nop 1")
    a(f"v_add_f32_dpp v{V_NEGC}, v{V_NEGC}, v{V_NEGC} row_ror:8 row_mask:0xf bank_mask:0xf")
    a(f"v_sub_f32 v{V_NEGC}, 0, v{V_NEGC}")

    def extract(s):
        hh, b, g = s // 16, (s // 4) % 4, s % 4
        D = V_D + 4 * (s % 4)
        first = True
        for c in range(4):
            rot = (4 * (b - c)) % 16
            ctl = f"row_ror:{rot}" if rot else "quad_perm:[0,1,2,3]"
            dst = V_S + 4 * hh + g
            src1 = V_NEGC if first else dst
            a(f"v_add_f32_dpp v{dst}, v{D+c}, v{src1} {ctl} row_mask:0xf bank_mask:0x{1<<b:x}")
            first = False
    pend = None
    for s in range(NP):
        n0, n1 = 2 * s, 2 * s + 1
        PK = V_PK + 4 * (s % 2)
        if "finek" in opts:
            for jj, n in enumerate((n0, n1)):
                wait_for([n])
                if s == 0 and jj == 0: stamp(3)
                for r in range(4): a(f"v_cvt_f32_i32 v{slot(n)+r}, v{slot(n)+r}")
                a(f"v_cvt_pk_bf16_f32 v{PK+2*jj}, v{slot(n)}, v{slot(n)+1}")
                a(f"v_cvt_pk_bf16_f32 v{PK+2*jj+1}, v{slot(n)+2}, v{slot(n)+3}")
                refill(n + 1)
            a("s_nop 0")
        else:
            wait_for([n0, n1])
            if s == 0: stamp(3)
            for n in (n0, n1):
                for r in range(4): a(f"v_cvt_f32_i32 v{slot(n)+r}, v{slot(n)+r}")
            for jj, n in enumerate((n0, n1)):
                a(f"v_cvt_pk_bf16_f32 v{PK+2*jj}, v{slot(n)}, v{slot(n)+1}")
                a(f"v_cvt_pk_bf16_f32 v{PK+2*jj+1}, v{slot(n)+2}, v{slot(n)+3}")
            refill(n1 + 1)
        D = V_D + 4 * (s % 4)
        a(f"v_mfma_f32_16x16x32_bf16 {vr(D,4)}, {vr(PK,4)}, {vr(V_BHI,4)}, 0")
        a(f"v_mfma_f32_16x16x32_bf16 {vr(D,4)}, {vr(PK,4)}, {vr(V_BLO,4)}, {vr(D,4)}")
        if pend is not None: extract(pend)
        if s == 1:
            pass
        pend = s
        if s == late_v: load_vsz()
        if "fh2" in opts and s == D0_ // 2 + 2:
            a(f"s_cmp_lg_u32 s{S_SAME}, 0")
            a("s_cbranch_scc1 L_noann")
            a(f"v_add_u32 v{V_CELL+2}, 1, v{V_CELL}")
            a(f"s_getreg_b32 s{S_T0}, hwreg(HW_REG_XCC_ID, 0, 4)")
            a(f"v_mov_b32 v{V_CELL+3}, s{S_T0}")
            a("s_mov_b64 exec, 1")
            a(f"global_store_dwordx2 v{V_CELL+1}, {vr(V_CELL+2,2)}, {sr(S_CNT,2)} offset:8 sc1")
            a("s_mov_b64 exec, -1")
            a("L_noann:")
    a("s_nop 7")
    extract(pend)
    stamp(4)

    S = V_S
    NS = 4 * NH
    a(f"v_max3_f32 v{V_M}, v{S}, v{S+1}, v{S+2}")
    i = 3
    while i < NS:
        if i + 1 < NS:
            a(f"v_max3_f32 v{V_M}, v{V_M}, v{S+i}, v{S+i+1}"); i += 2
        else:
            a(f"v_max_f32 v{V_M}, v{V_M}, v{S+i}"); i += 1
    def allred(reg, op, tmp):
        a("s_nop 1")
        a(f"{op}_dpp v{reg}, v{reg}, v{reg} row_ror:4 row_mask:0xf bank_mask:0xf")
        a("s_nop 1")
        a(f"{op}_dpp v{reg}, v{reg}, v{reg} row_ror:8 row_mask:0xf bank_mask:0xf")
        a(f"v_mov_b32 v{tmp}, v{reg}")
        a("s_nop 1")
        a(f"v_permlane16_swap_b32 v{tmp}, v{reg}")
        a(f"{op} v{reg}, v{reg}, v{tmp}")
        a(f"v_mov_b32 v{tmp}, v{reg}")
        a("s_nop 1")
        a(f"v_permlane32_swap_b32 v{tmp}, v{reg}")
        a(f"{op} v{reg}, v{reg}, v{tmp}")
    allred(V_M, "v_max_f32", t0)
    for g in range(NS): a(f"v_sub_f32 v{S+g}, v{S+g}, v{V_M}")
    for g in range(NS): a(f"v_exp_f32 v{S+g}, v{S+g}")
    wait_for([f"vs{h}" for h in range(NH)] + [f"vz{h}" for h in range(NH)])
    for hh in range(NH):
        a(f"v_lshlrev_b32 v{V_VS+hh}, 16, v{V_VS+hh}")
        a(f"v_lshlrev_b32 v{V_VZ+hh}, 16, v{V_VZ+hh}")
    a(f"v_add_f32 v{V_L}, v{S}, v{S+1}")
    for g in range(2, NS): a(f"v_add_f32 v{V_L}, v{V_L}, v{S+g}")
    for hh in range(NH):
        for g in range(4):
            a(f"v_mul_f32_dpp v{S+4*hh+g}, v{V_VS+hh}, v{S+4*hh+g} quad_perm:[{g},{g},{g},{g}] row_mask:0xf bank_mask:0xf")
    a(f"s_mov_b32 s{S_T1}, 0xffff0000")
    a(f"v_bfe_u32 v{t1}, v{L}, 2, 2")
    a(f"v_lshlrev_b32 v{t1}, 6, v{t1}")
    a(f"v_bfe_u32 v{t2}, v{L}, 4, 1")
    a(f"v_lshl_or_b32 v{t1}, v{t2}, 5, v{t1}")
    a(f"v_and_b32 v{t2}, 3, v{L}")
    a(f"v_lshl_or_b32 v{t1}, v{t2}, 3, v{t1}")
    a(f"v_lshrrev_b32 v{t2}, 5, v{L}")
    a(f"v_lshl_or_b32 v{t1}, v{t2}, 2, v{t1}")
    a(f"s_mul_i32 s{S_T0}, s{S_WAVE}, {NH*1024}")
    a(f"v_add_u32 v{t1}, s{S_T0}, v{t1}")
    u = V_T + 4
    w_ = V_PK
    hi, lo = V_PA, V_PA + 2
    LO_OFF = NH * 512
    for hh in range(NH):
        Sh = S + 4 * hh
        a(f"v_cvt_pk_bf16_f32 v{hi}, v{Sh}, v{Sh+1}")
        a(f"v_cvt_pk_bf16_f32 v{hi+1}, v{Sh+2}, v{Sh+3}")
        a(f"v_lshlrev_b32 v{u}, 16, v{hi}")
        a(f"v_and_b32 v{u+1}, s{S_T1}, v{hi}")
        a(f"v_lshlrev_b32 v{u+2}, 16, v{hi+1}")
        a(f"v_and_b32 v{u+3}, s{S_T1}, v{hi+1}")
        if use_lo:
            for g in range(4): a(f"v_sub_f32 v{Sh+g}, v{Sh+g}, v{u+g}")
            a(f"v_cvt_pk_bf16_f32 v{lo}, v{Sh}, v{Sh+1}")
            a(f"v_cvt_pk_bf16_f32 v{lo+1}, v{Sh+2}, v{Sh+3}")
            a(f"v_lshlrev_b32 v{w_}, 16, v{lo}")
            a(f"v_and_b32 v{w_+1}, s{S_T1}, v{lo}")
            a(f"v_lshlrev_b32 v{w_+2}, 16, v{lo+1}")
            a(f"v_and_b32 v{w_+3}, s{S_T1}, v{lo+1}")
            for g in range(4): a(f"v_add_f32 v{Sh+g}, v{w_+g}, v{u+g}")
            src = Sh
        else:
            src = u
        for g in range(4):
            op = "v_mul_f32_dpp" if (hh == 0 and g == 0) else "v_fmac_f32_dpp"
            a(f"{op} v{V_CZ}, v{V_VZ+hh}, v{src+g} quad_perm:[{g},{g},{g},{g}] row_mask:0xf bank_mask:0xf")
        for base, off in ((u, 0),) + (((w_, LO_OFF),) if use_lo else ()):
            a(f"v_permlane32_swap_b32 v{base}, v{base+1}")
            a(f"v_permlane32_swap_b32 v{base+2}, v{base+3}")
            a(f"v_cvt_pk_bf16_f32 v{base}, v{base}, v{base+1}")
            a(f"v_cvt_pk_bf16_f32 v{base+2}, v{base+2}, v{base+3}")
            a(f"ds_write_b32 v{t1}, v{base} offset:{LDS_P+off+(hh*2)*256}")
            a(f"ds_write_b32 v{t1}, v{base+2} offset:{LDS_P+off+(hh*2+1)*256}")
    allred(V_L, "v_add_f32", t0)
    allred(V_CZ, "v_add_f32", t0)
    for i in range(16): a(f"v_mov_b32 v{V_ACC+i}, 0")
    if "early" not in opts: extras()
    a(f"v_mul_u32_u24 v{t1}, {NW*8}, v{L}")
    a(f"s_lshl_b32 s{S_T0}, s{S_WAVE}, 3")
    a(f"v_add_u32 v{t1}, s{S_T0}, v{t1}")
    a(f"s_mov_b64 {sr(S_EX,2)}, exec")
    a("s_mov_b64 exec, 0xf")
    a(f"ds_write_b32 v{t1}, v{V_M} offset:{LDS_STAT}")
    a(f"ds_write_b32 v{t1}, v{V_L} offset:{LDS_STAT+4}")
    a(f"s_mov_b64 exec, {sr(S_EX,2)}")
    a("s_waitcnt lgkmcnt(0)")
    stamp(5)

    def pa_read(s_):
        hh, b, m = s_ // 16, (s_ // 4) % 4, (s_ % 4) // 2
        P = V_PA + 4 * ((s_ // 2) % 2)
        off = LDS_P + ((hh * 2 + m) * 4 + b) * 64
        a(f"ds_read_b64 {vr(P,2)}, v{V_PADDR} offset:{off}")
        if use_lo: a(f"ds_read_b64 {vr(P+2,2)}, v{V_PADDR} offset:{off+LO_OFF}")
    for s_ in range(NP):
        n0, n1 = NL + 2 * s_, NL + 2 * s_ + 1
        if s_ % 2 == 0: pa_read(s_)
        wait_for([n0, n1])
        for n in (n0, n1):
            for r in range(4): a(f"v_cvt_f32_i32 v{slot(n)+r}, v{slot(n)+r}")
        for r in range(4):
            a(f"v_cvt_pk_bf16_f32 v{V_PK+2*r+(s_%2)}, v{slot(n0)+r}, v{slot(n1)+r}")
        refill(n1 + 1)
        if s_ == NP - 6:
            a(f"v_add_u32 v{V_CNT}, 1, v{V_CELL}")
            a(f"s_movk_i32 s{S_FF}, 0xff")
            if "fh2" in opts:
                a(f"s_getreg_b32 s{S_T0}, hwreg(HW_REG_XCC_ID, 0, 4)")
                a(f"v_xor_b32 v{V_CELL+2}, v{V_CELL+2}, v{V_CNT}")
                a(f"v_xor_b32 v{V_CELL+3}, s{S_T0}, v{V_CELL+3}")
                a(f"v_or_b32 v{V_CELL+2}, v{V_CELL+2}, v{V_CELL+3}")
                a("s_nop 0")
                a(f"v_readfirstlane_b32 s{S_SAME}, v{V_CELL+2}")
        if s_ % 2 == 1:
            P = V_PA + 4 * ((s_ // 2) % 2)
            a("s_waitcnt lgkmcnt(0)")
            for r in range(4):
                a(f"v_mfma_f32_4x4x4_16b_bf16 {vr(V_ACC+4*r,4)}, {vr(P,2)}, {vr(V_PK+2*r,2)}, {vr(V_ACC+4*r,4)}")
            if use_lo:
                for r in range(4):
                    a(f"v_mfma_f32_4x4x4_16b_bf16 {vr(V_ACC+4*r,4)}, {vr(P+2,2)}, {vr(V_PK+2*r,2)}, {vr(V_ACC+4*r,4)}")
    stamp(6)

    a("s_nop 4")
    for i in range(4):
        a(f"v_permlane32_swap_b32 v{V_ACC+i}, v{V_ACC+8+i}")
        a(f"v_permlane32_swap_b32 v{V_ACC+4+i}, v{V_ACC+12+i}")
    X = V_PK
    for i in range(4):
        a(f"v_add_f32 v{X+2*i}, v{V_ACC+i}, v{V_ACC+8+i}")
        a(f"v_add_f32 v{X+2*i+1}, v{V_ACC+4+i}, v{V_ACC+12+i}")
    for i in range(4):
        a(f"v_subrev_f32_dpp v{X+2*i}, v{V_CZ}, v{X+2*i} quad_perm:[{i},{i},{i},{i}] row_mask:0xf bank_mask:0xf")
        a(f"v_subrev_f32_dpp v{X+2*i+1}, v{V_CZ}, v{X+2*i+1} quad_perm:[{i},{i},{i},{i}] row_mask:0xf bank_mask:0xf")
    a(f"s_lshl_b32 s{S_T0}, s{S_WAVE}, 11")
    a(f"v_lshl_add_u32 v{t1}, v{L}, 3, s{S_T0}")
    for i in range(4):
        a(f"ds_write_b64 v{t1}, {vr(X+2*i,2)} offset:{LDS_RED+512*i}")
    a("s_waitcnt lgkmcnt(0)")
    a("s_barrier")
    stamp(7)
    if NW > 4:
        a(f"s_cmp_ge_u32 s{S_WAVE}, 4")
        a("s_cbranch_scc1 L_fin0" if stamps else "s_cbranch_scc1 L_end")
    Y = V_RING
    a(f"s_lshl_b32 s{S_T0}, s{S_WAVE}, 9")
    a(f"v_lshl_add_u32 v{t1}, v{L}, 3, s{S_T0}")
    a(f"v_and_b32 v{t2}, {NW-1}, v{L}")
    a(f"s_mul_i32 s{S_T0}, s{S_WAVE}, {NW*8}")
    a(f"v_lshl_add_u32 v{t2}, v{t2}, 3, s{S_T0}")
    ST = V_PK + 8
    a(f"ds_read_b64 {vr(ST,2)}, v{t2} offset:{LDS_STAT}")
    for w in range(NW):
        a(f"ds_read_b64 {vr(Y+2*w,2)}, v{t1} offset:{LDS_RED+2048*w}")
    def redn(n, reg, op, src=None):
        src = reg if src is None else src
        r = n // 2
        first = True
        while r >= 1:
            if not first: a("s_nop 1")
            s_ = src if first else reg
            a(f"{op}_dpp v{reg}, v{s_}, v{s_} row_ror:{r} row_mask:0xf bank_mask:0xf")
            first = False
            r //= 2
    al = t3
    O0, O1 = V_S, V_S + 1
    def weights(n, norm):
        redn(n, V_M, "v_max_f32", ST)
        if not norm:
            a(f"v_and_b32 v{V_M}, 0xffffff00, v{V_M}")
        a(f"v_sub_f32 v{al}, v{ST}, v{V_M}")
        a(f"v_exp_f32 v{al}, v{al}")
        a(f"v_mov_b32 v{O0}, 0")
        a(f"v_mul_f32 v{V_L}, v{al}, v{ST+1}")
        a(f"v_mov_b32 v{O1}, 0")
        a("s_nop 0")
        redn(n, V_L, "v_add_f32")
        if norm:
            a(f"v_rcp_f32 v{t0}, v{V_L}")
            a("s_nop 0")
            a(f"v_mul_f32 v{al}, v{al}, v{t0}")
            a("s_nop 1")
    def accumulate(n):
        for w in range(n):
            a(f"v_fmac_f32_dpp v{O0}, v{al}, v{Y+2*w} row_newbcast:{w} row_mask:0xf bank_mask:0xf")
            a(f"v_fmac_f32_dpp v{O1}, v{al}, v{Y+2*w+1} row_newbcast:{w} row_mask:0xf bank_mask:0xf")
    a(f"s_waitcnt lgkmcnt({NW})")
    weights(NW, False)
    a("s_waitcnt lgkmcnt(0)")
    accumulate(NW)
    ML = V_S + 4
    a(f"v_bfi_b32 v{O0}, s{S_FF}, v{V_CNT}, v{O0}")
    a(f"v_bfi_b32 v{O1}, s{S_FF}, v{V_CNT}, v{O1}")
    a(f"v_bfi_b32 v{ML}, s{S_FF}, v{V_CNT}, v{V_M}")
    a(f"v_bfi_b32 v{ML+1}, s{S_FF}, v{V_CNT}, v{V_L}")
    a(f"v_mov_b32 v{ML+2}, v{V_CNT}")
    a(f"v_mov_b32 v{ML+3}, v{V_CNT}")
    a(f"s_lshl_b32 s{S_T0}, s{S_WAVE}, 4")
    a(f"v_mov_b32 v{t0}, s{S_T0}")
    def publish(fl):
        a(f"global_store_dwordx2 v{t1}, {vr(O0,2)}, {sr(S_SLOT,2)}{fl}")
        a("s_mov_b64 exec, 1")
        a(f"global_store_dwordx4 v{t0}, {vr(ML,4)}, {sr(S_SLOT,2)} offset:2048{fl}")
        a("s_mov_b64 exec, -1")
    if "fh2" in opts:
        a(f"s_cmp_eq_u32 s{S_SAME}, 0")
        a("s_cbranch_scc1 L_pubfast")
        publish(" sc1")
        a("s_branch L_pubdone")
        a("L_pubfast:")
        publish("")
        a("L_pubdone:")
    else:
        publish(" sc1")
    stamp(8)
    a(f"s_cmp_lg_u32 s{S_CHUNK}, 7")
    a("s_cbranch_scc1 L_fin0" if stamps else "s_cbranch_scc1 L_end")
    a(f"s_mov_b32 s{S_SPIN}, {spin}")
    a(f"v_and_b32 v{t2}, 7, v{L}")
    a(f"v_lshlrev_b32 v{t2}, 12, v{t2}")
    a(f"v_add_u32 v{t2}, s{S_T0}, v{t2}")
    va = V_PK
    ST = V_PK + 8
    for c in range(8): a(f"v_add_u32 v{va+c}, {c*4096}, v{t1}")
    a("L_poll:")
    a(f"global_load_dwordx4 {vr(ST,4)}, v{t2}, {sr(S_PSLOT,2)} offset:2048 sc1")
    for c in range(8):
        a(f"global_load_dwordx2 {vr(Y+2*c,2)}, v{va+c}, {sr(S_PSLOT,2)} sc1")
    a("s_waitcnt vmcnt(8)")
    a(f"v_xor_b32 v{t0}, v{ST}, v{V_CNT}")
    a(f"v_bitop3_b32 v{t0}, v{ST+1}, v{t0}, v{V_CNT} bitop3:0xde")
    a(f"v_xor_b32 v{t3}, v{ST+2}, v{V_CNT}")
    a(f"v_bitop3_b32 v{t3}, v{ST+3}, v{t3}, v{V_CNT} bitop3:0xde")
    for c in range(8):
        a(f"s_waitcnt vmcnt({7-c})")
        a(f"v_bitop3_b32 v{t0}, v{Y+2*c}, v{t0}, v{V_CNT} bitop3:0xde")
        a(f"v_bitop3_b32 v{t0}, v{Y+2*c+1}, v{t0}, v{V_CNT} bitop3:0xde")
    a(f"v_and_or_b32 v{t0}, v{t0}, s{S_FF}, v{t3}")
    a(f"v_cmp_ne_u32 vcc, 0, v{t0}")
    a("s_cbranch_vccz L_ready")
    a(f"s_sub_u32 s{S_SPIN}, s{S_SPIN}, 1")
    a("s_cbranch_scc0 L_poll")
    a("s_branch L_end")
    a("L_ready:")
    stamp(9)
    a(f"v_and_b32 v{ST}, 0xffffff00, v{ST}")
    a("s_nop 1")
    weights(8, True)
    accumulate(8)
    a(f"v_cvt_pk_bf16_f32 v{t0}, v{O0}, v{O1}")
    a(f"v_and_b32 v{t2}, 31, v{L}")
    a(f"v_lshlrev_b32 v{t2}, 3, v{t2}")
    a(f"v_lshrrev_b32 v{t3}, 5, v{L}")
    a(f"v_lshl_or_b32 v{t2}, v{t3}, 2, v{t2}")
    a(f"s_lshl_b32 s{S_T0}, s{S_PAIR}, 10")
    a(f"s_lshl_b32 s{S_T1}, s{S_WAVE}, 8")
    a(f"s_add_u32 s{S_T0}, s{S_T0}, s{S_T1}")
    a(f"v_add_u32 v{t2}, s{S_T0}, v{t2}")
    oflag = " sc1" if "outsc1" in opts else (" nt" if "outnt" in opts else "")
    a(f"global_store_dword v{t2}, v{t0}, {sr(S_OUT,2)}{oflag}")
    a(f"s_cmp_lg_u32 s{S_WAVE}, 0")
    a("s_cbranch_scc1 L_nocell")
    a(f"v_mov_b32 v{t3}, 0")
    a("s_mov_b64 exec, 1")
    a(f"global_store_dword v{t3}, v{V_CNT}, {sr(S_CNT,2)} sc1")
    a("s_mov_b64 exec, -1")
    a("L_nocell:")
    if stamps and optv("amp", 0):
        stamp(10)
        a("s_waitcnt lgkmcnt(0)")
        K_, ia, ib = optv("amp", 0), optv("ampa", 0), optv("ampb", 10)
        a(f"s_sub_u32 s{S_T0}, s{S_ST+2*ib}, s{S_ST+2*ia}")
        a(f"s_min_u32 s{S_T0}, s{S_T0}, 20000")
        a(f"s_mul_i32 s{S_T0}, s{S_T0}, {K_}")
        a(f"s_add_u32 s{S_T0}, s{S_T0}, s{S_ST+20}")
        a("L_amp:")
        a(f"s_memrealtime s[{S_ST+22}:{S_ST+23}]")
        a("s_waitcnt lgkmcnt(0)")
        a(f"s_sub_u32 s{S_T1}, s{S_ST+22}, s{S_T0}")
        a(f"s_cmp_lt_i32 s{S_T1}, 0")
        a("s_cbranch_scc1 L_amp")
        a("L_fin0:")
    elif stamps:
        stamp(10)
        a("L_fin0:")
        flush_stamps(11)
    a("L_end:")
    a("s_endpgm")
    tail = f""".section .rodata,"a"
.p2align 6
.amdhsa_kernel {KNAME}_kernel
  .amdhsa_next_free_vgpr {NV}
  .amdhsa_next_free_sgpr {96 if stamps else 72}
  .amdhsa_accum_offset {(NV+3)//4*4}
  .amdhsa_group_segment_fixed_size 0
  .amdhsa_kernarg_size 80
  .amdhsa_user_sgpr_count 2
  .amdhsa_user_sgpr_kernarg_segment_ptr 1
  .amdhsa_system_sgpr_workgroup_id_x 1
  .amdhsa_float_denorm_mode_32 3
.end_amdhsa_kernel
"""
    txt = a.text()
    def strip(txt, m0, m1, keep=lambda l: False):
        out=[]; on=False
        for l in txt.split("\n"):
            if m0 in l: on=True
            if m1 in l: on=False
            if on and not keep(l): continue
            out.append(l)
        return "\n".join(out)
    if "noprep" in opts: txt = strip(txt, "MARK prep0", "MARK prep1", lambda l: "s_memrealtime" in l)
    if "nosoft" in opts: txt = strip(txt, "MARK soft0", "MARK soft1", lambda l: False)
    if "novalu" in opts:
        txt = "\n".join(l for l in txt.split("\n") if not (("v_cvt_f32_i32" in l) or ("v_mfma" in l) or ("v_cvt_pk_bf16" in l and "v38" <= l.split()[1][:3] <= "v53") or "v_add_f32_dpp v2" in l or "v_add_f32_dpp v3" in l))
    if "nosmall" in opts:
        txt = "\n".join(l for l in txt.split("\n") if not ("global_load_dwordx2 v[38" in l or "global_load_dwordx2 v[4" in l or "global_load_ushort" in l))
    if "nohand" in opts:
        txt = "\n".join(l for l in txt.split("\n") if not ("global_store_dwordx4" in l or "global_atomic_add" in l or "global_load_dword v22" in l or "global_load_dword v78" in l or "buffer_load_dword v79" in l))
    if "klin" in opts:
        txt = txt.replace("v1, s[24:27], s33 offen offset:256", "v2, s[24:27], s33 offen offset:1024").replace("v1, s[24:27], s33 offen offset:0", "v2, s[24:27], s33 offen offset:0")
    return head + txt + tail, lds

if __name__ == "__main__":
    ap = argparse.ArgumentParser()
    ap.add_argument("--nw", type=int, default=4)
    ap.add_argument("-G", type=int, default=16)
    ap.add_argument("--no-nt", action="store_true")
    ap.add_argument("--lds", type=int, default=0)
    ap.add_argument("--stamps", action="store_true")
    ap.add_argument("--opt", action="append", default=[])
    ap.add_argument("-o", default="cdna_kernels/" + KNAME + ".s")
    args = ap.parse_args()
    s, lds = gen(NW=args.nw, G=args.G, nt=not args.no_nt, lds_force=args.lds, stamps=args.stamps, opts=args.opt)
    open(args.o, "w").write(s)
    print(lds)
```

```python
import sys, math, argparse, struct

KNAME = "standalone__kv_cache_quant_int4_int2_kv_with_per_channel_or_per_token_scales__decode"

class Asm:
    def __init__(self): self.lines = []
    def __call__(self, s=""):
        s = s.strip()
        self.lines.append(s if s.endswith(":") else "    " + s)
    def text(self): return "\n".join(self.lines) + "\n"

def vr(a, n=1): return f"v{a}" if n == 1 else f"v[{a}:{a+n-1}]"
def sr(a, n=1): return f"s{a}" if n == 1 else f"s[{a}:{a+n-1}]"
def f32bits(x): return struct.unpack("<I", struct.pack("<f", x))[0]

def gen(NW=4, G=16, nt=True, lds_force=0, spin=1 << 16, stamps=False, opts=()):
    a = Asm()
    def optv(name, default):
        for o in opts:
            if o.startswith(name + "="): return int(o.split("=")[1])
        return default
    NH = 8 // NW
    NP = 16 * NH
    NL = 2 * NP
    NT = " nt" if nt else ""
    use_lo = "nolo" not in opts
    qnolo = "qnolo" in opts
    S_WG = 2; S_WAVE = 3
    S_Q, S_QK, S_QV, S_KS, S_KZ, S_VS, S_VZ, S_OUT = 4, 6, 8, 10, 12, 14, 16, 18
    S_DBG, S_WS = 20, 22
    S_KSRD = 24; S_VSRD = 28
    S_BASE = 32
    S_RUN = 33
    S_PAIR = 40; S_CHUNK = 41; S_T0 = 42; S_T1 = 43
    S_SLOT = 44; S_PSLOT = 46; S_CNT = 48
    S_SPIN = 52
    S_LIN = 53
    S_SAME = 54
    S_FF = 55
    S_CELL = 56
    S_EX = 64
    S_ST = 70
    V_LANE = 0; V_OFFK = 1; V_OFFV = 2
    V_T = 3
    V_BHI = 12; V_BLO = 16
    V_NEGC = 20; V_PADDR = 21; V_CNT = 22
    V_M = 23; V_L = 24; V_CZ = 25
    V_S = 26
    V_VS = 34
    V_VZ = 36
    V_PK = 38
    V_D = 54
    V_ACC = 54
    V_PA = 70
    V_X = 78
    V_VSOFF = 11
    V_XC = 79
    V_CELL = 80
    V_RING = 84
    NV = V_RING + 4 * G
    NV = max(NV, V_RING + 24) + 4 * optv('park', 0)
    assert NV <= 256
    V_Q = 38; V_KSR = 42; V_KZR = 46

    LDS_P = 0
    LDS_RED = NW * NH * 1024
    LDS_STAT = LDS_RED + NW * 2048
    LDS_TOTAL = LDS_STAT + 4 * NW * 8
    lds = max(LDS_TOTAL, lds_force)
    Cbits = f32bits((128 ** -0.5) * math.log2(math.e))

    queue = []
    def issue(tag): queue.append(tag)
    def wait_for(tags):
        idx = max((queue.index(t) for t in tags if t in queue), default=-1)
        if idx < 0: return
        n = len(queue) - 1 - idx
        assert n <= 63
        a(f"s_waitcnt vmcnt({n})")
        del queue[:idx + 1]

    def stamp(i):
        if stamps: a(f"s_memrealtime s[{S_ST+2*i}:{S_ST+2*i+1}]")
    def flush_stamps(n):
        a("s_waitcnt lgkmcnt(0)")
        vx, va_ = V_X, V_X + 1
        a(f"v_mov_b32 v{vx}, 0")
        for i in range(n): a(f"v_writelane_b32 v{vx}, s{S_ST+2*i}, {i}")
        a(f"s_getreg_b32 s{S_T1}, hwreg(HW_REG_HW_ID)")
        a(f"v_writelane_b32 v{vx}, s{S_T1}, 14")
        a(f"s_getreg_b32 s{S_T1}, hwreg(HW_REG_XCC_ID)")
        a(f"v_writelane_b32 v{vx}, s{S_T1}, 15")
        a(f"s_mul_i32 s{S_T1}, s{S_WG}, {NW}")
        a(f"s_add_u32 s{S_T1}, s{S_T1}, s{S_WAVE}")
        a(f"s_lshl_b32 s{S_T1}, s{S_T1}, 6")
        a(f"s_add_u32 s{S_T1}, s{S_T1}, 0x8000000")
        a(f"v_lshl_add_u32 v{va_}, v{V_LANE}, 2, s{S_T1}")
        a("s_mov_b64 exec, 0xffff")
        a(f"global_store_dword v{va_}, v{vx}, {sr(S_WS,2)}")

    hdr = open("cdna_kernels/" + KNAME + ".s.ref").read().split("\n")
    out = []
    for l in hdr:
        if l.startswith("; @launch"):
            out.append(f"; @launch grid=(256,1,1) block=({NW*64},1,1) lds={lds}")
            break
        out.append(l)
    head = "\n".join(out) + "\n"
    head += f""".amdgcn_target "amdgcn-amd-amdhsa--gfx950"
.text
.globl {KNAME}_kernel
.p2align 8
.type {KNAME}_kernel,@function
{KNAME}_kernel:
"""
    L = V_LANE
    t0, t1, t2, t3 = V_T, V_T + 1, V_T + 2, V_T + 3
    a(f"s_cmp_ge_u32 s{S_WG}, 256")
    a("s_cbranch_scc1 L_end")
    stamp(0)
    a("s_load_dwordx16 s[4:19], s[0:1], 0")
    a("s_load_dwordx4 s[20:23], s[0:1], 64")
    a(f"v_lshrrev_b32 v{t0}, 6, v0")
    a(f"v_and_b32 v{L}, 63, v0")
    a(f"v_readfirstlane_b32 s{S_WAVE}, v{t0}")
    a(f"v_and_b32 v{t0}, 3, v{L}")
    a(f"v_lshrrev_b32 v{t1}, 4, v{L}")
    a(f"v_bfe_u32 v{t2}, v{L}, 2, 2")
    a(f"v_lshlrev_b32 v{V_OFFK}, 4, v{t0}")
    a(f"v_lshl_or_b32 v{V_OFFK}, v{t1}, 6, v{V_OFFK}")
    a(f"v_lshl_or_b32 v{V_OFFK}, v{t2}, 9, v{V_OFFK}")
    a(f"v_lshlrev_b32 v{V_OFFV}, 4, v{L}")
    if "lin" in opts:
        a(f"s_lshr_b32 s{S_PAIR}, s{S_WG}, 3")
        a(f"s_and_b32 s{S_CHUNK}, s{S_WG}, 7")
    else:
        a(f"s_add_u32 s{S_PAIR}, s{S_WG}, {optv('prot', 0)}")
        a(f"s_and_b32 s{S_PAIR}, s{S_PAIR}, 31")
        a(f"s_lshr_b32 s{S_CHUNK}, s{S_WG}, 5")
    a(f"s_lshl_b32 s{S_LIN}, s{S_PAIR}, 3")
    a(f"s_add_u32 s{S_LIN}, s{S_LIN}, s{S_CHUNK}")
    a(f"s_lshl_b32 s{S_T0}, s{S_LIN}, 18")
    a(f"s_lshl_b32 s{S_T1}, s{S_WAVE}, 11")
    a(f"s_add_u32 s{S_BASE}, s{S_T0}, s{S_T1}")
    vq, vks, vkz, vsc = V_T + 4, V_T + 5, V_T + 6, V_VSOFF
    a(f"v_lshlrev_b32 v{vks}, 5, v{t1}")
    a(f"v_lshl_or_b32 v{vkz}, v{t0}, 3, v{vks}")
    a(f"v_lshl_or_b32 v{vks}, v{t2}, 3, v{vks}")
    a(f"v_lshl_or_b32 v{vq}, v{t0}, 8, v{vks}")
    a(f"v_lshl_or_b32 v{vsc}, v{t2}, 2, v{t0}")
    a(f"v_mul_u32_u24 v{vsc}, {NW*8}, v{vsc}")
    a(f"v_lshl_or_b32 v{vsc}, v{t1}, 1, v{vsc}")
    a(f"s_lshl_b32 s{S_T1}, s{S_WAVE}, 3")
    a(f"v_add_u32 v{vsc}, s{S_T1}, v{vsc}")
    a("s_waitcnt lgkmcnt(0)")
    stamp(1)
    for srd, p in ((S_KSRD, S_QK), (S_VSRD, S_QV)):
        a(f"s_mov_b32 s{srd}, s{p}")
        a(f"s_and_b32 s{srd+1}, s{p+1}, 0xffff")
        a(f"s_mov_b32 s{srd+2}, 0x4000000")
        a(f"s_mov_b32 s{srd+3}, 0x20000")

    D0_ = optv("d0", G); N1 = optv("n1", 10**9)
    st = {"next": 0}
    def refill(done):
        depth = D0_ if done < N1 else min(G, D0_ + 2 * ((done - N1) // 2 + 1))
        DLO = optv("dlo", 0)
        if DLO and done > optv("dlo_from", 0) and done <= optv("dlo_to", 10**9) and st["next"] < min(2 * NL, done + depth):
            st["lab"] = st.get("lab", 0) + 1
            a(f"s_cbranch_vccnz L_deep{st['lab']}")
            a(f"s_waitcnt vmcnt({DLO - 2})")
            a(f"L_deep{st['lab']}:")
        while st["next"] < min(2 * NL, done + depth):
            issue_big(st["next"]); st["next"] += 1
    def slot(n): return V_RING + 4 * (n % G)
    def issue_big(n):
        if n >= 2 * NL: return
        isK = n < NL
        m = n if isK else n - NL
        piece, sub = m // 2, m % 2
        if sub == 0:
            a(f"s_add_u32 s{S_RUN}, s{S_BASE}, {piece*NW*2048}")
        if isK:
            a(f"buffer_load_dwordx4 {vr(slot(n),4)}, v{V_OFFK}, {sr(S_KSRD,4)}, s{S_RUN} offen offset:{sub*256}{NT}")
        else:
            a(f"buffer_load_dwordx4 {vr(slot(n),4)}, v{V_OFFV}, {sr(S_VSRD,4)}, s{S_RUN} offen offset:{sub*1024}{NT}")
        issue(n)

    nfirst = min(D0_, optv("nfirst", 0))
    for n in range(nfirst): issue_big(n)
    st["next"] = nfirst
    late_v = optv("latev", -1)
    clr_step = optv("clr", -1)
    a(f"s_lshl_b32 s{S_T0}, s{S_PAIR}, 10")
    a(f"s_add_u32 s{S_Q}, s{S_Q}, s{S_T0}")
    a(f"s_addc_u32 s{S_Q+1}, s{S_Q+1}, 0")
    a(f"s_lshr_b32 s{S_T0}, s{S_LIN}, 2")
    a(f"s_lshl_b32 s{S_T0}, s{S_T0}, 8")
    for p in (S_KS, S_KZ):
        a(f"s_add_u32 s{p}, s{p}, s{S_T0}")
        a(f"s_addc_u32 s{p+1}, s{p+1}, 0")
    a(f"s_lshl_b32 s{S_T0}, s{S_LIN}, 10")
    for p in (S_VS, S_VZ):
        a(f"s_add_u32 s{p}, s{p}, s{S_T0}")
        a(f"s_addc_u32 s{p+1}, s{p+1}, 0")
    a(f"global_load_dwordx2 {vr(V_Q,2)}, v{vq}, {sr(S_Q,2)}")
    a(f"global_load_dwordx2 {vr(V_Q+2,2)}, v{vq}, {sr(S_Q,2)} offset:128")
    a(f"global_load_dwordx2 {vr(V_KSR,2)}, v{vks}, {sr(S_KS,2)}")
    a(f"global_load_dwordx2 {vr(V_KSR+2,2)}, v{vks}, {sr(S_KS,2)} offset:128")
    a(f"global_load_dwordx2 {vr(V_KZR,2)}, v{vkz}, {sr(S_KZ,2)}")
    a(f"global_load_dwordx2 {vr(V_KZR+2,2)}, v{vkz}, {sr(S_KZ,2)} offset:128")
    for t in ("q0", "q1", "ks0", "ks1", "kz0", "kz1"): issue(t)
    def load_vsz():
        for hh in range(NH):
            a(f"global_load_ushort v{V_VS+hh}, v{V_VSOFF}, {sr(S_VS,2)} offset:{hh*16*NW*8}"); issue(f"vs{hh}")
            a(f"global_load_ushort v{V_VZ+hh}, v{V_VSOFF}, {sr(S_VZ,2)} offset:{hh*16*NW*8}"); issue(f"vz{hh}")
    if late_v < 0: load_vsz()
    refill(0)
    if "touchv" in opts:
        a(f"v_mov_b32 v{V_X}, 0")
        a(f"buffer_load_dword v{V_X+1}, v{V_X}, {sr(S_VSRD,4)}, s{S_BASE} offen{NT}"); issue("touchv")
    a(f"s_lshl_b32 s{S_T0}, s{S_LIN}, 12")
    a(f"s_add_u32 s{S_SLOT}, s{S_WS}, s{S_T0}")
    a(f"s_addc_u32 s{S_SLOT+1}, s{S_WS+1}, 0")
    a(f"s_lshl_b32 s{S_T0}, s{S_PAIR}, 15")
    a(f"s_add_u32 s{S_PSLOT}, s{S_WS}, s{S_T0}")
    a(f"s_addc_u32 s{S_PSLOT+1}, s{S_WS+1}, 0")
    a(f"s_lshl_b32 s{S_T0}, s{S_PAIR}, 7")
    a(f"s_add_u32 s{S_T0}, s{S_T0}, 0x100000")
    a(f"s_add_u32 s{S_CNT}, s{S_WS}, s{S_T0}")
    a(f"s_addc_u32 s{S_CNT+1}, s{S_WS+1}, 0")
    if "scell" in opts:
        a(f"s_load_dword s{S_CELL}, {sr(S_CNT,2)}, 0")
    if "fh2" in opts:
        a(f"v_mov_b32 v{V_CELL+1}, 0")
        a(f"s_cmp_eq_u32 s{S_CHUNK}, 7")
        a(f"s_cselect_b32 s{S_SAME}, s{S_WAVE}, 1")
        a(f"s_cmp_lg_u32 s{S_SAME}, 0")
        a("s_cbranch_scc1 L_noearly")
        a(f"global_load_dword v{V_CELL}, v{V_CELL+1}, {sr(S_CNT,2)} sc1")
        a("L_noearly:")
    def extras():
        if "warmout" in opts:
            a(f"s_cmp_lg_u32 s{S_CHUNK}, 7")
            a("s_cbranch_scc1 L_nowarm")
            a(f"v_mov_b32 v{t0}, 0")
            a(f"global_load_dword v{V_X}, v{t0}, {sr(S_OUT,2)}")
            a("L_nowarm:")
        a(f"v_mov_b32 v{t0}, 0")
        if "fh2" in opts:
            a(f"global_load_dwordx4 {vr(V_CELL,4)}, v{t0}, {sr(S_CNT,2)}{'' if 'cellplain' in opts else ' sc1'}")
        elif "scell" not in opts:
            a(f"global_load_dword v{V_CELL}, v{t0}, {sr(S_CNT,2)}{'' if 'cellplain' in opts else ' sc1'}")
        if "tlbwarm" in opts:
            a(f"s_cmp_lg_u32 s{S_WAVE}, 0")
            a("s_cbranch_scc1 L_notlb")
            a(f"global_load_dword v{V_X}, v{t0}, {sr(S_CNT,2)}")
            a("L_notlb:")
        if "prewarm" in opts:
            a(f"s_cmp_lg_u32 s{S_CHUNK}, 7")
            a("s_cbranch_scc1 L_noprew")
            a(f"v_lshrrev_b32 v{t1}, 2, v{L}")
            a(f"v_and_b32 v{t1}, 7, v{t1}")
            a(f"v_lshlrev_b32 v{t1}, 12, v{t1}")
            a(f"v_and_b32 v{t2}, 3, v{L}")
            a(f"v_lshlrev_b32 v{t2}, 7, v{t2}")
            a(f"s_lshl_b32 s{S_T0}, s{S_WAVE}, 9")
            a(f"v_add_u32 v{t2}, s{S_T0}, v{t2}")
            a(f"v_mov_b32 v{t3}, 2048")
            a(f"v_cmp_gt_u32 vcc, 32, v{L}")
            a("s_nop 1")
            a(f"v_cndmask_b32 v{t2}, v{t3}, v{t2}, vcc")
            a(f"v_add_u32 v{t1}, v{t1}, v{t2}")
            a(f"global_load_dword v{V_X}, v{t1}, {sr(S_PSLOT,2)} sc1")
            a("L_noprew:")
    a(f"v_lshrrev_b32 v{V_PADDR}, 5, v{L}")
    a(f"v_lshlrev_b32 v{V_PADDR}, 5, v{V_PADDR}")
    a(f"v_lshl_or_b32 v{V_PADDR}, v{t0}, 3, v{V_PADDR}")
    a(f"s_mul_i32 s{S_T1}, s{S_WAVE}, {NH*1024}")
    a(f"v_add_u32 v{V_PADDR}, s{S_T1}, v{V_PADDR}")

    if "early" in opts: extras()
    PARK = optv("park", 0)
    V_PARK = V_RING + 4 * G
    for s_ in range(PARK):
        n0, n1 = 2 * s_, 2 * s_ + 1
        wait_for([n0, n1])
        if s_ == 0: stamp(3)
        for n in (n0, n1):
            for r in range(4): a(f"v_cvt_f32_i32 v{slot(n)+r}, v{slot(n)+r}")
        for jj, n in enumerate((n0, n1)):
            a(f"v_cvt_pk_bf16_f32 v{V_PARK+4*s_+2*jj}, v{slot(n)}, v{slot(n)+1}")
            a(f"v_cvt_pk_bf16_f32 v{V_PARK+4*s_+2*jj+1}, v{slot(n)+2}, v{slot(n)+3}")
        refill(n1 + 1)
    wait_for(["q0", "q1", "ks0", "ks1", "kz0", "kz1"])
    stamp(2)
    a(f"s_mov_b32 s{S_T0}, 0x{Cbits:08x}")
    a(f"s_mov_b32 s{S_T1}, 0xffff0000")
    x0, x1, y0, y1 = V_T, V_T + 1, V_T + 2, V_T + 3
    for n in range(4):
        a(f"v_lshlrev_b32 v{x0}, 16, v{V_Q+n}")
        a(f"v_and_b32 v{x1}, s{S_T1}, v{V_Q+n}")
        a(f"v_lshlrev_b32 v{y0}, 16, v{V_KSR+n}")
        a(f"v_and_b32 v{y1}, s{S_T1}, v{V_KSR+n}")
        a(f"v_mul_f32 v{x0}, v{x0}, v{y0}")
        a(f"v_mul_f32 v{x1}, v{x1}, v{y1}")
        a(f"v_mul_f32 v{x0}, s{S_T0}, v{x0}")
        a(f"v_mul_f32 v{x1}, s{S_T0}, v{x1}")
        a(f"v_cvt_pk_bf16_f32 v{V_BHI+n}, v{x0}, v{x1}")
        if not qnolo:
            a(f"v_lshlrev_b32 v{y0}, 16, v{V_BHI+n}")
            a(f"v_and_b32 v{y1}, s{S_T1}, v{V_BHI+n}")
            a(f"v_sub_f32 v{x0}, v{x0}, v{y0}")
            a(f"v_sub_f32 v{x1}, v{x1}, v{y1}")
            a(f"v_cvt_pk_bf16_f32 v{V_BLO+n}, v{x0}, v{x1}")
    a("s_nop 1")
    D0 = V_D
    a(f"v_mfma_f32_16x16x32_bf16 {vr(D0,4)}, {vr(V_KZR,4)}, {vr(V_BHI,4)}, 0")
    if not qnolo:
        a(f"v_mfma_f32_16x16x32_bf16 {vr(D0,4)}, {vr(V_KZR,4)}, {vr(V_BLO,4)}, {vr(D0,4)}")
    a("s_nop 7")
    for c in range(4):
        a(f"v_mov_b32_dpp v{V_NEGC}, v{D0+c} quad_perm:[0,1,2,3] row_mask:0xf bank_mask:0x{1<<c:x}")
    a("s_nop 1")
    a(f"v_add_f32_dpp v{V_NEGC}, v{V_NEGC}, v{V_NEGC} row_ror:4 row_mask:0xf bank_mask:0xf")
    a("s_nop 1")
    a(f"v_add_f32_dpp v{V_NEGC}, v{V_NEGC}, v{V_NEGC} row_ror:8 row_mask:0xf bank_mask:0xf")
    a(f"v_sub_f32 v{V_NEGC}, 0, v{V_NEGC}")

    if optv("dlo", 0):
        a(f"s_getreg_b32 s{S_T0}, hwreg(HW_REG_XCC_ID, 0, 4)")
        a(f"s_and_b32 s{S_T0}, s{S_T0}, 1")
        if "dloinv" in opts: a(f"s_xor_b32 s{S_T0}, s{S_T0}, 1")
        a(f"s_mov_b32 s{S_T1}, 0")
        a(f"s_mov_b64 vcc, s[{S_T0}:{S_T1}]")
    def extract(s):
        hh, b, g = s // 16, (s // 4) % 4, s % 4
        D = V_D + 4 * (s % 4)
        first = True
        for c in range(4):
            rot = (4 * (b - c)) % 16
            ctl = f"row_ror:{rot}" if rot else "quad_perm:[0,1,2,3]"
            dst = V_S + 4 * hh + g
            src1 = V_NEGC if first else dst
            a(f"v_add_f32_dpp v{dst}, v{D+c}, v{src1} {ctl} row_mask:0xf bank_mask:0x{1<<b:x}")
            first = False
    pend = None
    for s in range(PARK):
        D = V_D + 4 * (s % 4)
        a(f"v_mfma_f32_16x16x32_bf16 {vr(D,4)}, {vr(V_PARK+4*s,4)}, {vr(V_BHI,4)}, 0")
        if not qnolo:
            a(f"v_mfma_f32_16x16x32_bf16 {vr(D,4)}, {vr(V_PARK+4*s,4)}, {vr(V_BLO,4)}, {vr(D,4)}")
    if PARK:
        assert PARK <= 4
        a("s_nop 7")
        for s in range(PARK - 1): extract(s)
        pend = PARK - 1
    for s in range(PARK, NP):
        n0, n1 = 2 * s, 2 * s + 1
        PK = V_PK + 4 * (s % 2)
        if "finek" in opts:
            for jj, n in enumerate((n0, n1)):
                wait_for([n])
                if s == 0 and jj == 0: stamp(3)
                for r in range(4): a(f"v_cvt_f32_i32 v{slot(n)+r}, v{slot(n)+r}")
                a(f"v_cvt_pk_bf16_f32 v{PK+2*jj}, v{slot(n)}, v{slot(n)+1}")
                a(f"v_cvt_pk_bf16_f32 v{PK+2*jj+1}, v{slot(n)+2}, v{slot(n)+3}")
                refill(n + 1)
            a("s_nop 0")
        else:
            wait_for([n0, n1])
            if s == 0 and not PARK: stamp(3)
            for n in (n0, n1):
                for r in range(4): a(f"v_cvt_f32_i32 v{slot(n)+r}, v{slot(n)+r}")
            for jj, n in enumerate((n0, n1)):
                a(f"v_cvt_pk_bf16_f32 v{PK+2*jj}, v{slot(n)}, v{slot(n)+1}")
                a(f"v_cvt_pk_bf16_f32 v{PK+2*jj+1}, v{slot(n)+2}, v{slot(n)+3}")
            refill(n1 + 1)
        D = V_D + 4 * (s % 4)
        a(f"v_mfma_f32_16x16x32_bf16 {vr(D,4)}, {vr(PK,4)}, {vr(V_BHI,4)}, 0")
        if not qnolo:
            a(f"v_mfma_f32_16x16x32_bf16 {vr(D,4)}, {vr(PK,4)}, {vr(V_BLO,4)}, {vr(D,4)}")
        if pend is not None: extract(pend)
        if s == 1:
            pass
        pend = s
        if s == late_v: load_vsz()
        if "fh2" in opts and s == D0_ // 2 + 2:
            a(f"s_cmp_lg_u32 s{S_SAME}, 0")
            a("s_cbranch_scc1 L_noann")
            a(f"v_add_u32 v{V_CELL+2}, 1, v{V_CELL}")
            a(f"s_getreg_b32 s{S_T0}, hwreg(HW_REG_XCC_ID, 0, 4)")
            a(f"v_mov_b32 v{V_CELL+3}, s{S_T0}")
            a("s_mov_b64 exec, 1")
            a(f"global_store_dwordx2 v{V_CELL+1}, {vr(V_CELL+2,2)}, {sr(S_CNT,2)} offset:8 sc1")
            a("s_mov_b64 exec, -1")
            a("L_noann:")
    a("s_nop 7")
    extract(pend)
    stamp(4)

    S = V_S
    NS = 4 * NH
    a(f"v_max3_f32 v{V_M}, v{S}, v{S+1}, v{S+2}")
    i = 3
    while i < NS:
        if i + 1 < NS:
            a(f"v_max3_f32 v{V_M}, v{V_M}, v{S+i}, v{S+i+1}"); i += 2
        else:
            a(f"v_max_f32 v{V_M}, v{V_M}, v{S+i}"); i += 1
    def allred(reg, op, tmp):
        a("s_nop 1")
        a(f"{op}_dpp v{reg}, v{reg}, v{reg} row_ror:4 row_mask:0xf bank_mask:0xf")
        a("s_nop 1")
        a(f"{op}_dpp v{reg}, v{reg}, v{reg} row_ror:8 row_mask:0xf bank_mask:0xf")
        a(f"v_mov_b32 v{tmp}, v{reg}")
        a("s_nop 1")
        a(f"v_permlane16_swap_b32 v{tmp}, v{reg}")
        a(f"{op} v{reg}, v{reg}, v{tmp}")
        a(f"v_mov_b32 v{tmp}, v{reg}")
        a("s_nop 1")
        a(f"v_permlane32_swap_b32 v{tmp}, v{reg}")
        a(f"{op} v{reg}, v{reg}, v{tmp}")
    allred(V_M, "v_max_f32", t0)
    for g in range(NS): a(f"v_sub_f32 v{S+g}, v{S+g}, v{V_M}")
    for g in range(NS): a(f"v_exp_f32 v{S+g}, v{S+g}")
    wait_for([f"vs{h}" for h in range(NH)] + [f"vz{h}" for h in range(NH)])
    for hh in range(NH):
        a(f"v_lshlrev_b32 v{V_VS+hh}, 16, v{V_VS+hh}")
        a(f"v_lshlrev_b32 v{V_VZ+hh}, 16, v{V_VZ+hh}")
    a(f"v_add_f32 v{V_L}, v{S}, v{S+1}")
    for g in range(2, NS): a(f"v_add_f32 v{V_L}, v{V_L}, v{S+g}")
    for hh in range(NH):
        for g in range(4):
            a(f"v_mul_f32_dpp v{S+4*hh+g}, v{V_VS+hh}, v{S+4*hh+g} quad_perm:[{g},{g},{g},{g}] row_mask:0xf bank_mask:0xf")
    a(f"s_mov_b32 s{S_T1}, 0xffff0000")
    a(f"v_bfe_u32 v{t1}, v{L}, 2, 2")
    a(f"v_lshlrev_b32 v{t1}, 6, v{t1}")
    a(f"v_bfe_u32 v{t2}, v{L}, 4, 1")
    a(f"v_lshl_or_b32 v{t1}, v{t2}, 5, v{t1}")
    a(f"v_and_b32 v{t2}, 3, v{L}")
    a(f"v_lshl_or_b32 v{t1}, v{t2}, 3, v{t1}")
    a(f"v_lshrrev_b32 v{t2}, 5, v{L}")
    a(f"v_lshl_or_b32 v{t1}, v{t2}, 2, v{t1}")
    a(f"s_mul_i32 s{S_T0}, s{S_WAVE}, {NH*1024}")
    a(f"v_add_u32 v{t1}, s{S_T0}, v{t1}")
    u = V_T + 4
    w_ = V_PK
    hi, lo = V_PA, V_PA + 2
    LO_OFF = NH * 512
    for hh in range(NH):
        Sh = S + 4 * hh
        a(f"v_cvt_pk_bf16_f32 v{hi}, v{Sh}, v{Sh+1}")
        a(f"v_cvt_pk_bf16_f32 v{hi+1}, v{Sh+2}, v{Sh+3}")
        a(f"v_lshlrev_b32 v{u}, 16, v{hi}")
        a(f"v_and_b32 v{u+1}, s{S_T1}, v{hi}")
        a(f"v_lshlrev_b32 v{u+2}, 16, v{hi+1}")
        a(f"v_and_b32 v{u+3}, s{S_T1}, v{hi+1}")
        if use_lo:
            for g in range(4): a(f"v_sub_f32 v{Sh+g}, v{Sh+g}, v{u+g}")
            a(f"v_cvt_pk_bf16_f32 v{lo}, v{Sh}, v{Sh+1}")
            a(f"v_cvt_pk_bf16_f32 v{lo+1}, v{Sh+2}, v{Sh+3}")
            a(f"v_lshlrev_b32 v{w_}, 16, v{lo}")
            a(f"v_and_b32 v{w_+1}, s{S_T1}, v{lo}")
            a(f"v_lshlrev_b32 v{w_+2}, 16, v{lo+1}")
            a(f"v_and_b32 v{w_+3}, s{S_T1}, v{lo+1}")
            for g in range(4): a(f"v_add_f32 v{Sh+g}, v{w_+g}, v{u+g}")
            src = Sh
        else:
            src = u
        for g in range(4):
            op = "v_mul_f32_dpp" if (hh == 0 and g == 0) else "v_fmac_f32_dpp"
            a(f"{op} v{V_CZ}, v{V_VZ+hh}, v{src+g} quad_perm:[{g},{g},{g},{g}] row_mask:0xf bank_mask:0xf")
        for base, off in ((u, 0),) + (((w_, LO_OFF),) if use_lo else ()):
            a(f"v_permlane32_swap_b32 v{base}, v{base+1}")
            a(f"v_permlane32_swap_b32 v{base+2}, v{base+3}")
            a(f"v_cvt_pk_bf16_f32 v{base}, v{base}, v{base+1}")
            a(f"v_cvt_pk_bf16_f32 v{base+2}, v{base+2}, v{base+3}")
            a(f"ds_write_b32 v{t1}, v{base} offset:{LDS_P+off+(hh*2)*256}")
            a(f"ds_write_b32 v{t1}, v{base+2} offset:{LDS_P+off+(hh*2+1)*256}")
    allred(V_L, "v_add_f32", t0)
    allred(V_CZ, "v_add_f32", t0)
    for i in range(16): a(f"v_mov_b32 v{V_ACC+i}, 0")
    if "early" not in opts: extras()
    a(f"v_mul_u32_u24 v{t1}, {NW*8}, v{L}")
    a(f"s_lshl_b32 s{S_T0}, s{S_WAVE}, 3")
    a(f"v_add_u32 v{t1}, s{S_T0}, v{t1}")
    a(f"s_mov_b64 {sr(S_EX,2)}, exec")
    a("s_mov_b64 exec, 0xf")
    a(f"ds_write_b32 v{t1}, v{V_M} offset:{LDS_STAT}")
    a(f"ds_write_b32 v{t1}, v{V_L} offset:{LDS_STAT+4}")
    a(f"s_mov_b64 exec, {sr(S_EX,2)}")
    a("s_waitcnt lgkmcnt(0)")
    stamp(5)

    def pa_read(s_):
        hh, b, m = s_ // 16, (s_ // 4) % 4, (s_ % 4) // 2
        P = V_PA + 4 * ((s_ // 2) % 2)
        off = LDS_P + ((hh * 2 + m) * 4 + b) * 64
        a(f"ds_read_b64 {vr(P,2)}, v{V_PADDR} offset:{off}")
        if use_lo: a(f"ds_read_b64 {vr(P+2,2)}, v{V_PADDR} offset:{off+LO_OFF}")
    for s_ in range(NP):
        n0, n1 = NL + 2 * s_, NL + 2 * s_ + 1
        if s_ % 2 == 0: pa_read(s_)
        wait_for([n0, n1])
        for n in (n0, n1):
            for r in range(4): a(f"v_cvt_f32_i32 v{slot(n)+r}, v{slot(n)+r}")
        for r in range(4):
            a(f"v_cvt_pk_bf16_f32 v{V_PK+2*r+(s_%2)}, v{slot(n0)+r}, v{slot(n1)+r}")
        refill(n1 + 1)
        if s_ == NP - 6:
            if "scell" in opts:
                a(f"s_add_u32 s{S_CELL}, s{S_CELL}, 1")
                a(f"v_mov_b32 v{V_CNT}, s{S_CELL}")
            else:
                a(f"v_add_u32 v{V_CNT}, 1, v{V_CELL}")
            a(f"s_movk_i32 s{S_FF}, 0xff")
            if "fh2" in opts:
                a(f"s_getreg_b32 s{S_T0}, hwreg(HW_REG_XCC_ID, 0, 4)")
                a(f"v_xor_b32 v{V_CELL+2}, v{V_CELL+2}, v{V_CNT}")
                a(f"v_xor_b32 v{V_CELL+3}, s{S_T0}, v{V_CELL+3}")
                a(f"v_or_b32 v{V_CELL+2}, v{V_CELL+2}, v{V_CELL+3}")
                a("s_nop 0")
                a(f"v_readfirstlane_b32 s{S_SAME}, v{V_CELL+2}")
        if s_ % 2 == 1:
            P = V_PA + 4 * ((s_ // 2) % 2)
            a("s_waitcnt lgkmcnt(0)")
            for r in range(4):
                a(f"v_mfma_f32_4x4x4_16b_bf16 {vr(V_ACC+4*r,4)}, {vr(P,2)}, {vr(V_PK+2*r,2)}, {vr(V_ACC+4*r,4)}")
            if use_lo:
                for r in range(4):
                    a(f"v_mfma_f32_4x4x4_16b_bf16 {vr(V_ACC+4*r,4)}, {vr(P+2,2)}, {vr(V_PK+2*r,2)}, {vr(V_ACC+4*r,4)}")
    stamp(6)

    a("s_nop 4")
    for i in range(4):
        a(f"v_permlane32_swap_b32 v{V_ACC+i}, v{V_ACC+8+i}")
        a(f"v_permlane32_swap_b32 v{V_ACC+4+i}, v{V_ACC+12+i}")
    X = V_PK
    for i in range(4):
        a(f"v_add_f32 v{X+2*i}, v{V_ACC+i}, v{V_ACC+8+i}")
        a(f"v_add_f32 v{X+2*i+1}, v{V_ACC+4+i}, v{V_ACC+12+i}")
    for i in range(4):
        a(f"v_subrev_f32_dpp v{X+2*i}, v{V_CZ}, v{X+2*i} quad_perm:[{i},{i},{i},{i}] row_mask:0xf bank_mask:0xf")
        a(f"v_subrev_f32_dpp v{X+2*i+1}, v{V_CZ}, v{X+2*i+1} quad_perm:[{i},{i},{i},{i}] row_mask:0xf bank_mask:0xf")
    a(f"s_lshl_b32 s{S_T0}, s{S_WAVE}, 11")
    a(f"v_lshl_add_u32 v{t1}, v{L}, 3, s{S_T0}")
    for i in range(4):
        a(f"ds_write_b64 v{t1}, {vr(X+2*i,2)} offset:{LDS_RED+512*i}")
    a("s_waitcnt lgkmcnt(0)")
    a("s_barrier")
    stamp(7)
    if NW > 4:
        a(f"s_cmp_ge_u32 s{S_WAVE}, 4")
        a("s_cbranch_scc1 L_fin0" if stamps else "s_cbranch_scc1 L_end")
    Y = V_RING
    a(f"s_lshl_b32 s{S_T0}, s{S_WAVE}, 9")
    a(f"v_lshl_add_u32 v{t1}, v{L}, 3, s{S_T0}")
    a(f"v_and_b32 v{t2}, {NW-1}, v{L}")
    a(f"s_mul_i32 s{S_T0}, s{S_WAVE}, {NW*8}")
    a(f"v_lshl_add_u32 v{t2}, v{t2}, 3, s{S_T0}")
    ST = V_PK + 8
    a(f"ds_read_b64 {vr(ST,2)}, v{t2} offset:{LDS_STAT}")
    for w in range(NW):
        a(f"ds_read_b64 {vr(Y+2*w,2)}, v{t1} offset:{LDS_RED+2048*w}")
    def redn(n, reg, op, src=None):
        src = reg if src is None else src
        r = n // 2
        first = True
        while r >= 1:
            if not first: a("s_nop 1")
            s_ = src if first else reg
            a(f"{op}_dpp v{reg}, v{s_}, v{s_} row_ror:{r} row_mask:0xf bank_mask:0xf")
            first = False
            r //= 2
    al = t3
    O0, O1 = V_S, V_S + 1
    def weights(n, norm):
        redn(n, V_M, "v_max_f32", ST)
        if not norm:
            a(f"v_and_b32 v{V_M}, 0xffffff00, v{V_M}")
        a(f"v_sub_f32 v{al}, v{ST}, v{V_M}")
        a(f"v_exp_f32 v{al}, v{al}")
        a(f"v_mov_b32 v{O0}, 0")
        a(f"v_mul_f32 v{V_L}, v{al}, v{ST+1}")
        a(f"v_mov_b32 v{O1}, 0")
        a("s_nop 0")
        redn(n, V_L, "v_add_f32")
        if norm:
            a(f"v_rcp_f32 v{t0}, v{V_L}")
            a("s_nop 0")
            a(f"v_mul_f32 v{al}, v{al}, v{t0}")
            a("s_nop 1")
    def accumulate(n):
        for w in range(n):
            a(f"v_fmac_f32_dpp v{O0}, v{al}, v{Y+2*w} row_newbcast:{w} row_mask:0xf bank_mask:0xf")
            a(f"v_fmac_f32_dpp v{O1}, v{al}, v{Y+2*w+1} row_newbcast:{w} row_mask:0xf bank_mask:0xf")
    a(f"s_waitcnt lgkmcnt({NW})")
    weights(NW, False)
    a("s_waitcnt lgkmcnt(0)")
    accumulate(NW)
    ML = V_S + 4
    a(f"v_bfi_b32 v{O0}, s{S_FF}, v{V_CNT}, v{O0}")
    a(f"v_bfi_b32 v{O1}, s{S_FF}, v{V_CNT}, v{O1}")
    a(f"v_bfi_b32 v{ML}, s{S_FF}, v{V_CNT}, v{V_M}")
    a(f"v_bfi_b32 v{ML+1}, s{S_FF}, v{V_CNT}, v{V_L}")
    a(f"v_mov_b32 v{ML+2}, v{V_CNT}")
    a(f"v_mov_b32 v{ML+3}, v{V_CNT}")
    a(f"s_lshl_b32 s{S_T0}, s{S_WAVE}, 4")
    a(f"v_mov_b32 v{t0}, s{S_T0}")
    def publish(fl):
        a(f"global_store_dwordx2 v{t1}, {vr(O0,2)}, {sr(S_SLOT,2)}{fl}")
        a("s_mov_b64 exec, 1")
        a(f"global_store_dwordx4 v{t0}, {vr(ML,4)}, {sr(S_SLOT,2)} offset:2048{fl}")
        a("s_mov_b64 exec, -1")
    if "fh2" in opts:
        a(f"s_cmp_eq_u32 s{S_SAME}, 0")
        a("s_cbranch_scc1 L_pubfast")
        publish(" sc1")
        a("s_branch L_pubdone")
        a("L_pubfast:")
        publish("")
        a("L_pubdone:")
    else:
        publish(" sc1")
    stamp(8)
    a(f"s_cmp_lg_u32 s{S_CHUNK}, 7")
    a("s_cbranch_scc1 L_fin0" if stamps else "s_cbranch_scc1 L_end")
    if "nopoll" in opts:
        a("s_branch L_fin0" if stamps else "s_branch L_end")
    a(f"s_mov_b32 s{S_SPIN}, {spin}")
    a(f"v_and_b32 v{t2}, 7, v{L}")
    a(f"v_lshlrev_b32 v{t2}, 12, v{t2}")
    a(f"v_add_u32 v{t2}, s{S_T0}, v{t2}")
    va = V_PK
    ST = V_PK + 8
    for c in range(8): a(f"v_add_u32 v{va+c}, {c*4096}, v{t1}")
    a("L_poll:")
    a(f"global_load_dwordx4 {vr(ST,4)}, v{t2}, {sr(S_PSLOT,2)} offset:2048 sc1")
    for c in range(8):
        a(f"global_load_dwordx2 {vr(Y+2*c,2)}, v{va+c}, {sr(S_PSLOT,2)} sc1")
    a("s_waitcnt vmcnt(8)")
    a(f"v_xor_b32 v{t0}, v{ST}, v{V_CNT}")
    a(f"v_bitop3_b32 v{t0}, v{ST+1}, v{t0}, v{V_CNT} bitop3:0xde")
    a(f"v_xor_b32 v{t3}, v{ST+2}, v{V_CNT}")
    a(f"v_bitop3_b32 v{t3}, v{ST+3}, v{t3}, v{V_CNT} bitop3:0xde")
    for c in range(8):
        a(f"s_waitcnt vmcnt({7-c})")
        a(f"v_bitop3_b32 v{t0}, v{Y+2*c}, v{t0}, v{V_CNT} bitop3:0xde")
        a(f"v_bitop3_b32 v{t0}, v{Y+2*c+1}, v{t0}, v{V_CNT} bitop3:0xde")
    a(f"v_and_or_b32 v{t0}, v{t0}, s{S_FF}, v{t3}")
    a(f"v_cmp_ne_u32 vcc, 0, v{t0}")
    a("s_cbranch_vccz L_ready")
    if optv("psleep", 0): a(f"s_sleep {optv('psleep', 0)}")
    a(f"s_sub_u32 s{S_SPIN}, s{S_SPIN}, 1")
    a("s_cbranch_scc0 L_poll")
    a("s_branch L_end")
    a("L_ready:")
    stamp(9)
    a(f"v_and_b32 v{ST}, 0xffffff00, v{ST}")
    a("s_nop 1")
    weights(8, True)
    accumulate(8)
    a(f"v_cvt_pk_bf16_f32 v{t0}, v{O0}, v{O1}")
    a(f"v_and_b32 v{t2}, 31, v{L}")
    a(f"v_lshlrev_b32 v{t2}, 3, v{t2}")
    a(f"v_lshrrev_b32 v{t3}, 5, v{L}")
    a(f"v_lshl_or_b32 v{t2}, v{t3}, 2, v{t2}")
    a(f"s_lshl_b32 s{S_T0}, s{S_PAIR}, 10")
    a(f"s_lshl_b32 s{S_T1}, s{S_WAVE}, 8")
    a(f"s_add_u32 s{S_T0}, s{S_T0}, s{S_T1}")
    a(f"v_add_u32 v{t2}, s{S_T0}, v{t2}")
    oflag = " sc1" if "outsc1" in opts else (" nt" if "outnt" in opts else "")
    a(f"global_store_dword v{t2}, v{t0}, {sr(S_OUT,2)}{oflag}")
    a(f"s_cmp_lg_u32 s{S_WAVE}, 0")
    a("s_cbranch_scc1 L_nocell")
    a(f"v_mov_b32 v{t3}, 0")
    a("s_mov_b64 exec, 1")
    a(f"global_store_dword v{t3}, v{V_CNT}, {sr(S_CNT,2)} sc1")
    a("s_mov_b64 exec, -1")
    a("L_nocell:")
    if stamps and optv("amp", 0):
        stamp(10)
        a("s_waitcnt lgkmcnt(0)")
        K_, ia, ib = optv("amp", 0), optv("ampa", 0), optv("ampb", 10)
        a(f"s_sub_u32 s{S_T0}, s{S_ST+2*ib}, s{S_ST+2*ia}")
        a(f"s_min_u32 s{S_T0}, s{S_T0}, 20000")
        a(f"s_mul_i32 s{S_T0}, s{S_T0}, {K_}")
        a(f"s_add_u32 s{S_T0}, s{S_T0}, s{S_ST+20}")
        a("L_amp:")
        a(f"s_memrealtime s[{S_ST+22}:{S_ST+23}]")
        a("s_waitcnt lgkmcnt(0)")
        a(f"s_sub_u32 s{S_T1}, s{S_ST+22}, s{S_T0}")
        a(f"s_cmp_lt_i32 s{S_T1}, 0")
        a("s_cbranch_scc1 L_amp")
        a("L_fin0:")
    elif stamps:
        stamp(10)
        a("L_fin0:")
        flush_stamps(11)
    a("L_end:")
    a("s_endpgm")
    tail = f""".section .rodata,"a"
.p2align 6
.amdhsa_kernel {KNAME}_kernel
  .amdhsa_next_free_vgpr {NV}
  .amdhsa_next_free_sgpr {96 if stamps else 72}
  .amdhsa_accum_offset {(NV+3)//4*4}
  .amdhsa_group_segment_fixed_size 0
  .amdhsa_kernarg_size 80
  .amdhsa_user_sgpr_count 2
  .amdhsa_user_sgpr_kernarg_segment_ptr 1
  .amdhsa_system_sgpr_workgroup_id_x 1
  .amdhsa_float_denorm_mode_32 3
.end_amdhsa_kernel
"""
    txt = a.text()
    def strip(txt, m0, m1, keep=lambda l: False):
        out=[]; on=False
        for l in txt.split("\n"):
            if m0 in l: on=True
            if m1 in l: on=False
            if on and not keep(l): continue
            out.append(l)
        return "\n".join(out)
    if "noprep" in opts: txt = strip(txt, "MARK prep0", "MARK prep1", lambda l: "s_memrealtime" in l)
    if "nosoft" in opts: txt = strip(txt, "MARK soft0", "MARK soft1", lambda l: False)
    if "novalu" in opts:
        txt = "\n".join(l for l in txt.split("\n") if not (("v_cvt_f32_i32" in l) or ("v_mfma" in l) or ("v_cvt_pk_bf16" in l and "v38" <= l.split()[1][:3] <= "v53") or "v_add_f32_dpp v2" in l or "v_add_f32_dpp v3" in l))
    if "nosmall" in opts:
        txt = "\n".join(l for l in txt.split("\n") if not ("global_load_dwordx2 v[38" in l or "global_load_dwordx2 v[4" in l or "global_load_ushort" in l))
    if "nohand" in opts:
        txt = "\n".join(l for l in txt.split("\n") if not ("global_store_dwordx4" in l or "global_atomic_add" in l or "global_load_dword v22" in l or "global_load_dword v78" in l or "buffer_load_dword v79" in l))
    if "noextra" in opts:
        txt = "\n".join(l for l in txt.split("\n") if not ("global_load_dword v78" in l or "global_load_dword v80" in l))
    if "klin" in opts:
        txt = txt.replace("v1, s[24:27], s33 offen offset:256", "v2, s[24:27], s33 offen offset:1024").replace("v1, s[24:27], s33 offen offset:0", "v2, s[24:27], s33 offen offset:0")
    return head + txt + tail, lds

if __name__ == "__main__":
    ap = argparse.ArgumentParser()
    ap.add_argument("--nw", type=int, default=4)
    ap.add_argument("-G", type=int, default=16)
    ap.add_argument("--no-nt", action="store_true")
    ap.add_argument("--lds", type=int, default=0)
    ap.add_argument("--stamps", action="store_true")
    ap.add_argument("--opt", action="append", default=[])
    ap.add_argument("-o", default="cdna_kernels/" + KNAME + ".s")
    args = ap.parse_args()
    s, lds = gen(NW=args.nw, G=args.G, nt=not args.no_nt, lds_force=args.lds, stamps=args.stamps, opts=args.opt)
    open(args.o, "w").write(s)
    print(lds)
```

```python
import math, argparse, struct

KNAME = "standalone__kv_cache_quant_int4_int2_kv_with_per_channel_or_per_token_scales__decode"

class Asm:
    def __init__(self): self.lines = []
    def __call__(self, s=""):
        s = s.strip()
        self.lines.append(s if s.endswith(":") else "    " + s)
    def c(self, s): self.lines.append("    ; " + s)
    def text(self): return "\n".join(self.lines) + "\n"

def vr(a, n=1): return f"v{a}" if n == 1 else f"v[{a}:{a+n-1}]"
def sr(a, n=1): return f"s{a}" if n == 1 else f"s[{a}:{a+n-1}]"
def f32bits(x): return struct.unpack("<I", struct.pack("<f", x))[0]

def gen(G=8, spin=1 << 18, stamps=False, opts=()):
    a = Asm()
    def optv(name, default):
        for o in opts:
            if o.startswith(name + "="): return int(o.split("=")[1])
        return default
    NW = 4
    NH = 2
    NP = 32
    NL = 64
    use_lo = "nolo" not in opts
    PARK = optv("park", 4)
    LATEV = optv("latev", 8)
    BARP = NP - optv("barp", 8)
    S_WG = 2; S_WAVE = 3
    S_Q, S_QK, S_QV, S_KS, S_KZ, S_VS, S_VZ, S_OUT = 4, 6, 8, 10, 12, 14, 16, 18
    S_WS = 22
    S_KSRD = 24; S_VSRD = 28
    S_BASE = 32; S_RUN = 33
    S_PAIR = 40; S_CHUNK = 41; S_T0 = 42; S_T1 = 43
    S_SLOT = 44; S_PSLOT = 46; S_CELL = 48
    S_SPIN = 52; S_LIN = 53; S_SAME = 54; S_FF = 55
    S_ST = 70
    L = 0; V_OFFK = 1; V_OFFV = 2
    t0, t1, t2, t3 = 3, 4, 5, 6
    V_U = 7
    V_VSOFF = 11
    V_BHI = 12; V_BLO = 16
    V_NEGC = 20; V_PADDR = 21; V_TAG = 22; V_AL = 23
    V_M = 24; V_L = 25; V_CZ = 26
    V_S = 28
    V_VS = 36; V_VZ = 38
    V_PK = 40
    V_D = 56; V_ACC = 56
    V_PA = 72
    V_CELL = 80
    V_RING = 84
    V_PARK = V_RING + 4 * G
    R = V_PARK + 16
    V_RA, V_RB, V_SA, V_OA, V_PST, V_X = R, R + 1, R + 2, R + 3, R + 4, R + 5
    V_O = R + 6
    V_ML = R + 8
    V_PAD = R + 12
    V_ST = R + 20
    V_Y = R + 24
    NV = R + 40
    assert NV <= 256 and V_O % 2 == 0
    V_Q = V_PK; V_KSR = V_PK + 4; V_KZR = V_PK + 8
    LDS_P = 0; LO_OFF = NH * 512
    LDS_RED = NW * NH * 1024
    LDS_STAT = LDS_RED + NW * 2048
    lds = LDS_STAT + 256
    Cbits = f32bits((128 ** -0.5) * math.log2(math.e))

    queue = []
    def issue(tag): queue.append(tag)
    def wait_for(tags):
        idx = max((queue.index(t) for t in tags if t in queue), default=-1)
        if idx < 0: return
        n = len(queue) - 1 - idx
        assert n <= 63
        a(f"s_waitcnt vmcnt({n})")
        del queue[:idx + 1]
    def stamp(i):
        if stamps: a(f"s_memrealtime s[{S_ST+2*i}:{S_ST+2*i+1}]")

    hdr = open("cdna_kernels/" + KNAME + ".s.ref").read().split("\n")
    out = []
    for l in hdr:
        if l.startswith("; @launch"):
            out.append(f"; @launch grid=(256,1,1) block=({NW*64},1,1) lds={lds}")
            break
        if l.startswith("; Override launch") or l.startswith("; grid=ceil"): continue
        out.append(l)
    head = "\n".join(out) + "\n" + DOC
    head += f""".amdgcn_target "amdgcn-amd-amdhsa--gfx950"
.text
.globl {KNAME}_kernel
.p2align 8
.type {KNAME}_kernel,@function
{KNAME}_kernel:
"""
    a.c("---- prologue: ids, pointers, first loads")
    a(f"s_cmp_ge_u32 s{S_WG}, 256")
    a("s_cbranch_scc1 L_end")
    stamp(0)
    for _ in range(optv("pad", 0)): a("s_nop 0")
    a("s_load_dwordx16 s[4:19], s[0:1], 0")
    a("s_load_dwordx2 s[22:23], s[0:1], 72")
    a(f"v_lshrrev_b32 v{t0}, 6, v0")
    a(f"v_and_b32 v{L}, 63, v0")
    a(f"v_readfirstlane_b32 s{S_WAVE}, v{t0}")
    if "codepf" in opts:
        a.c("pull one 128-byte line of this kernel's code towards the L2 (each wave a different line; value unused)")
        a(f"s_getpc_b64 s[56:57]")
        a("L_pc:")
        a(f"s_lshr_b32 s58, s{S_WG}, 3")
        a(f"s_lshl_b32 s58, s58, 2")
        a(f"s_add_u32 s58, s58, s{S_WAVE}")
        a(f"s_lshl_b32 s58, s58, 7")
        a(f"s_min_u32 s58, s58, {optv('codelen', 0)}")
        a(f"s_add_u32 s56, s56, s58")
        a(f"s_addc_u32 s57, s57, 0")
        a(f"s_load_dword s58, s[56:57], 0")
    a(f"v_and_b32 v{t0}, 3, v{L}")
    a(f"v_lshrrev_b32 v{t1}, 4, v{L}")
    a(f"v_bfe_u32 v{t2}, v{L}, 2, 2")
    a(f"v_lshlrev_b32 v{V_OFFK}, 4, v{t0}")
    a(f"v_lshl_or_b32 v{V_OFFK}, v{t1}, 6, v{V_OFFK}")
    a(f"v_lshl_or_b32 v{V_OFFK}, v{t2}, 9, v{V_OFFK}")
    a(f"v_lshlrev_b32 v{V_OFFV}, 4, v{L}")
    a(f"s_and_b32 s{S_PAIR}, s{S_WG}, 31")
    a(f"s_lshr_b32 s{S_CHUNK}, s{S_WG}, 5")
    if "lin" in opts:
        a(f"s_lshr_b32 s{S_PAIR}, s{S_WG}, 3")
        a(f"s_and_b32 s{S_CHUNK}, s{S_WG}, 7")
    if "mix" in opts:
        a(f"s_lshr_b32 s{S_T0}, s{S_WG}, 7")
        a(f"s_xor_b32 s{S_PAIR}, s{S_PAIR}, s{S_T0}")
    a(f"s_lshl_b32 s{S_LIN}, s{S_PAIR}, 3")
    a(f"s_add_u32 s{S_LIN}, s{S_LIN}, s{S_CHUNK}")
    a(f"s_lshl_b32 s{S_T0}, s{S_LIN}, 18")
    a(f"s_lshl_b32 s{S_T1}, s{S_WAVE}, 11")
    a(f"s_add_u32 s{S_BASE}, s{S_T0}, s{S_T1}")
    vq, vks, vkz = V_U, V_U + 1, V_U + 2
    a(f"v_lshlrev_b32 v{vks}, 5, v{t1}")
    a(f"v_lshl_or_b32 v{vkz}, v{t0}, 3, v{vks}")
    a(f"v_lshl_or_b32 v{vks}, v{t2}, 3, v{vks}")
    a(f"v_lshl_or_b32 v{vq}, v{t0}, 8, v{vks}")
    a(f"v_lshl_or_b32 v{V_VSOFF}, v{t2}, 2, v{t0}")
    a(f"v_lshlrev_b32 v{V_VSOFF}, 5, v{V_VSOFF}")
    a(f"v_lshl_or_b32 v{V_VSOFF}, v{t1}, 1, v{V_VSOFF}")
    a(f"s_lshl_b32 s{S_T1}, s{S_WAVE}, 3")
    a(f"v_add_u32 v{V_VSOFF}, s{S_T1}, v{V_VSOFF}")
    a("s_waitcnt lgkmcnt(0)")
    stamp(1)
    for srd, p in ((S_KSRD, S_QK), (S_VSRD, S_QV)):
        a(f"s_mov_b32 s{srd}, s{p}")
        a(f"s_and_b32 s{srd+1}, s{p+1}, 0xffff")
        a(f"s_mov_b32 s{srd+2}, 0x4000000")
        a(f"s_mov_b32 s{srd+3}, 0x20000")

    def slot(n): return V_RING + 4 * (n % G)
    st = {"next": 0}
    def issue_big(n):
        isK = n < NL
        m = n if isK else n - NL
        piece, sub = m // 2, m % 2
        if sub == 0: a(f"s_add_u32 s{S_RUN}, s{S_BASE}, {piece*NW*2048}")
        if isK:
            a(f"buffer_load_dwordx4 {vr(slot(n),4)}, v{V_OFFK}, {sr(S_KSRD,4)}, s{S_RUN} offen offset:{sub*256} nt")
        else:
            a(f"buffer_load_dwordx4 {vr(slot(n),4)}, v{V_OFFV}, {sr(S_VSRD,4)}, s{S_RUN} offen offset:{sub*1024} nt")
        issue(n)
    def refill(done):
        while st["next"] < min(2 * NL, done + G):
            issue_big(st["next"]); st["next"] += 1

    refill(0)
    a.c("q, k scales and k zeros of this (batch, kv head) pair and token group")
    a(f"s_lshl_b32 s{S_T0}, s{S_PAIR}, 10")
    a(f"s_add_u32 s{S_Q}, s{S_Q}, s{S_T0}")
    a(f"s_addc_u32 s{S_Q+1}, s{S_Q+1}, 0")
    a(f"s_lshr_b32 s{S_T0}, s{S_LIN}, 2")
    a(f"s_lshl_b32 s{S_T0}, s{S_T0}, 8")
    for p in (S_KS, S_KZ):
        a(f"s_add_u32 s{p}, s{p}, s{S_T0}")
        a(f"s_addc_u32 s{p+1}, s{p+1}, 0")
    a(f"global_load_dwordx2 {vr(V_Q,2)}, v{vq}, {sr(S_Q,2)}")
    a(f"global_load_dwordx2 {vr(V_Q+2,2)}, v{vq}, {sr(S_Q,2)} offset:128")
    a(f"global_load_dwordx2 {vr(V_KSR,2)}, v{vks}, {sr(S_KS,2)}")
    a(f"global_load_dwordx2 {vr(V_KSR+2,2)}, v{vks}, {sr(S_KS,2)} offset:128")
    a(f"global_load_dwordx2 {vr(V_KZR,2)}, v{vkz}, {sr(S_KZ,2)}")
    a(f"global_load_dwordx2 {vr(V_KZR+2,2)}, v{vkz}, {sr(S_KZ,2)} offset:128")
    for t in ("q0", "q1", "ks0", "ks1", "kz0", "kz1"): issue(t)
    a(f"s_lshl_b32 s{S_T0}, s{S_LIN}, 10")
    for p in (S_VS, S_VZ):
        a(f"s_add_u32 s{p}, s{p}, s{S_T0}")
        a(f"s_addc_u32 s{p+1}, s{p+1}, 0")
    def load_vsz():
        for hh in range(NH):
            a(f"global_load_ushort v{V_VS+hh}, v{V_VSOFF}, {sr(S_VS,2)} offset:{hh*512}"); issue(f"vs{hh}")
            a(f"global_load_ushort v{V_VZ+hh}, v{V_VSOFF}, {sr(S_VZ,2)} offset:{hh*512}"); issue(f"vz{hh}")
    if LATEV < 0: load_vsz()
    if "touchv" in opts:
        a.c("address-translation warm-up for this workgroup's V page (value unused)")
        a(f"v_mov_b32 v{V_X}, 0")
        a(f"buffer_load_dword v{V_X}, v{V_X}, {sr(S_VSRD,4)}, s{S_BASE} offen nt")
    a.c("hand-off addresses: slot of this workgroup, slots of the pair, launch cell of the pair")
    a(f"s_lshl_b32 s{S_T0}, s{S_LIN}, 12")
    a(f"s_add_u32 s{S_SLOT}, s{S_WS}, s{S_T0}")
    a(f"s_addc_u32 s{S_SLOT+1}, s{S_WS+1}, 0")
    a(f"s_lshl_b32 s{S_T0}, s{S_PAIR}, 15")
    a(f"s_add_u32 s{S_PSLOT}, s{S_WS}, s{S_T0}")
    a(f"s_addc_u32 s{S_PSLOT+1}, s{S_WS+1}, 0")
    a(f"s_lshl_b32 s{S_T0}, s{S_PAIR}, 7")
    a(f"s_add_u32 s{S_T0}, s{S_T0}, 0x100000")
    a(f"s_add_u32 s{S_CELL}, s{S_WS}, s{S_T0}")
    a(f"s_addc_u32 s{S_CELL+1}, s{S_WS+1}, 0")
    a.c("wave 0 of the pair's last workgroup (the combiner) reads the cell now to announce its XCC later")
    a(f"v_mov_b32 v{V_CELL+1}, 0")
    a(f"s_cmp_eq_u32 s{S_CHUNK}, 7")
    a(f"s_cselect_b32 s{S_SAME}, s{S_WAVE}, 1")
    a(f"s_cmp_lg_u32 s{S_SAME}, 0")
    a("s_cbranch_scc1 L_noearly")
    a(f"global_load_dword v{V_CELL}, v{V_CELL+1}, {sr(S_CELL,2)} sc1")
    a("L_noearly:")
    a(f"v_lshrrev_b32 v{V_PADDR}, 5, v{L}")
    a(f"v_lshlrev_b32 v{V_PADDR}, 5, v{V_PADDR}")
    a(f"v_lshl_or_b32 v{V_PADDR}, v{t0}, 3, v{V_PADDR}")
    a(f"s_lshl_b32 s{S_T1}, s{S_WAVE}, 11")
    a(f"v_add_u32 v{V_PADDR}, s{S_T1}, v{V_PADDR}")

    def warm(do_out, do_slots, lab):
        if not (do_out or do_slots): return
        a(f"s_cmp_lg_u32 s{S_CHUNK}, 7")
        a(f"s_cbranch_scc1 L_nowarm{lab}")
        if do_out:
            a(f"v_mov_b32 v{V_RA}, 0")
            a(f"global_load_dword v{V_X}, v{V_RA}, {sr(S_OUT,2)}")
        if do_slots:
            a(f"v_bfe_u32 v{V_RA}, v{L}, 2, 3")
            a(f"v_lshlrev_b32 v{V_RA}, 12, v{V_RA}")
            a(f"v_and_b32 v{V_RB}, 3, v{L}")
            a(f"v_lshlrev_b32 v{V_RB}, 7, v{V_RB}")
            a(f"s_lshl_b32 s{S_T0}, s{S_WAVE}, 9")
            a(f"v_add_u32 v{V_RB}, s{S_T0}, v{V_RB}")
            a(f"v_mov_b32 v{V_SA}, 2048")
            a(f"v_cmp_gt_u32 vcc, 32, v{L}")
            a("s_nop 1")
            a(f"v_cndmask_b32 v{V_RB}, v{V_SA}, v{V_RB}, vcc")
            a(f"v_add_u32 v{V_RA}, v{V_RA}, v{V_RB}")
            a(f"global_load_dword v{V_X}, v{V_RA}, {sr(S_PSLOT,2)} sc1")
        a(f"L_nowarm{lab}:")
    if "wswarm" in opts:
        a.c("address-translation warm-up for the hand-off page (value unused)")
        a(f"v_mov_b32 v{V_RA}, 0x180000")
        a(f"global_load_dword v{V_X}, v{V_RA}, {sr(S_WS,2)}")
    warm("ewarm" in opts, "eprew" in opts, "a")
    def k_convert(n0, n1, dst):
        for n in (n0, n1):
            for r in range(4): a(f"v_cvt_f32_i32 v{slot(n)+r}, v{slot(n)+r}")
        for jj, n in enumerate((n0, n1)):
            a(f"v_cvt_pk_bf16_f32 v{dst+2*jj}, v{slot(n)}, v{slot(n)+1}")
            a(f"v_cvt_pk_bf16_f32 v{dst+2*jj+1}, v{slot(n)+2}, v{slot(n)+3}")
    a.c("---- first K pieces: convert and refill before q' exists")
    for s in range(PARK):
        wait_for([2 * s, 2 * s + 1])
        if s == 0: stamp(3)
        k_convert(2 * s, 2 * s + 1, V_PARK + 4 * s)
        refill(2 * s + 2)
    a.c("---- q' = q * ks * scale*log2(e), split into bf16 hi + lo")
    wait_for(["q0", "q1", "ks0", "ks1", "kz0", "kz1"])
    stamp(2)
    a(f"s_mov_b32 s{S_T0}, 0x{Cbits:08x}")
    a(f"s_mov_b32 s{S_T1}, 0xffff0000")
    x0, x1, y0, y1 = t0, t1, t2, t3
    for n in range(4):
        a(f"v_lshlrev_b32 v{x0}, 16, v{V_Q+n}")
        a(f"v_and_b32 v{x1}, s{S_T1}, v{V_Q+n}")
        a(f"v_lshlrev_b32 v{y0}, 16, v{V_KSR+n}")
        a(f"v_and_b32 v{y1}, s{S_T1}, v{V_KSR+n}")
        a(f"v_mul_f32 v{x0}, v{x0}, v{y0}")
        a(f"v_mul_f32 v{x1}, v{x1}, v{y1}")
        a(f"v_mul_f32 v{x0}, s{S_T0}, v{x0}")
        a(f"v_mul_f32 v{x1}, s{S_T0}, v{x1}")
        a(f"v_cvt_pk_bf16_f32 v{V_BHI+n}, v{x0}, v{x1}")
        a(f"v_lshlrev_b32 v{y0}, 16, v{V_BHI+n}")
        a(f"v_and_b32 v{y1}, s{S_T1}, v{V_BHI+n}")
        a(f"v_sub_f32 v{x0}, v{x0}, v{y0}")
        a(f"v_sub_f32 v{x1}, v{x1}, v{y1}")
        a(f"v_cvt_pk_bf16_f32 v{V_BLO+n}, v{x0}, v{x1}")
    a("s_nop 1")
    a.c("zero-point term  c_h = sum_d q'_d * kz_d  through the same MFMA layout")
    a(f"v_mfma_f32_16x16x32_bf16 {vr(V_D,4)}, {vr(V_KZR,4)}, {vr(V_BHI,4)}, 0")
    a(f"v_mfma_f32_16x16x32_bf16 {vr(V_D,4)}, {vr(V_KZR,4)}, {vr(V_BLO,4)}, {vr(V_D,4)}")
    a("s_nop 7")
    for c in range(4):
        a(f"v_mov_b32_dpp v{V_NEGC}, v{V_D+c} quad_perm:[0,1,2,3] row_mask:0xf bank_mask:0x{1<<c:x}")
    a("s_nop 1")
    a(f"v_add_f32_dpp v{V_NEGC}, v{V_NEGC}, v{V_NEGC} row_ror:4 row_mask:0xf bank_mask:0xf")
    a("s_nop 1")
    a(f"v_add_f32_dpp v{V_NEGC}, v{V_NEGC}, v{V_NEGC} row_ror:8 row_mask:0xf bank_mask:0xf")
    a(f"v_sub_f32 v{V_NEGC}, 0, v{V_NEGC}")

    a.c("---- K phase: one 4-token piece per step")
    def extract(s):
        hh, b, g = s // 16, (s // 4) % 4, s % 4
        D = V_D + 4 * (s % 4)
        dst = V_S + 4 * hh + g
        for c in range(4):
            rot = (4 * (b - c)) % 16
            ctl = f"row_ror:{rot}" if rot else "quad_perm:[0,1,2,3]"
            a(f"v_add_f32_dpp v{dst}, v{D+c}, v{V_NEGC if c == 0 else dst} {ctl} row_mask:0xf bank_mask:0x{1<<b:x}")
    def qk(D, A):
        a(f"v_mfma_f32_16x16x32_bf16 {vr(D,4)}, {vr(A,4)}, {vr(V_BHI,4)}, 0")
        a(f"v_mfma_f32_16x16x32_bf16 {vr(D,4)}, {vr(A,4)}, {vr(V_BLO,4)}, {vr(D,4)}")
    pend = None
    for s in range(PARK): qk(V_D + 4 * (s % 4), V_PARK + 4 * s)
    if PARK:
        a("s_nop 7")
        for s in range(PARK - 1): extract(s)
        pend = PARK - 1
    for s in range(PARK, NP):
        PK = V_PK + 4 * (s % 2)
        wait_for([2 * s, 2 * s + 1])
        if s == 0: stamp(3)
        k_convert(2 * s, 2 * s + 1, PK)
        refill(2 * s + 2)
        qk(V_D + 4 * (s % 4), PK)
        if pend is not None: extract(pend)
        pend = s
        if s == LATEV: load_vsz()
        if s == G // 2 + 2:
            a.c("the early cell load is older than loads already waited for: announce this launch's combiner XCC")
            a(f"s_cmp_lg_u32 s{S_SAME}, 0")
            a("s_cbranch_scc1 L_noann")
            a(f"v_add_u32 v{V_CELL+2}, 1, v{V_CELL}")
            a(f"s_getreg_b32 s{S_T0}, hwreg(HW_REG_XCC_ID, 0, 4)")
            a(f"v_mov_b32 v{V_CELL+3}, s{S_T0}")
            a("s_mov_b64 exec, 1")
            a(f"global_store_dwordx2 v{V_CELL+1}, {vr(V_CELL+2,2)}, {sr(S_CELL,2)} offset:8 sc1")
            a("s_mov_b64 exec, -1")
            a("L_noann:")
    a("s_nop 7")
    extract(pend)
    stamp(4)

    a.c("---- softmax numerators over the wave's 128 tokens (true max of the wave)")
    S = V_S; NS = 8
    a(f"v_max3_f32 v{V_M}, v{S}, v{S+1}, v{S+2}")
    a(f"v_max3_f32 v{V_M}, v{V_M}, v{S+3}, v{S+4}")
    a(f"v_max3_f32 v{V_M}, v{V_M}, v{S+5}, v{S+6}")
    a(f"v_max_f32 v{V_M}, v{V_M}, v{S+7}")
    def allred(reg, op, tmp):
        a("s_nop 1")
        a(f"{op}_dpp v{reg}, v{reg}, v{reg} row_ror:4 row_mask:0xf bank_mask:0xf")
        a("s_nop 1")
        a(f"{op}_dpp v{reg}, v{reg}, v{reg} row_ror:8 row_mask:0xf bank_mask:0xf")
        a(f"v_mov_b32 v{tmp}, v{reg}")
        a("s_nop 1")
        a(f"v_permlane16_swap_b32 v{tmp}, v{reg}")
        a(f"{op} v{reg}, v{reg}, v{tmp}")
        a(f"v_mov_b32 v{tmp}, v{reg}")
        a("s_nop 1")
        a(f"v_permlane32_swap_b32 v{tmp}, v{reg}")
        a(f"{op} v{reg}, v{reg}, v{tmp}")
    allred(V_M, "v_max_f32", t0)
    for g in range(NS): a(f"v_sub_f32 v{S+g}, v{S+g}, v{V_M}")
    for g in range(NS): a(f"v_exp_f32 v{S+g}, v{S+g}")
    wait_for(["vs0", "vs1", "vz0", "vz1"])
    for hh in range(NH):
        a(f"v_lshlrev_b32 v{V_VS+hh}, 16, v{V_VS+hh}")
        a(f"v_lshlrev_b32 v{V_VZ+hh}, 16, v{V_VZ+hh}")
    a(f"v_add_f32 v{V_L}, v{S}, v{S+1}")
    for g in range(2, NS): a(f"v_add_f32 v{V_L}, v{V_L}, v{S+g}")
    for hh in range(NH):
        for g in range(4):
            a(f"v_mul_f32_dpp v{S+4*hh+g}, v{V_VS+hh}, v{S+4*hh+g} quad_perm:[{g},{g},{g},{g}] row_mask:0xf bank_mask:0xf")
    a(f"s_mov_b32 s{S_T1}, 0xffff0000")
    a.c("P operand write address: b*64 + par*32 + h*8 + kpair*4, lane = 32*kpair + 16*par + 4*b + h")
    a(f"v_bfe_u32 v{t1}, v{L}, 2, 2")
    a(f"v_lshlrev_b32 v{t1}, 6, v{t1}")
    a(f"v_bfe_u32 v{t2}, v{L}, 4, 1")
    a(f"v_lshl_or_b32 v{t1}, v{t2}, 5, v{t1}")
    a(f"v_and_b32 v{t2}, 3, v{L}")
    a(f"v_lshl_or_b32 v{t1}, v{t2}, 3, v{t1}")
    a(f"v_lshrrev_b32 v{t2}, 5, v{L}")
    a(f"v_lshl_or_b32 v{t1}, v{t2}, 2, v{t1}")
    a(f"s_lshl_b32 s{S_T0}, s{S_WAVE}, 11")
    a(f"v_add_u32 v{t1}, s{S_T0}, v{t1}")
    u = V_U; w_ = V_PK; hi, lo = V_PA, V_PA + 2
    for hh in range(NH):
        Sh = S + 4 * hh
        a(f"v_cvt_pk_bf16_f32 v{hi}, v{Sh}, v{Sh+1}")
        a(f"v_cvt_pk_bf16_f32 v{hi+1}, v{Sh+2}, v{Sh+3}")
        a(f"v_lshlrev_b32 v{u}, 16, v{hi}")
        a(f"v_and_b32 v{u+1}, s{S_T1}, v{hi}")
        a(f"v_lshlrev_b32 v{u+2}, 16, v{hi+1}")
        a(f"v_and_b32 v{u+3}, s{S_T1}, v{hi+1}")
        if use_lo:
            for g in range(4): a(f"v_sub_f32 v{Sh+g}, v{Sh+g}, v{u+g}")
            a(f"v_cvt_pk_bf16_f32 v{lo}, v{Sh}, v{Sh+1}")
            a(f"v_cvt_pk_bf16_f32 v{lo+1}, v{Sh+2}, v{Sh+3}")
            a(f"v_lshlrev_b32 v{w_}, 16, v{lo}")
            a(f"v_and_b32 v{w_+1}, s{S_T1}, v{lo}")
            a(f"v_lshlrev_b32 v{w_+2}, 16, v{lo+1}")
            a(f"v_and_b32 v{w_+3}, s{S_T1}, v{lo+1}")
            for g in range(4): a(f"v_add_f32 v{Sh+g}, v{w_+g}, v{u+g}")
            src = Sh
        else:
            src = u
        for g in range(4):
            op = "v_mul_f32_dpp" if (hh == 0 and g == 0) else "v_fmac_f32_dpp"
            a(f"{op} v{V_CZ}, v{V_VZ+hh}, v{src+g} quad_perm:[{g},{g},{g},{g}] row_mask:0xf bank_mask:0xf")
        for base, off in ((u, 0),) + (((w_, LO_OFF),) if use_lo else ()):
            a(f"v_permlane32_swap_b32 v{base}, v{base+1}")
            a(f"v_permlane32_swap_b32 v{base+2}, v{base+3}")
            a(f"v_cvt_pk_bf16_f32 v{base}, v{base}, v{base+1}")
            a(f"v_cvt_pk_bf16_f32 v{base+2}, v{base+2}, v{base+3}")
            a(f"ds_write_b32 v{t1}, v{base} offset:{LDS_P+off+(hh*2)*256}")
            a(f"ds_write_b32 v{t1}, v{base+2} offset:{LDS_P+off+(hh*2+1)*256}")
    a.c("launch cell line (cell value, announcement); address-translation / cache warm-up for the combiner (values unused)")
    a(f"v_mov_b32 v{t0}, 0")
    a(f"global_load_dwordx4 {vr(V_CELL,4)}, v{t0}, {sr(S_CELL,2)}")
    warm("ewarm" not in opts, "eprew" not in opts, "b")
    a("s_waitcnt lgkmcnt(0)")
    stamp(5)

    a.c("---- V phase: one 4-token piece per step, MFMAs every second piece")
    def pa_read(s_):
        hh, b, m = s_ // 16, (s_ // 4) % 4, (s_ % 4) // 2
        P = V_PA + 4 * ((s_ // 2) % 2)
        off = LDS_P + ((hh * 2 + m) * 4 + b) * 64
        a(f"ds_read_b64 {vr(P,2)}, v{V_PADDR} offset:{off}")
        if use_lo: a(f"ds_read_b64 {vr(P+2,2)}, v{V_PADDR} offset:{off+LO_OFF}")
    def redn(n, reg, op, src=None):
        src = reg if src is None else src
        r = n // 2; first = True
        while r >= 1:
            if not first: a("s_nop 1")
            s_ = src if first else reg
            a(f"{op}_dpp v{reg}, v{s_}, v{s_} row_ror:{r} row_mask:0xf bank_mask:0xf")
            first = False; r //= 2
    def publish(data, stats):
        def one(fl):
            if data: a(f"global_store_dwordx2 v{V_RB}, {vr(V_O,2)}, {sr(S_SLOT,2)}{fl}")
            if stats:
                a("s_mov_b64 exec, 1")
                a(f"global_store_dwordx4 v{V_SA}, {vr(V_ML,4)}, {sr(S_SLOT,2)} offset:2048{fl}")
                a("s_mov_b64 exec, -1")
        k = "d" if data else "s"
        a(f"s_cmp_eq_u32 s{S_SAME}, 0")
        a(f"s_cbranch_scc1 L_pubfast_{k}")
        one(" sc1")
        a(f"s_branch L_pubdone_{k}")
        a(f"L_pubfast_{k}:")
        one("")
        a(f"L_pubdone_{k}:")
    for s_ in range(NP):
        n0, n1 = NL + 2 * s_, NL + 2 * s_ + 1
        if s_ % 2 == 0: pa_read(s_)
        if s_ == BARP:
            a.c("every wave has written its statistics: exchange them")
            a("s_barrier")
            a(f"v_and_b32 v{t2}, 3, v{L}")
            a(f"s_lshl_b32 s{S_T0}, s{S_WAVE}, 6")
            a(f"v_lshl_add_u32 v{t2}, v{t2}, 4, s{S_T0}")
            a(f"ds_read_b128 {vr(V_ST,4)}, v{t2} offset:{LDS_STAT}")
        if s_ == NP - 2:
            a.c("combiner: prefetch the pair's statistics")
            a(f"s_cmp_lg_u32 s{S_CHUNK}, 7")
            a("s_cbranch_scc1 L_nostpf")
            a(f"global_load_dwordx4 {vr(V_ST,4)}, v{V_PST}, {sr(S_PSLOT,2)} offset:2048 sc1")
            a("L_nostpf:")
        wait_for([n0, n1])
        for n in (n0, n1):
            for r in range(4): a(f"v_cvt_f32_i32 v{slot(n)+r}, v{slot(n)+r}")
        for r in range(4):
            a(f"v_cvt_pk_bf16_f32 v{V_PK+2*r+(s_%2)}, v{slot(n0)+r}, v{slot(n1)+r}")
        refill(n1 + 1)
        if s_ % 2 == 1:
            P = V_PA + 4 * ((s_ // 2) % 2)
            a("s_waitcnt lgkmcnt(0)")
            for r in range(4):
                c_in = "0" if s_ == 1 else vr(V_ACC + 4 * r, 4)
                a(f"v_mfma_f32_4x4x4_16b_bf16 {vr(V_ACC+4*r,4)}, {vr(P,2)}, {vr(V_PK+2*r,2)}, {c_in}")
            if use_lo:
                for r in range(4):
                    a(f"v_mfma_f32_4x4x4_16b_bf16 {vr(V_ACC+4*r,4)}, {vr(P+2,2)}, {vr(V_PK+2*r,2)}, {vr(V_ACC+4*r,4)}")
        if s_ == 1:
            a.c("wave statistics (m, l, cz) per head -> LDS")
            allred(V_L, "v_add_f32", t0)
            allred(V_CZ, "v_add_f32", t0)
            a(f"v_lshlrev_b32 v{t1}, 6, v{L}")
            a(f"s_lshl_b32 s{S_T0}, s{S_WAVE}, 4")
            a(f"v_add_u32 v{t1}, s{S_T0}, v{t1}")
            a("s_mov_b64 exec, 0xf")
            a(f"ds_write_b128 v{t1}, {vr(V_M,4)} offset:{LDS_STAT}")
            a("s_mov_b64 exec, -1")
        if s_ == 3:
            a.c("addresses used by the tail")
            a(f"s_lshl_b32 s{S_T0}, s{S_WAVE}, 11")
            a(f"v_lshl_add_u32 v{V_RA}, v{L}, 3, s{S_T0}")
            a(f"s_lshl_b32 s{S_T0}, s{S_WAVE}, 9")
            a(f"v_lshl_add_u32 v{V_RB}, v{L}, 3, s{S_T0}")
            a(f"s_lshl_b32 s{S_T0}, s{S_WAVE}, 4")
            a(f"v_mov_b32 v{V_SA}, s{S_T0}")
            a(f"v_and_b32 v{V_PST}, 7, v{L}")
            a(f"v_lshlrev_b32 v{V_PST}, 12, v{V_PST}")
            a(f"v_add_u32 v{V_PST}, s{S_T0}, v{V_PST}")
            for c in range(8): a(f"v_add_u32 v{V_PAD+c}, {c*4096}, v{V_RB}")
            a(f"v_and_b32 v{V_OA}, 31, v{L}")
            a(f"v_lshlrev_b32 v{V_OA}, 3, v{V_OA}")
            a(f"v_lshrrev_b32 v{t3}, 5, v{L}")
            a(f"v_lshl_or_b32 v{V_OA}, v{t3}, 2, v{V_OA}")
            a(f"s_lshl_b32 s{S_T0}, s{S_PAIR}, 10")
            a(f"s_lshl_b32 s{S_T1}, s{S_WAVE}, 8")
            a(f"s_add_u32 s{S_T0}, s{S_T0}, s{S_T1}")
            a(f"v_add_u32 v{V_OA}, s{S_T0}, v{V_OA}")
        if s_ == BARP - 2:
            a.c("launch tag = cell + 1; the fast hand-off applies iff the combiner announced this XCC in this launch")
            a(f"v_add_u32 v{V_TAG}, 1, v{V_CELL}")
            a(f"s_movk_i32 s{S_FF}, 0xff")
            a(f"s_getreg_b32 s{S_T0}, hwreg(HW_REG_XCC_ID, 0, 4)")
            a(f"v_xor_b32 v{V_CELL+2}, v{V_CELL+2}, v{V_TAG}")
            a(f"v_xor_b32 v{V_CELL+3}, s{S_T0}, v{V_CELL+3}")
            a(f"v_or_b32 v{V_CELL+2}, v{V_CELL+2}, v{V_CELL+3}")
            if "slow" in opts: a(f"v_mov_b32 v{V_CELL+2}, 1")
            a("s_nop 0")
            a(f"v_readfirstlane_b32 s{S_SAME}, v{V_CELL+2}")
        if s_ == BARP + 1:
            a.c("workgroup weights for head = wave: M, alpha_w, L, sum alpha_w cz_w; publish the statistics")
            redn(NW, V_M, "v_max_f32", V_ST)
            a(f"v_and_b32 v{V_M}, 0xffffff00, v{V_M}")
            a(f"v_sub_f32 v{V_AL}, v{V_ST}, v{V_M}")
            a(f"v_exp_f32 v{V_AL}, v{V_AL}")
            a(f"v_bfi_b32 v{V_ML}, s{S_FF}, v{V_TAG}, v{V_M}")
            a(f"v_mul_f32 v{V_L}, v{V_AL}, v{V_ST+1}")
            a(f"v_mul_f32 v{V_CZ}, v{V_AL}, v{V_ST+2}")
            a(f"v_mov_b32 v{V_ML+2}, v{V_TAG}")
            redn(NW, V_L, "v_add_f32")
            a(f"v_mov_b32 v{V_ML+3}, v{V_TAG}")
            redn(NW, V_CZ, "v_add_f32")
            a(f"v_bfi_b32 v{V_ML+1}, s{S_FF}, v{V_TAG}, v{V_L}")
            a(f"v_sub_f32 v{V_O}, 0, v{V_CZ}")
            a(f"v_sub_f32 v{V_O+1}, 0, v{V_CZ}")
            publish(False, True)
    stamp(6)

    a.c("---- workgroup reduction")
    a("s_nop 4")
    for i in range(4):
        a(f"v_permlane32_swap_b32 v{V_ACC+i}, v{V_ACC+8+i}")
        a(f"v_permlane32_swap_b32 v{V_ACC+4+i}, v{V_ACC+12+i}")
    X = V_PK
    for i in range(4):
        a(f"v_add_f32 v{X+2*i}, v{V_ACC+i}, v{V_ACC+8+i}")
        a(f"v_add_f32 v{X+2*i+1}, v{V_ACC+4+i}, v{V_ACC+12+i}")
        a(f"ds_write_b64 v{V_RA}, {vr(X+2*i,2)} offset:{LDS_RED+512*i}")
    a("s_waitcnt lgkmcnt(0)")
    a("s_barrier")
    stamp(7)
    Z = V_RING
    for w in range(NW):
        a(f"ds_read_b64 {vr(Z+2*w,2)}, v{V_RB} offset:{LDS_RED+2048*w}")
    for w in range(NW):
        a(f"s_waitcnt lgkmcnt({NW-1-w})")
        a(f"v_fmac_f32_dpp v{V_O}, v{V_AL}, v{Z+2*w} row_newbcast:{w} row_mask:0xf bank_mask:0xf")
        a(f"v_fmac_f32_dpp v{V_O+1}, v{V_AL}, v{Z+2*w+1} row_newbcast:{w} row_mask:0xf bank_mask:0xf")
    a(f"v_bfi_b32 v{V_O}, s{S_FF}, v{V_TAG}, v{V_O}")
    a(f"v_bfi_b32 v{V_O+1}, s{S_FF}, v{V_TAG}, v{V_O+1}")
    publish(True, False)
    stamp(8)
    a(f"s_cmp_lg_u32 s{S_CHUNK}, 7")
    a("s_cbranch_scc1 L_fin0" if stamps else "s_cbranch_scc1 L_end")

    if "nopoll" in opts: a("s_branch L_fin0" if stamps else "s_branch L_end")
    a.c("---- combiner: merge the pair's 8 partials")
    def poll_data():
        for c in range(8):
            a(f"global_load_dwordx2 {vr(V_Y+2*c,2)}, v{V_PAD+c}, {sr(S_PSLOT,2)} sc1")
    poll_data()
    a(f"s_mov_b32 s{S_SPIN}, {spin}")
    a("L_stchk:")
    a(f"v_xor_b32 v{t0}, v{V_ST}, v{V_TAG}")
    a(f"v_bitop3_b32 v{t0}, v{V_ST+1}, v{t0}, v{V_TAG} bitop3:0xde")
    a(f"v_xor_b32 v{t3}, v{V_ST+2}, v{V_TAG}")
    a(f"v_bitop3_b32 v{t3}, v{V_ST+3}, v{t3}, v{V_TAG} bitop3:0xde")
    a(f"v_and_or_b32 v{t0}, v{t0}, s{S_FF}, v{t3}")
    a(f"v_cmp_ne_u32 vcc, 0, v{t0}")
    a("s_cbranch_vccz L_stok")
    a(f"s_sub_u32 s{S_SPIN}, s{S_SPIN}, 1")
    a("s_cbranch_scc1 L_end")
    a(f"global_load_dwordx4 {vr(V_ST,4)}, v{V_PST}, {sr(S_PSLOT,2)} offset:2048 sc1")
    a("s_waitcnt vmcnt(0)")
    a("s_branch L_stchk")
    a("L_stok:")
    a(f"v_and_b32 v{V_ST}, 0xffffff00, v{V_ST}")
    a("s_nop 1")
    redn(8, V_M, "v_max_f32", V_ST)
    a(f"v_sub_f32 v{V_AL}, v{V_ST}, v{V_M}")
    a(f"v_exp_f32 v{V_AL}, v{V_AL}")
    a("s_nop 0")
    a(f"v_mul_f32 v{V_L}, v{V_AL}, v{V_ST+1}")
    a("s_nop 1")
    redn(8, V_L, "v_add_f32")
    a(f"v_rcp_f32 v{t0}, v{V_L}")
    a("s_nop 0")
    a(f"v_mul_f32 v{V_AL}, v{V_AL}, v{t0}")
    a("L_dchk:")
    for c in range(8):
        a(f"s_waitcnt vmcnt({7-c})")
        if c == 0:
            a(f"v_xor_b32 v{t0}, v{V_Y}, v{V_TAG}")
        else:
            a(f"v_bitop3_b32 v{t0}, v{V_Y+2*c}, v{t0}, v{V_TAG} bitop3:0xde")
        a(f"v_bitop3_b32 v{t0}, v{V_Y+2*c+1}, v{t0}, v{V_TAG} bitop3:0xde")
    a(f"v_and_b32 v{t0}, s{S_FF}, v{t0}")
    a(f"v_cmp_ne_u32 vcc, 0, v{t0}")
    a("s_cbranch_vccz L_ready")
    a(f"s_sub_u32 s{S_SPIN}, s{S_SPIN}, 1")
    a("s_cbranch_scc1 L_end")
    poll_data()
    a("s_branch L_dchk")
    a("L_ready:")
    stamp(9)
    O0, O1 = V_O, V_O + 1
    a(f"v_mul_f32_dpp v{O0}, v{V_AL}, v{V_Y} row_newbcast:0 row_mask:0xf bank_mask:0xf")
    a(f"v_mul_f32_dpp v{O1}, v{V_AL}, v{V_Y+1} row_newbcast:0 row_mask:0xf bank_mask:0xf")
    for c in range(1, 8):
        a(f"v_fmac_f32_dpp v{O0}, v{V_AL}, v{V_Y+2*c} row_newbcast:{c} row_mask:0xf bank_mask:0xf")
        a(f"v_fmac_f32_dpp v{O1}, v{V_AL}, v{V_Y+2*c+1} row_newbcast:{c} row_mask:0xf bank_mask:0xf")
    a(f"v_cvt_pk_bf16_f32 v{t0}, v{O0}, v{O1}")
    a(f"global_store_dword v{V_OA}, v{t0}, {sr(S_OUT,2)} sc1")
    a.c("all eight workgroups have published, so all have read the cell: advance it for the next launch")
    a(f"s_cmp_lg_u32 s{S_WAVE}, 0")
    a("s_cbranch_scc1 L_nocell")
    a(f"v_mov_b32 v{t3}, 0")
    a("s_mov_b64 exec, 1")
    a(f"global_store_dword v{t3}, v{V_TAG}, {sr(S_CELL,2)} sc1")
    a("s_mov_b64 exec, -1")
    a("L_nocell:")
    if stamps and optv("amp", 0):
        stamp(10)
        a("s_waitcnt lgkmcnt(0)")
        K_, ia, ib = optv("amp", 0), optv("ampa", 0), optv("ampb", 10)
        a(f"s_sub_u32 s{S_T0}, s{S_ST+2*ib}, s{S_ST+2*ia}")
        a(f"s_min_u32 s{S_T0}, s{S_T0}, 20000")
        a(f"s_mul_i32 s{S_T0}, s{S_T0}, {K_}")
        a(f"s_add_u32 s{S_T0}, s{S_T0}, s{S_ST+20}")
        a("L_amp:")
        a(f"s_memrealtime s[{S_ST+22}:{S_ST+23}]")
        a("s_waitcnt lgkmcnt(0)")
        a(f"s_sub_u32 s{S_T1}, s{S_ST+22}, s{S_T0}")
        a(f"s_cmp_lt_i32 s{S_T1}, 0")
        a("s_cbranch_scc1 L_amp")
        a("L_fin0:")
    elif stamps:
        stamp(10)
        a("L_fin0:")
        a("s_waitcnt lgkmcnt(0)")
        vx, va_ = t0, t1
        a(f"v_mov_b32 v{vx}, 0")
        for i in range(11): a(f"v_writelane_b32 v{vx}, s{S_ST+2*i}, {i}")
        a(f"s_getreg_b32 s{S_T1}, hwreg(HW_REG_HW_ID)")
        a(f"v_writelane_b32 v{vx}, s{S_T1}, 14")
        a(f"s_getreg_b32 s{S_T1}, hwreg(HW_REG_XCC_ID)")
        a(f"v_writelane_b32 v{vx}, s{S_T1}, 15")
        a(f"s_mul_i32 s{S_T1}, s{S_WG}, {NW}")
        a(f"s_add_u32 s{S_T1}, s{S_T1}, s{S_WAVE}")
        a(f"s_lshl_b32 s{S_T1}, s{S_T1}, 6")
        a(f"s_add_u32 s{S_T1}, s{S_T1}, 0x8000000")
        a(f"v_lshl_add_u32 v{va_}, v{L}, 2, s{S_T1}")
        a("s_mov_b64 exec, 0xffff")
        a(f"global_store_dword v{va_}, v{vx}, {sr(S_WS,2)}")
    a("L_end:")
    a("s_endpgm")
    tail = f""".section .rodata,"a"
.p2align 6
.amdhsa_kernel {KNAME}_kernel
  .amdhsa_next_free_vgpr {NV}
  .amdhsa_next_free_sgpr {96 if stamps else 64}
  .amdhsa_accum_offset {(NV+3)//4*4}
  .amdhsa_group_segment_fixed_size 0
  .amdhsa_kernarg_size 80
  .amdhsa_user_sgpr_count 2
  .amdhsa_user_sgpr_kernarg_segment_ptr 1
  .amdhsa_system_sgpr_workgroup_id_x 1
  .amdhsa_float_denorm_mode_32 3
.end_amdhsa_kernel
"""
    txt = a.text()
    def drop(pred):
        nonlocal txt
        txt = "\n".join(l for l in txt.split("\n") if not pred(l))
    if "nosmall" in opts: drop(lambda l: "global_load_dwordx2 v[4" in l or "global_load_dwordx2 v[50" in l or "global_load_ushort" in l)
    if "noq" in opts: drop(lambda l: "global_load_dwordx2 v[4" in l or "global_load_dwordx2 v[50" in l)
    if "novs" in opts: drop(lambda l: "global_load_ushort" in l)
    if "nocell" in opts: drop(lambda l: f"global_load_dword v{V_X}" in l or f"global_load_dword v{V_CELL}" in l or f"global_load_dwordx4 v[{V_CELL}" in l or "offset:8 sc1" in l or f"global_load_dwordx4 v[{V_ST}" in l)
    if "nobar" in opts:
        i = txt.index("s_barrier"); txt = txt[:i] + "s_nop 0" + txt[i+len("s_barrier"):]
    if "novalu" in opts: drop(lambda l: "v_cvt_f32_i32" in l or "v_mfma" in l or "v_cvt_pk_bf16" in l or "_dpp" in l or "v_exp" in l or "v_permlane" in l)
    return head + txt + tail, lds

DOC = """; Split-KV decode attention over int32-stored quantisation codes.
"""

if __name__ == "__main__":
    ap = argparse.ArgumentParser()
    ap.add_argument("-G", type=int, default=8)
    ap.add_argument("--stamps", action="store_true")
    ap.add_argument("--opt", action="append", default=[])
    ap.add_argument("-o", default="cdna_kernels/" + KNAME + ".s")
    args = ap.parse_args()
    s, lds = gen(G=args.G, stamps=args.stamps, opts=args.opt)
    if "codepf" in args.opt:
        import subprocess, re, os
        opts2 = args.opt + ["codelen=65"]
        s, lds = gen(G=args.G, stamps=args.stamps, opts=opts2)
        tmp = "_pass1.s"
        open(tmp, "w").write(s)
        subprocess.run(["clang", "-x", "assembler", "-target", "amdgcn-amd-amdhsa", "-mcpu=gfx950", "-c", tmp, "-o", tmp + ".o"], check=True)
        d = subprocess.run(["nm", tmp + ".o"], capture_output=True, text=True).stdout
        pc = int(re.search(r"([0-9a-f]+) t L_pc", d).group(1), 16); end = int(re.search(r"([0-9a-f]+) t L_end", d).group(1), 16)
        s, lds = gen(G=args.G, stamps=args.stamps, opts=args.opt + [f"codelen={end - pc}"])
        os.remove(tmp); os.remove(tmp + ".o")
    open(args.o, "w").write(s)
    print(lds)
```

```python
import math, argparse, struct

KNAME = "standalone__kv_cache_quant_int4_int2_kv_with_per_channel_or_per_token_scales__decode"

class Asm:
    def __init__(self): self.lines = []
    def __call__(self, s=""):
        s = s.strip()
        self.lines.append(s if s.endswith(":") else "    " + s)
    def c(self, s): self.lines.append("    ; " + s)
    def text(self): return "\n".join(self.lines) + "\n"

def vr(a, n=1): return f"v{a}" if n == 1 else f"v[{a}:{a+n-1}]"
def sr(a, n=1): return f"s{a}" if n == 1 else f"s[{a}:{a+n-1}]"
def f32bits(x): return struct.unpack("<I", struct.pack("<f", x))[0]

def gen(G=8, spin=1 << 18, stamps=False, opts=()):
    a = Asm()
    def optv(name, default):
        for o in opts:
            if o.startswith(name + "="): return int(o.split("=")[1])
        return default
    NW = 4
    NH = 2
    NP = 32
    NL = 64
    use_lo = "nolo" not in opts
    PARK = optv("park", 4)
    LATEV = optv("latev", 8)
    BARP = NP - optv("barp", 8)
    S_WG = 2; S_WAVE = 3
    S_Q, S_QK, S_QV, S_KS, S_KZ, S_VS, S_VZ, S_OUT = 4, 6, 8, 10, 12, 14, 16, 18
    S_WS = 22
    S_KSRD = 24; S_VSRD = 28
    S_BASE = 32; S_RUN = 33
    S_PAIR = 40; S_CHUNK = 41; S_T0 = 42; S_T1 = 43
    S_SLOT = 44; S_PSLOT = 46; S_CELL = 48
    S_SPIN = 52; S_LIN = 53; S_SAME = 54; S_FF = 55
    S_ST = 70
    L = 0; V_OFFK = 1; V_OFFV = 2
    t0, t1, t2, t3 = 3, 4, 5, 6
    V_U = 7
    V_VSOFF = 11
    V_BHI = 12; V_BLO = 16
    V_NEGC = 20; V_PADDR = 21; V_TAG = 22; V_AL = 23
    V_M = 24; V_L = 25; V_CZ = 26
    V_S = 28
    V_VS = 36; V_VZ = 38
    V_PK = 40
    V_D = 56; V_ACC = 56
    V_PA = 72
    V_CELL = 80
    V_RING = 84
    V_PARK = V_RING + 4 * G
    R = V_PARK + 16
    V_RA, V_RB, V_SA, V_OA, V_PST, V_X = R, R + 1, R + 2, R + 3, R + 4, R + 5
    V_O = R + 6
    V_ML = R + 8
    V_PAD = R + 12
    V_ST = R + 20
    V_Y = R + 24
    NV = R + 40
    assert NV <= 256 and V_O % 2 == 0
    V_Q = V_PK; V_KSR = V_PK + 4; V_KZR = V_PK + 8
    LDS_P = 0; LO_OFF = NH * 512
    LDS_RED = NW * NH * 1024
    LDS_STAT = LDS_RED + NW * 2048
    lds = LDS_STAT + 256
    Cbits = f32bits((128 ** -0.5) * math.log2(math.e))

    queue = []
    def issue(tag): queue.append(tag)
    def wait_for(tags):
        idx = max((queue.index(t) for t in tags if t in queue), default=-1)
        if idx < 0: return
        n = len(queue) - 1 - idx
        assert n <= 63
        a(f"s_waitcnt vmcnt({n})")
        del queue[:idx + 1]
    def stamp(i):
        if stamps: a(f"s_memrealtime s[{S_ST+2*i}:{S_ST+2*i+1}]")

    hdr = open("cdna_kernels/" + KNAME + ".s.ref").read().split("\n")
    out = []
    for l in hdr:
        if l.startswith("; @launch"):
            out.append(f"; @launch grid=(256,1,1) block=({NW*64},1,1) lds={lds}")
            break
        if l.startswith("; Override launch") or l.startswith("; grid=ceil"): continue
        out.append(l)
    head = "\n".join(out) + "\n" + DOC
    head += f""".amdgcn_target "amdgcn-amd-amdhsa--gfx950"
.text
.globl {KNAME}_kernel
.p2align 8
.type {KNAME}_kernel,@function
{KNAME}_kernel:
"""
    a.c("---- prologue: ids, pointers, first loads")
    a(f"s_cmp_ge_u32 s{S_WG}, 256")
    a("s_cbranch_scc1 L_end")
    stamp(0)
    for _ in range(optv("pad", 0)): a("s_nop 0")
    a("s_load_dwordx16 s[4:19], s[0:1], 0")
    a("s_load_dwordx2 s[22:23], s[0:1], 72")
    a(f"v_lshrrev_b32 v{t0}, 6, v0")
    a(f"v_and_b32 v{L}, 63, v0")
    a(f"v_readfirstlane_b32 s{S_WAVE}, v{t0}")
    def codepf():
        if "codepf" not in opts: return
        a.c("pull one 128-byte line of this kernel's code towards the L2 (each wave a different line; value unused)")
        a(f"s_getpc_b64 s[56:57]")
        a("L_pc:")
        a(f"s_lshr_b32 s58, s{S_WG}, 3")
        a(f"s_lshl_b32 s58, s58, 2")
        a(f"s_add_u32 s58, s58, s{S_WAVE}")
        a(f"s_lshl_b32 s58, s58, 7")
        a(f"s_min_u32 s58, s58, {optv('codelen', 0)}")
        a(f"s_add_u32 s56, s56, s58")
        a(f"s_addc_u32 s57, s57, 0")
        a(f"s_load_dword s58, s[56:57], 0")
    if "cpfearly" in opts: codepf()
    a(f"v_and_b32 v{t0}, 3, v{L}")
    a(f"v_lshrrev_b32 v{t1}, 4, v{L}")
    a(f"v_bfe_u32 v{t2}, v{L}, 2, 2")
    a(f"v_lshlrev_b32 v{V_OFFK}, 4, v{t0}")
    a(f"v_lshl_or_b32 v{V_OFFK}, v{t1}, 6, v{V_OFFK}")
    a(f"v_lshl_or_b32 v{V_OFFK}, v{t2}, 9, v{V_OFFK}")
    a(f"v_lshlrev_b32 v{V_OFFV}, 4, v{L}")
    a(f"s_and_b32 s{S_PAIR}, s{S_WG}, 31")
    a(f"s_lshr_b32 s{S_CHUNK}, s{S_WG}, 5")
    if "lin" in opts:
        a(f"s_lshr_b32 s{S_PAIR}, s{S_WG}, 3")
        a(f"s_and_b32 s{S_CHUNK}, s{S_WG}, 7")
    if "mix" in opts:
        a(f"s_lshr_b32 s{S_T0}, s{S_WG}, 7")
        a(f"s_xor_b32 s{S_PAIR}, s{S_PAIR}, s{S_T0}")
    a(f"s_lshl_b32 s{S_LIN}, s{S_PAIR}, 3")
    a(f"s_add_u32 s{S_LIN}, s{S_LIN}, s{S_CHUNK}")
    a(f"s_lshl_b32 s{S_T0}, s{S_LIN}, 18")
    a(f"s_lshl_b32 s{S_T1}, s{S_WAVE}, 11")
    a(f"s_add_u32 s{S_BASE}, s{S_T0}, s{S_T1}")
    vq, vks, vkz = V_U, V_U + 1, V_U + 2
    a(f"v_lshlrev_b32 v{vks}, 5, v{t1}")
    a(f"v_lshl_or_b32 v{vkz}, v{t0}, 3, v{vks}")
    a(f"v_lshl_or_b32 v{vks}, v{t2}, 3, v{vks}")
    a(f"v_lshl_or_b32 v{vq}, v{t0}, 8, v{vks}")
    a(f"v_lshl_or_b32 v{V_VSOFF}, v{t2}, 2, v{t0}")
    a(f"v_lshlrev_b32 v{V_VSOFF}, 5, v{V_VSOFF}")
    a(f"v_lshl_or_b32 v{V_VSOFF}, v{t1}, 1, v{V_VSOFF}")
    a(f"s_lshl_b32 s{S_T1}, s{S_WAVE}, 3")
    a(f"v_add_u32 v{V_VSOFF}, s{S_T1}, v{V_VSOFF}")
    a("s_waitcnt lgkmcnt(0)")
    stamp(1)
    for srd, p in ((S_KSRD, S_QK), (S_VSRD, S_QV)):
        a(f"s_mov_b32 s{srd}, s{p}")
        a(f"s_and_b32 s{srd+1}, s{p+1}, 0xffff")
        a(f"s_mov_b32 s{srd+2}, 0x4000000")
        a(f"s_mov_b32 s{srd+3}, 0x20000")

    def slot(n): return V_RING + 4 * (n % G)
    st = {"next": 0}
    def issue_big(n):
        isK = n < NL
        m = n if isK else n - NL
        piece, sub = m // 2, m % 2
        if sub == 0: a(f"s_add_u32 s{S_RUN}, s{S_BASE}, {piece*NW*2048}")
        if isK:
            a(f"buffer_load_dwordx4 {vr(slot(n),4)}, v{V_OFFK}, {sr(S_KSRD,4)}, s{S_RUN} offen offset:{sub*256} nt")
        else:
            a(f"buffer_load_dwordx4 {vr(slot(n),4)}, v{V_OFFV}, {sr(S_VSRD,4)}, s{S_RUN} offen offset:{sub*1024} nt")
        issue(n)
    DK = optv("dk", G); DV = optv("dv", G); D0 = optv("d0", DK)
    assert max(DK, DV, D0) <= G
    def refill(done):
        depth = D0 if done <= 2 * PARK else (DK if done < NL - DK else DV)
        while st["next"] < min(2 * NL, done + depth):
            issue_big(st["next"]); st["next"] += 1

    refill(0)
    if "cpfearly" not in opts: codepf()
    a.c("q, k scales and k zeros of this (batch, kv head) pair and token group")
    a(f"s_lshl_b32 s{S_T0}, s{S_PAIR}, 10")
    a(f"s_add_u32 s{S_Q}, s{S_Q}, s{S_T0}")
    a(f"s_addc_u32 s{S_Q+1}, s{S_Q+1}, 0")
    a(f"s_lshr_b32 s{S_T0}, s{S_LIN}, 2")
    a(f"s_lshl_b32 s{S_T0}, s{S_T0}, 8")
    for p in (S_KS, S_KZ):
        a(f"s_add_u32 s{p}, s{p}, s{S_T0}")
        a(f"s_addc_u32 s{p+1}, s{p+1}, 0")
    a(f"global_load_dwordx2 {vr(V_Q,2)}, v{vq}, {sr(S_Q,2)}")
    a(f"global_load_dwordx2 {vr(V_Q+2,2)}, v{vq}, {sr(S_Q,2)} offset:128")
    a(f"global_load_dwordx2 {vr(V_KSR,2)}, v{vks}, {sr(S_KS,2)}")
    a(f"global_load_dwordx2 {vr(V_KSR+2,2)}, v{vks}, {sr(S_KS,2)} offset:128")
    a(f"global_load_dwordx2 {vr(V_KZR,2)}, v{vkz}, {sr(S_KZ,2)}")
    a(f"global_load_dwordx2 {vr(V_KZR+2,2)}, v{vkz}, {sr(S_KZ,2)} offset:128")
    for t in ("q0", "q1", "ks0", "ks1", "kz0", "kz1"): issue(t)
    a(f"s_lshl_b32 s{S_T0}, s{S_LIN}, 10")
    for p in (S_VS, S_VZ):
        a(f"s_add_u32 s{p}, s{p}, s{S_T0}")
        a(f"s_addc_u32 s{p+1}, s{p+1}, 0")
    def load_vsz():
        for hh in range(NH):
            a(f"global_load_ushort v{V_VS+hh}, v{V_VSOFF}, {sr(S_VS,2)} offset:{hh*512}"); issue(f"vs{hh}")
            a(f"global_load_ushort v{V_VZ+hh}, v{V_VSOFF}, {sr(S_VZ,2)} offset:{hh*512}"); issue(f"vz{hh}")
    if LATEV < 0: load_vsz()
    if "touchv" in opts:
        a.c("address-translation warm-up for this workgroup's V page (value unused)")
        a(f"v_mov_b32 v{V_X}, 0")
        a(f"buffer_load_dword v{V_X}, v{V_X}, {sr(S_VSRD,4)}, s{S_BASE} offen nt")
    a.c("hand-off addresses: slot of this workgroup, slots of the pair, launch cell of the pair")
    a(f"s_lshl_b32 s{S_T0}, s{S_LIN}, 12")
    a(f"s_add_u32 s{S_SLOT}, s{S_WS}, s{S_T0}")
    a(f"s_addc_u32 s{S_SLOT+1}, s{S_WS+1}, 0")
    a(f"s_lshl_b32 s{S_T0}, s{S_PAIR}, 15")
    a(f"s_add_u32 s{S_PSLOT}, s{S_WS}, s{S_T0}")
    a(f"s_addc_u32 s{S_PSLOT+1}, s{S_WS+1}, 0")
    a(f"s_lshl_b32 s{S_T0}, s{S_PAIR}, 7")
    a(f"s_add_u32 s{S_T0}, s{S_T0}, 0x100000")
    a(f"s_add_u32 s{S_CELL}, s{S_WS}, s{S_T0}")
    a(f"s_addc_u32 s{S_CELL+1}, s{S_WS+1}, 0")
    a.c("wave 0 of the pair's last workgroup (the combiner) reads the cell now to announce its XCC later")
    a(f"v_mov_b32 v{V_CELL+1}, 0")
    a(f"s_cmp_eq_u32 s{S_CHUNK}, 7")
    a(f"s_cselect_b32 s{S_SAME}, s{S_WAVE}, 1")
    a(f"s_cmp_lg_u32 s{S_SAME}, 0")
    a("s_cbranch_scc1 L_noearly")
    a(f"global_load_dword v{V_CELL}, v{V_CELL+1}, {sr(S_CELL,2)} sc1")
    a("L_noearly:")
    a(f"v_lshrrev_b32 v{V_PADDR}, 5, v{L}")
    a(f"v_lshlrev_b32 v{V_PADDR}, 5, v{V_PADDR}")
    a(f"v_lshl_or_b32 v{V_PADDR}, v{t0}, 3, v{V_PADDR}")
    a(f"s_lshl_b32 s{S_T1}, s{S_WAVE}, 11")
    a(f"v_add_u32 v{V_PADDR}, s{S_T1}, v{V_PADDR}")

    def warm(do_out, do_slots, lab):
        if not (do_out or do_slots): return
        a(f"s_cmp_lg_u32 s{S_CHUNK}, 7")
        a(f"s_cbranch_scc1 L_nowarm{lab}")
        if do_out:
            a(f"v_mov_b32 v{V_RA}, 0")
            a(f"global_load_dword v{V_X}, v{V_RA}, {sr(S_OUT,2)}")
        if do_slots:
            a(f"v_bfe_u32 v{V_RA}, v{L}, 2, 3")
            a(f"v_lshlrev_b32 v{V_RA}, 12, v{V_RA}")
            a(f"v_and_b32 v{V_RB}, 3, v{L}")
            a(f"v_lshlrev_b32 v{V_RB}, 7, v{V_RB}")
            a(f"s_lshl_b32 s{S_T0}, s{S_WAVE}, 9")
            a(f"v_add_u32 v{V_RB}, s{S_T0}, v{V_RB}")
            a(f"v_mov_b32 v{V_SA}, 2048")
            a(f"v_cmp_gt_u32 vcc, 32, v{L}")
            a("s_nop 1")
            a(f"v_cndmask_b32 v{V_RB}, v{V_SA}, v{V_RB}, vcc")
            a(f"v_add_u32 v{V_RA}, v{V_RA}, v{V_RB}")
            a(f"global_load_dword v{V_X}, v{V_RA}, {sr(S_PSLOT,2)} sc1")
        a(f"L_nowarm{lab}:")
    if "wswarm" in opts:
        a.c("address-translation warm-up for the hand-off page (value unused)")
        a(f"v_mov_b32 v{V_RA}, 0x180000")
        a(f"global_load_dword v{V_X}, v{V_RA}, {sr(S_WS,2)}")
    warm("ewarm" in opts, "eprew" in opts, "a")
    def k_convert(n0, n1, dst):
        for n in (n0, n1):
            for r in range(4): a(f"v_cvt_f32_i32 v{slot(n)+r}, v{slot(n)+r}")
        for jj, n in enumerate((n0, n1)):
            a(f"v_cvt_pk_bf16_f32 v{dst+2*jj}, v{slot(n)}, v{slot(n)+1}")
            a(f"v_cvt_pk_bf16_f32 v{dst+2*jj+1}, v{slot(n)+2}, v{slot(n)+3}")
    a.c("---- first K pieces: convert and refill before q' exists")
    for s in range(PARK):
        wait_for([2 * s, 2 * s + 1])
        if s == 0: stamp(3)
        k_convert(2 * s, 2 * s + 1, V_PARK + 4 * s)
        refill(2 * s + 2)
    a.c("---- q' = q * ks * scale*log2(e), split into bf16 hi + lo")
    wait_for(["q0", "q1", "ks0", "ks1", "kz0", "kz1"])
    stamp(2)
    a(f"s_mov_b32 s{S_T0}, 0x{Cbits:08x}")
    a(f"s_mov_b32 s{S_T1}, 0xffff0000")
    x0, x1, y0, y1 = t0, t1, t2, t3
    for n in range(4):
        a(f"v_lshlrev_b32 v{x0}, 16, v{V_Q+n}")
        a(f"v_and_b32 v{x1}, s{S_T1}, v{V_Q+n}")
        a(f"v_lshlrev_b32 v{y0}, 16, v{V_KSR+n}")
        a(f"v_and_b32 v{y1}, s{S_T1}, v{V_KSR+n}")
        a(f"v_mul_f32 v{x0}, v{x0}, v{y0}")
        a(f"v_mul_f32 v{x1}, v{x1}, v{y1}")
        a(f"v_mul_f32 v{x0}, s{S_T0}, v{x0}")
        a(f"v_mul_f32 v{x1}, s{S_T0}, v{x1}")
        a(f"v_cvt_pk_bf16_f32 v{V_BHI+n}, v{x0}, v{x1}")
        a(f"v_lshlrev_b32 v{y0}, 16, v{V_BHI+n}")
        a(f"v_and_b32 v{y1}, s{S_T1}, v{V_BHI+n}")
        a(f"v_sub_f32 v{x0}, v{x0}, v{y0}")
        a(f"v_sub_f32 v{x1}, v{x1}, v{y1}")
        a(f"v_cvt_pk_bf16_f32 v{V_BLO+n}, v{x0}, v{x1}")
    a("s_nop 1")
    a.c("zero-point term  c_h = sum_d q'_d * kz_d  through the same MFMA layout")
    a(f"v_mfma_f32_16x16x32_bf16 {vr(V_D,4)}, {vr(V_KZR,4)}, {vr(V_BHI,4)}, 0")
    a(f"v_mfma_f32_16x16x32_bf16 {vr(V_D,4)}, {vr(V_KZR,4)}, {vr(V_BLO,4)}, {vr(V_D,4)}")
    a("s_nop 7")
    for c in range(4):
        a(f"v_mov_b32_dpp v{V_NEGC}, v{V_D+c} quad_perm:[0,1,2,3] row_mask:0xf bank_mask:0x{1<<c:x}")
    a("s_nop 1")
    a(f"v_add_f32_dpp v{V_NEGC}, v{V_NEGC}, v{V_NEGC} row_ror:4 row_mask:0xf bank_mask:0xf")
    a("s_nop 1")
    a(f"v_add_f32_dpp v{V_NEGC}, v{V_NEGC}, v{V_NEGC} row_ror:8 row_mask:0xf bank_mask:0xf")
    a(f"v_sub_f32 v{V_NEGC}, 0, v{V_NEGC}")

    a.c("---- K phase: one 4-token piece per step")
    def extract(s):
        hh, b, g = s // 16, (s // 4) % 4, s % 4
        D = V_D + 4 * (s % 4)
        dst = V_S + 4 * hh + g
        for c in range(4):
            rot = (4 * (b - c)) % 16
            ctl = f"row_ror:{rot}" if rot else "quad_perm:[0,1,2,3]"
            a(f"v_add_f32_dpp v{dst}, v{D+c}, v{V_NEGC if c == 0 else dst} {ctl} row_mask:0xf bank_mask:0x{1<<b:x}")
    def qk(D, A):
        a(f"v_mfma_f32_16x16x32_bf16 {vr(D,4)}, {vr(A,4)}, {vr(V_BHI,4)}, 0")
        a(f"v_mfma_f32_16x16x32_bf16 {vr(D,4)}, {vr(A,4)}, {vr(V_BLO,4)}, {vr(D,4)}")
    pend = None
    for s in range(PARK): qk(V_D + 4 * (s % 4), V_PARK + 4 * s)
    if PARK:
        a("s_nop 7")
        for s in range(PARK - 1): extract(s)
        pend = PARK - 1
    for s in range(PARK, NP):
        PK = V_PK + 4 * (s % 2)
        if "finek" in opts:
            for jj in range(2):
                n = 2 * s + jj
                wait_for([n])
                for r in range(4): a(f"v_cvt_f32_i32 v{slot(n)+r}, v{slot(n)+r}")
                a(f"v_cvt_pk_bf16_f32 v{PK+2*jj}, v{slot(n)}, v{slot(n)+1}")
                a(f"v_cvt_pk_bf16_f32 v{PK+2*jj+1}, v{slot(n)+2}, v{slot(n)+3}")
                refill(n + 1)
            a("s_nop 0")
        else:
            wait_for([2 * s, 2 * s + 1])
            if s == 0: stamp(3)
            k_convert(2 * s, 2 * s + 1, PK)
            n_before = len(a.lines)
            refill(2 * s + 2)
            if len(a.lines) - n_before < 2: a("s_nop 1")
        qk(V_D + 4 * (s % 4), PK)
        if pend is not None: extract(pend)
        pend = s
        if s == LATEV: load_vsz()
        if s == max(PARK, D0 // 2 + 2):
            a.c("the early cell load is older than loads already waited for: announce this launch's combiner XCC")
            a(f"s_cmp_lg_u32 s{S_SAME}, 0")
            a("s_cbranch_scc1 L_noann")
            a(f"v_add_u32 v{V_CELL+2}, 1, v{V_CELL}")
            a(f"s_getreg_b32 s{S_T0}, hwreg(HW_REG_XCC_ID, 0, 4)")
            a(f"v_mov_b32 v{V_CELL+3}, s{S_T0}")
            a("s_mov_b64 exec, 1")
            a(f"global_store_dwordx2 v{V_CELL+1}, {vr(V_CELL+2,2)}, {sr(S_CELL,2)} offset:8 sc1")
            a("s_mov_b64 exec, -1")
            a("L_noann:")
    a("s_nop 7")
    extract(pend)
    stamp(4)

    a.c("---- softmax numerators over the wave's 128 tokens (true max of the wave)")
    S = V_S; NS = 8
    a(f"v_max3_f32 v{V_M}, v{S}, v{S+1}, v{S+2}")
    a(f"v_max3_f32 v{V_M}, v{V_M}, v{S+3}, v{S+4}")
    a(f"v_max3_f32 v{V_M}, v{V_M}, v{S+5}, v{S+6}")
    a(f"v_max_f32 v{V_M}, v{V_M}, v{S+7}")
    def allred(reg, op, tmp):
        a("s_nop 1")
        a(f"{op}_dpp v{reg}, v{reg}, v{reg} row_ror:4 row_mask:0xf bank_mask:0xf")
        a("s_nop 1")
        a(f"{op}_dpp v{reg}, v{reg}, v{reg} row_ror:8 row_mask:0xf bank_mask:0xf")
        a(f"v_mov_b32 v{tmp}, v{reg}")
        a("s_nop 1")
        a(f"v_permlane16_swap_b32 v{tmp}, v{reg}")
        a(f"{op} v{reg}, v{reg}, v{tmp}")
        a(f"v_mov_b32 v{tmp}, v{reg}")
        a("s_nop 1")
        a(f"v_permlane32_swap_b32 v{tmp}, v{reg}")
        a(f"{op} v{reg}, v{reg}, v{tmp}")
    allred(V_M, "v_max_f32", t0)
    for g in range(NS): a(f"v_sub_f32 v{S+g}, v{S+g}, v{V_M}")
    for g in range(NS): a(f"v_exp_f32 v{S+g}, v{S+g}")
    wait_for(["vs0", "vs1", "vz0", "vz1"])
    for hh in range(NH):
        a(f"v_lshlrev_b32 v{V_VS+hh}, 16, v{V_VS+hh}")
        a(f"v_lshlrev_b32 v{V_VZ+hh}, 16, v{V_VZ+hh}")
    a(f"v_add_f32 v{V_L}, v{S}, v{S+1}")
    for g in range(2, NS): a(f"v_add_f32 v{V_L}, v{V_L}, v{S+g}")
    for hh in range(NH):
        for g in range(4):
            a(f"v_mul_f32_dpp v{S+4*hh+g}, v{V_VS+hh}, v{S+4*hh+g} quad_perm:[{g},{g},{g},{g}] row_mask:0xf bank_mask:0xf")
    a(f"s_mov_b32 s{S_T1}, 0xffff0000")
    a.c("P operand write address: b*64 + par*32 + h*8 + kpair*4, lane = 32*kpair + 16*par + 4*b + h")
    a(f"v_bfe_u32 v{t1}, v{L}, 2, 2")
    a(f"v_lshlrev_b32 v{t1}, 6, v{t1}")
    a(f"v_bfe_u32 v{t2}, v{L}, 4, 1")
    a(f"v_lshl_or_b32 v{t1}, v{t2}, 5, v{t1}")
    a(f"v_and_b32 v{t2}, 3, v{L}")
    a(f"v_lshl_or_b32 v{t1}, v{t2}, 3, v{t1}")
    a(f"v_lshrrev_b32 v{t2}, 5, v{L}")
    a(f"v_lshl_or_b32 v{t1}, v{t2}, 2, v{t1}")
    a(f"s_lshl_b32 s{S_T0}, s{S_WAVE}, 11")
    a(f"v_add_u32 v{t1}, s{S_T0}, v{t1}")
    u = V_U; w_ = V_PK; hi, lo = V_PA, V_PA + 2
    for hh in range(NH):
        Sh = S + 4 * hh
        a(f"v_cvt_pk_bf16_f32 v{hi}, v{Sh}, v{Sh+1}")
        a(f"v_cvt_pk_bf16_f32 v{hi+1}, v{Sh+2}, v{Sh+3}")
        a(f"v_lshlrev_b32 v{u}, 16, v{hi}")
        a(f"v_and_b32 v{u+1}, s{S_T1}, v{hi}")
        a(f"v_lshlrev_b32 v{u+2}, 16, v{hi+1}")
        a(f"v_and_b32 v{u+3}, s{S_T1}, v{hi+1}")
        if use_lo:
            for g in range(4): a(f"v_sub_f32 v{Sh+g}, v{Sh+g}, v{u+g}")
            a(f"v_cvt_pk_bf16_f32 v{lo}, v{Sh}, v{Sh+1}")
            a(f"v_cvt_pk_bf16_f32 v{lo+1}, v{Sh+2}, v{Sh+3}")
            a(f"v_lshlrev_b32 v{w_}, 16, v{lo}")
            a(f"v_and_b32 v{w_+1}, s{S_T1}, v{lo}")
            a(f"v_lshlrev_b32 v{w_+2}, 16, v{lo+1}")
            a(f"v_and_b32 v{w_+3}, s{S_T1}, v{lo+1}")
            for g in range(4): a(f"v_add_f32 v{Sh+g}, v{w_+g}, v{u+g}")
            src = Sh
        else:
            src = u
        for g in range(4):
            op = "v_mul_f32_dpp" if (hh == 0 and g == 0) else "v_fmac_f32_dpp"
            a(f"{op} v{V_CZ}, v{V_VZ+hh}, v{src+g} quad_perm:[{g},{g},{g},{g}] row_mask:0xf bank_mask:0xf")
        for base, off in ((u, 0),) + (((w_, LO_OFF),) if use_lo else ()):
            a(f"v_permlane32_swap_b32 v{base}, v{base+1}")
            a(f"v_permlane32_swap_b32 v{base+2}, v{base+3}")
            a(f"v_cvt_pk_bf16_f32 v{base}, v{base}, v{base+1}")
            a(f"v_cvt_pk_bf16_f32 v{base+2}, v{base+2}, v{base+3}")
            a(f"ds_write_b32 v{t1}, v{base} offset:{LDS_P+off+(hh*2)*256}")
            a(f"ds_write_b32 v{t1}, v{base+2} offset:{LDS_P+off+(hh*2+1)*256}")
    a.c("launch cell line (cell value, announcement); address-translation / cache warm-up for the combiner (values unused)")
    a(f"v_mov_b32 v{t0}, 0")
    a(f"global_load_dwordx4 {vr(V_CELL,4)}, v{t0}, {sr(S_CELL,2)}")
    warm("ewarm" not in opts, "eprew" not in opts, "b")
    a("s_waitcnt lgkmcnt(0)")
    stamp(5)

    a.c("---- V phase: one 4-token piece per step, MFMAs every second piece")
    def pa_read(s_):
        hh, b, m = s_ // 16, (s_ // 4) % 4, (s_ % 4) // 2
        P = V_PA + 4 * ((s_ // 2) % 2)
        off = LDS_P + ((hh * 2 + m) * 4 + b) * 64
        a(f"ds_read_b64 {vr(P,2)}, v{V_PADDR} offset:{off}")
        if use_lo: a(f"ds_read_b64 {vr(P+2,2)}, v{V_PADDR} offset:{off+LO_OFF}")
    def redn(n, reg, op, src=None):
        src = reg if src is None else src
        r = n // 2; first = True
        while r >= 1:
            if not first: a("s_nop 1")
            s_ = src if first else reg
            a(f"{op}_dpp v{reg}, v{s_}, v{s_} row_ror:{r} row_mask:0xf bank_mask:0xf")
            first = False; r //= 2
    def publish(data, stats):
        def one(fl):
            if data: a(f"global_store_dwordx2 v{V_RB}, {vr(V_O,2)}, {sr(S_SLOT,2)}{fl}")
            if stats:
                a("s_mov_b64 exec, 1")
                a(f"global_store_dwordx4 v{V_SA}, {vr(V_ML,4)}, {sr(S_SLOT,2)} offset:2048{fl}")
                a("s_mov_b64 exec, -1")
        k = "d" if data else "s"
        a(f"s_cmp_eq_u32 s{S_SAME}, 0")
        a(f"s_cbranch_scc1 L_pubfast_{k}")
        one(" sc1")
        a(f"s_branch L_pubdone_{k}")
        a(f"L_pubfast_{k}:")
        one("")
        a(f"L_pubdone_{k}:")
    for s_ in range(NP):
        n0, n1 = NL + 2 * s_, NL + 2 * s_ + 1
        if s_ % 2 == 0: pa_read(s_)
        if s_ == BARP:
            a.c("every wave has written its statistics: exchange them")
            a("s_barrier")
            a(f"v_and_b32 v{t2}, 3, v{L}")
            a(f"s_lshl_b32 s{S_T0}, s{S_WAVE}, 6")
            a(f"v_lshl_add_u32 v{t2}, v{t2}, 4, s{S_T0}")
            a(f"ds_read_b128 {vr(V_ST,4)}, v{t2} offset:{LDS_STAT}")
        if s_ == NP - 2:
            a.c("combiner: prefetch the pair's statistics")
            a(f"s_cmp_lg_u32 s{S_CHUNK}, 7")
            a("s_cbranch_scc1 L_nostpf")
            a(f"global_load_dwordx4 {vr(V_ST,4)}, v{V_PST}, {sr(S_PSLOT,2)} offset:2048 sc1")
            a("L_nostpf:")
        wait_for([n0, n1])
        for n in (n0, n1):
            for r in range(4): a(f"v_cvt_f32_i32 v{slot(n)+r}, v{slot(n)+r}")
        for r in range(4):
            a(f"v_cvt_pk_bf16_f32 v{V_PK+2*r+(s_%2)}, v{slot(n0)+r}, v{slot(n1)+r}")
        refill(n1 + 1)
        if s_ % 2 == 1:
            P = V_PA + 4 * ((s_ // 2) % 2)
            a("s_waitcnt lgkmcnt(0)")
            for r in range(4):
                c_in = "0" if s_ == 1 else vr(V_ACC + 4 * r, 4)
                a(f"v_mfma_f32_4x4x4_16b_bf16 {vr(V_ACC+4*r,4)}, {vr(P,2)}, {vr(V_PK+2*r,2)}, {c_in}")
            if use_lo:
                for r in range(4):
                    a(f"v_mfma_f32_4x4x4_16b_bf16 {vr(V_ACC+4*r,4)}, {vr(P+2,2)}, {vr(V_PK+2*r,2)}, {vr(V_ACC+4*r,4)}")
        if s_ == 1:
            a.c("wave statistics (m, l, cz) per head -> LDS")
            allred(V_L, "v_add_f32", t0)
            allred(V_CZ, "v_add_f32", t0)
            a(f"v_lshlrev_b32 v{t1}, 6, v{L}")
            a(f"s_lshl_b32 s{S_T0}, s{S_WAVE}, 4")
            a(f"v_add_u32 v{t1}, s{S_T0}, v{t1}")
            a("s_mov_b64 exec, 0xf")
            a(f"ds_write_b128 v{t1}, {vr(V_M,4)} offset:{LDS_STAT}")
            a("s_mov_b64 exec, -1")
        if s_ == 3:
            a.c("addresses used by the tail")
            a(f"s_lshl_b32 s{S_T0}, s{S_WAVE}, 11")
            a(f"v_lshl_add_u32 v{V_RA}, v{L}, 3, s{S_T0}")
            a(f"s_lshl_b32 s{S_T0}, s{S_WAVE}, 9")
            a(f"v_lshl_add_u32 v{V_RB}, v{L}, 3, s{S_T0}")
            a(f"s_lshl_b32 s{S_T0}, s{S_WAVE}, 4")
            a(f"v_mov_b32 v{V_SA}, s{S_T0}")
            a(f"v_and_b32 v{V_PST}, 7, v{L}")
            a(f"v_lshlrev_b32 v{V_PST}, 12, v{V_PST}")
            a(f"v_add_u32 v{V_PST}, s{S_T0}, v{V_PST}")
            for c in range(8): a(f"v_add_u32 v{V_PAD+c}, {c*4096}, v{V_RB}")
            a(f"v_and_b32 v{V_OA}, 31, v{L}")
            a(f"v_lshlrev_b32 v{V_OA}, 3, v{V_OA}")
            a(f"v_lshrrev_b32 v{t3}, 5, v{L}")
            a(f"v_lshl_or_b32 v{V_OA}, v{t3}, 2, v{V_OA}")
            a(f"s_lshl_b32 s{S_T0}, s{S_PAIR}, 10")
            a(f"s_lshl_b32 s{S_T1}, s{S_WAVE}, 8")
            a(f"s_add_u32 s{S_T0}, s{S_T0}, s{S_T1}")
            a(f"v_add_u32 v{V_OA}, s{S_T0}, v{V_OA}")
        if s_ == BARP - 2:
            a.c("launch tag = cell + 1; the fast hand-off applies iff the combiner announced this XCC in this launch")
            a(f"v_add_u32 v{V_TAG}, 1, v{V_CELL}")
            a(f"s_movk_i32 s{S_FF}, 0xff")
            a(f"s_getreg_b32 s{S_T0}, hwreg(HW_REG_XCC_ID, 0, 4)")
            a(f"v_xor_b32 v{V_CELL+2}, v{V_CELL+2}, v{V_TAG}")
            a(f"v_xor_b32 v{V_CELL+3}, s{S_T0}, v{V_CELL+3}")
            a(f"v_or_b32 v{V_CELL+2}, v{V_CELL+2}, v{V_CELL+3}")
            if "slow" in opts: a(f"v_mov_b32 v{V_CELL+2}, 1")
            a("s_nop 0")
            a(f"v_readfirstlane_b32 s{S_SAME}, v{V_CELL+2}")
        if s_ == BARP + 1:
            a.c("workgroup weights for head = wave: M, alpha_w, L, sum alpha_w cz_w; publish the statistics")
            redn(NW, V_M, "v_max_f32", V_ST)
            a(f"v_and_b32 v{V_M}, 0xffffff00, v{V_M}")
            a(f"v_sub_f32 v{V_AL}, v{V_ST}, v{V_M}")
            a(f"v_exp_f32 v{V_AL}, v{V_AL}")
            a(f"v_bfi_b32 v{V_ML}, s{S_FF}, v{V_TAG}, v{V_M}")
            a(f"v_mul_f32 v{V_L}, v{V_AL}, v{V_ST+1}")
            a(f"v_mul_f32 v{V_CZ}, v{V_AL}, v{V_ST+2}")
            a(f"v_mov_b32 v{V_ML+2}, v{V_TAG}")
            redn(NW, V_L, "v_add_f32")
            a(f"v_mov_b32 v{V_ML+3}, v{V_TAG}")
            redn(NW, V_CZ, "v_add_f32")
            a(f"v_bfi_b32 v{V_ML+1}, s{S_FF}, v{V_TAG}, v{V_L}")
            a(f"v_sub_f32 v{V_O}, 0, v{V_CZ}")
            a(f"v_sub_f32 v{V_O+1}, 0, v{V_CZ}")
            publish(False, True)
    stamp(6)

    a.c("---- workgroup reduction")
    a("s_nop 4")
    for i in range(4):
        a(f"v_permlane32_swap_b32 v{V_ACC+i}, v{V_ACC+8+i}")
        a(f"v_permlane32_swap_b32 v{V_ACC+4+i}, v{V_ACC+12+i}")
    X = V_PK
    for i in range(4):
        a(f"v_add_f32 v{X+2*i}, v{V_ACC+i}, v{V_ACC+8+i}")
        a(f"v_add_f32 v{X+2*i+1}, v{V_ACC+4+i}, v{V_ACC+12+i}")
        a(f"ds_write_b64 v{V_RA}, {vr(X+2*i,2)} offset:{LDS_RED+512*i}")
    a("s_waitcnt lgkmcnt(0)")
    a("s_barrier")
    stamp(7)
    Z = V_RING
    for w in range(NW):
        a(f"ds_read_b64 {vr(Z+2*w,2)}, v{V_RB} offset:{LDS_RED+2048*w}")
    for w in range(NW):
        a(f"s_waitcnt lgkmcnt({NW-1-w})")
        a(f"v_fmac_f32_dpp v{V_O}, v{V_AL}, v{Z+2*w} row_newbcast:{w} row_mask:0xf bank_mask:0xf")
        a(f"v_fmac_f32_dpp v{V_O+1}, v{V_AL}, v{Z+2*w+1} row_newbcast:{w} row_mask:0xf bank_mask:0xf")
    a(f"v_bfi_b32 v{V_O}, s{S_FF}, v{V_TAG}, v{V_O}")
    a(f"v_bfi_b32 v{V_O+1}, s{S_FF}, v{V_TAG}, v{V_O+1}")
    publish(True, False)
    stamp(8)
    a(f"s_cmp_lg_u32 s{S_CHUNK}, 7")
    a("s_cbranch_scc1 L_fin0" if stamps else "s_cbranch_scc1 L_end")

    if "nopoll" in opts: a("s_branch L_fin0" if stamps else "s_branch L_end")
    a.c("---- combiner: merge the pair's 8 partials")
    def poll_data():
        for c in range(8):
            a(f"global_load_dwordx2 {vr(V_Y+2*c,2)}, v{V_PAD+c}, {sr(S_PSLOT,2)} sc1")
    poll_data()
    a(f"s_mov_b32 s{S_SPIN}, {spin}")
    a("L_stchk:")
    a(f"v_xor_b32 v{t0}, v{V_ST}, v{V_TAG}")
    a(f"v_bitop3_b32 v{t0}, v{V_ST+1}, v{t0}, v{V_TAG} bitop3:0xde")
    a(f"v_xor_b32 v{t3}, v{V_ST+2}, v{V_TAG}")
    a(f"v_bitop3_b32 v{t3}, v{V_ST+3}, v{t3}, v{V_TAG} bitop3:0xde")
    a(f"v_and_or_b32 v{t0}, v{t0}, s{S_FF}, v{t3}")
    a(f"v_cmp_ne_u32 vcc, 0, v{t0}")
    a("s_cbranch_vccz L_stok")
    a(f"s_sub_u32 s{S_SPIN}, s{S_SPIN}, 1")
    a("s_cbranch_scc1 L_end")
    a(f"global_load_dwordx4 {vr(V_ST,4)}, v{V_PST}, {sr(S_PSLOT,2)} offset:2048 sc1")
    a("s_waitcnt vmcnt(0)")
    a("s_branch L_stchk")
    a("L_stok:")
    a(f"v_and_b32 v{V_ST}, 0xffffff00, v{V_ST}")
    a("s_nop 1")
    redn(8, V_M, "v_max_f32", V_ST)
    a(f"v_sub_f32 v{V_AL}, v{V_ST}, v{V_M}")
    a(f"v_exp_f32 v{V_AL}, v{V_AL}")
    a("s_nop 0")
    a(f"v_mul_f32 v{V_L}, v{V_AL}, v{V_ST+1}")
    a("s_nop 1")
    redn(8, V_L, "v_add_f32")
    a(f"v_rcp_f32 v{t0}, v{V_L}")
    a("s_nop 0")
    a(f"v_mul_f32 v{V_AL}, v{V_AL}, v{t0}")
    a("L_dchk:")
    for c in range(8):
        a(f"s_waitcnt vmcnt({7-c})")
        if c == 0:
            a(f"v_xor_b32 v{t0}, v{V_Y}, v{V_TAG}")
        else:
            a(f"v_bitop3_b32 v{t0}, v{V_Y+2*c}, v{t0}, v{V_TAG} bitop3:0xde")
        a(f"v_bitop3_b32 v{t0}, v{V_Y+2*c+1}, v{t0}, v{V_TAG} bitop3:0xde")
    a(f"v_and_b32 v{t0}, s{S_FF}, v{t0}")
    a(f"v_cmp_ne_u32 vcc, 0, v{t0}")
    a("s_cbranch_vccz L_ready")
    a(f"s_sub_u32 s{S_SPIN}, s{S_SPIN}, 1")
    a("s_cbranch_scc1 L_end")
    poll_data()
    a("s_branch L_dchk")
    a("L_ready:")
    stamp(9)
    O0, O1 = V_O, V_O + 1
    a(f"v_mul_f32_dpp v{O0}, v{V_AL}, v{V_Y} row_newbcast:0 row_mask:0xf bank_mask:0xf")
    a(f"v_mul_f32_dpp v{O1}, v{V_AL}, v{V_Y+1} row_newbcast:0 row_mask:0xf bank_mask:0xf")
    for c in range(1, 8):
        a(f"v_fmac_f32_dpp v{O0}, v{V_AL}, v{V_Y+2*c} row_newbcast:{c} row_mask:0xf bank_mask:0xf")
        a(f"v_fmac_f32_dpp v{O1}, v{V_AL}, v{V_Y+2*c+1} row_newbcast:{c} row_mask:0xf bank_mask:0xf")
    a(f"v_cvt_pk_bf16_f32 v{t0}, v{O0}, v{O1}")
    a(f"global_store_dword v{V_OA}, v{t0}, {sr(S_OUT,2)} sc1")
    a.c("all eight workgroups have published, so all have read the cell: advance it for the next launch")
    a(f"s_cmp_lg_u32 s{S_WAVE}, 0")
    a("s_cbranch_scc1 L_nocell")
    a(f"v_mov_b32 v{t3}, 0")
    a("s_mov_b64 exec, 1")
    a(f"global_store_dword v{t3}, v{V_TAG}, {sr(S_CELL,2)} sc1")
    a("s_mov_b64 exec, -1")
    a("L_nocell:")
    if stamps and optv("amp", 0):
        stamp(10)
        a("s_waitcnt lgkmcnt(0)")
        K_, ia, ib = optv("amp", 0), optv("ampa", 0), optv("ampb", 10)
        a(f"s_sub_u32 s{S_T0}, s{S_ST+2*ib}, s{S_ST+2*ia}")
        a(f"s_min_u32 s{S_T0}, s{S_T0}, 20000")
        a(f"s_mul_i32 s{S_T0}, s{S_T0}, {K_}")
        a(f"s_add_u32 s{S_T0}, s{S_T0}, s{S_ST+20}")
        a("L_amp:")
        a(f"s_memrealtime s[{S_ST+22}:{S_ST+23}]")
        a("s_waitcnt lgkmcnt(0)")
        a(f"s_sub_u32 s{S_T1}, s{S_ST+22}, s{S_T0}")
        a(f"s_cmp_lt_i32 s{S_T1}, 0")
        a("s_cbranch_scc1 L_amp")
        a("L_fin0:")
    elif stamps:
        stamp(10)
        a("L_fin0:")
        a("s_waitcnt lgkmcnt(0)")
        vx, va_ = t0, t1
        a(f"v_mov_b32 v{vx}, 0")
        for i in range(11): a(f"v_writelane_b32 v{vx}, s{S_ST+2*i}, {i}")
        a(f"s_getreg_b32 s{S_T1}, hwreg(HW_REG_HW_ID)")
        a(f"v_writelane_b32 v{vx}, s{S_T1}, 14")
        a(f"s_getreg_b32 s{S_T1}, hwreg(HW_REG_XCC_ID)")
        a(f"v_writelane_b32 v{vx}, s{S_T1}, 15")
        a(f"s_mul_i32 s{S_T1}, s{S_WG}, {NW}")
        a(f"s_add_u32 s{S_T1}, s{S_T1}, s{S_WAVE}")
        a(f"s_lshl_b32 s{S_T1}, s{S_T1}, 6")
        a(f"s_add_u32 s{S_T1}, s{S_T1}, 0x8000000")
        a(f"v_lshl_add_u32 v{va_}, v{L}, 2, s{S_T1}")
        a("s_mov_b64 exec, 0xffff")
        a(f"global_store_dword v{va_}, v{vx}, {sr(S_WS,2)}")
    a("L_end:")
    a("s_endpgm")
    tail = f""".section .rodata,"a"
.p2align 6
.amdhsa_kernel {KNAME}_kernel
  .amdhsa_next_free_vgpr {NV}
  .amdhsa_next_free_sgpr {96 if stamps else 64}
  .amdhsa_accum_offset {(NV+3)//4*4}
  .amdhsa_group_segment_fixed_size 0
  .amdhsa_kernarg_size 80
  .amdhsa_user_sgpr_count 2
  .amdhsa_user_sgpr_kernarg_segment_ptr 1
  .amdhsa_system_sgpr_workgroup_id_x 1
  .amdhsa_float_denorm_mode_32 3
.end_amdhsa_kernel
"""
    txt = a.text()
    def drop(pred):
        nonlocal txt
        txt = "\n".join(l for l in txt.split("\n") if not pred(l))
    if "nosmall" in opts: drop(lambda l: "global_load_dwordx2 v[4" in l or "global_load_dwordx2 v[50" in l or "global_load_ushort" in l)
    if "noq" in opts: drop(lambda l: "global_load_dwordx2 v[4" in l or "global_load_dwordx2 v[50" in l)
    if "novs" in opts: drop(lambda l: "global_load_ushort" in l)
    if "nocell" in opts: drop(lambda l: f"global_load_dword v{V_X}" in l or f"global_load_dword v{V_CELL}" in l or f"global_load_dwordx4 v[{V_CELL}" in l or "offset:8 sc1" in l or f"global_load_dwordx4 v[{V_ST}" in l)
    if "nobar" in opts:
        i = txt.index("s_barrier"); txt = txt[:i] + "s_nop 0" + txt[i+len("s_barrier"):]
    if "novalu" in opts: drop(lambda l: "v_cvt_f32_i32" in l or "v_mfma" in l or "v_cvt_pk_bf16" in l or "_dpp" in l or "v_exp" in l or "v_permlane" in l)
    return head + txt + tail, lds

DOC = """; Split-KV decode attention over int32-stored quantisation codes.
"""

if __name__ == "__main__":
    ap = argparse.ArgumentParser()
    ap.add_argument("-G", type=int, default=8)
    ap.add_argument("--stamps", action="store_true")
    ap.add_argument("--opt", action="append", default=[])
    ap.add_argument("-o", default="cdna_kernels/" + KNAME + ".s")
    args = ap.parse_args()
    s, lds = gen(G=args.G, stamps=args.stamps, opts=args.opt)
    if "codepf" in args.opt:
        import subprocess, re, os
        opts2 = args.opt + ["codelen=65"]
        s, lds = gen(G=args.G, stamps=args.stamps, opts=opts2)
        tmp = "_pass1.s"
        open(tmp, "w").write(s)
        subprocess.run(["clang", "-x", "assembler", "-target", "amdgcn-amd-amdhsa", "-mcpu=gfx950", "-c", tmp, "-o", tmp + ".o"], check=True)
        d = subprocess.run(["nm", tmp + ".o"], capture_output=True, text=True).stdout
        pc = int(re.search(r"([0-9a-f]+) t L_pc", d).group(1), 16); end = int(re.search(r"([0-9a-f]+) t L_end", d).group(1), 16)
        s, lds = gen(G=args.G, stamps=args.stamps, opts=args.opt + [f"codelen={end - pc}"])
        os.remove(tmp); os.remove(tmp + ".o")
    open(args.o, "w").write(s)
    print(lds)
```

```python
import math, argparse, struct

KNAME = "standalone__kv_cache_quant_int4_int2_kv_with_per_channel_or_per_token_scales__decode"

class Asm:
    def __init__(self): self.lines = []
    def __call__(self, s=""):
        s = s.strip()
        self.lines.append(s if s.endswith(":") else "    " + s)
    def c(self, s): self.lines.append("    ; " + s)
    def text(self): return "\n".join(self.lines) + "\n"

def vr(a, n=1): return f"v{a}" if n == 1 else f"v[{a}:{a+n-1}]"
def sr(a, n=1): return f"s{a}" if n == 1 else f"s[{a}:{a+n-1}]"
def f32bits(x): return struct.unpack("<I", struct.pack("<f", x))[0]

def gen(G=8, spin=1 << 18, stamps=False, opts=()):
    a = Asm()
    def optv(name, default):
        for o in opts:
            if o.startswith(name + "="): return int(o.split("=")[1])
        return default
    NW = 4
    NH = 2
    NP = 32
    NL = 64
    use_lo = "nolo" not in opts
    PARK = optv("park", 4)
    LATEV = optv("latev", 8)
    BARP = NP - optv("barp", 8)
    S_WG = 2; S_WAVE = 3
    S_Q, S_QK, S_QV, S_KS, S_KZ, S_VS, S_VZ, S_OUT = 4, 6, 8, 10, 12, 14, 16, 18
    S_WS = 22
    S_KSRD = 24; S_VSRD = 28
    S_BASE = 32; S_RUN = 33
    S_PAIR = 40; S_CHUNK = 41; S_T0 = 42; S_T1 = 43
    S_SLOT = 44; S_PSLOT = 46; S_CELL = 48
    S_SPIN = 52; S_LIN = 53; S_SAME = 54; S_FF = 55
    S_ST = 70
    S_PAR = 59
    L = 0; V_OFFK = 1; V_OFFV = 2
    t0, t1, t2, t3 = 3, 4, 5, 6
    V_U = 7
    V_VSOFF = 11
    V_BHI = 12; V_BLO = 16
    V_NEGC = 20; V_PADDR = 21; V_TAG = 22; V_AL = 23
    V_M = 24; V_L = 25; V_CZ = 26
    V_S = 28
    V_VS = 36; V_VZ = 38
    V_PK = 40
    V_D = 56; V_ACC = 56
    V_PA = 72
    V_CELL = 80
    V_RING = 84
    V_PARK = V_RING + 4 * G
    R = V_PARK + 16
    V_RA, V_RB, V_SA, V_OA, V_PST, V_X = R, R + 1, R + 2, R + 3, R + 4, R + 5
    V_O = R + 6
    V_ML = R + 8
    V_PAD = R + 12
    V_ST = R + 20
    V_Y = R + 24
    NV = R + 40
    assert NV <= 256 and V_O % 2 == 0
    V_Q = V_PK; V_KSR = V_PK + 4; V_KZR = V_PK + 8
    LDS_P = 0; LO_OFF = NH * 512
    LDS_RED = NW * NH * 1024
    LDS_STAT = LDS_RED + NW * 2048
    lds = LDS_STAT + 256
    Cbits = f32bits((128 ** -0.5) * math.log2(math.e))

    queue = []
    def issue(tag): queue.append(tag)
    def wait_for(tags):
        idx = max((queue.index(t) for t in tags if t in queue), default=-1)
        if idx < 0: return
        n = len(queue) - 1 - idx
        assert n <= 63
        a(f"s_waitcnt vmcnt({n})")
        del queue[:idx + 1]
    def stamp(i):
        if stamps: a(f"s_memrealtime s[{S_ST+2*i}:{S_ST+2*i+1}]")

    hdr = open("cdna_kernels/" + KNAME + ".s.ref").read().split("\n")
    out = []
    for l in hdr:
        if l.startswith("; @launch"):
            out.append(f"; @launch grid=(256,1,1) block=({NW*64},1,1) lds={lds}")
            break
        if l.startswith("; Override launch") or l.startswith("; grid=ceil"): continue
        out.append(l)
    head = "\n".join(out) + "\n" + DOC
    head += f""".amdgcn_target "amdgcn-amd-amdhsa--gfx950"
.text
.globl {KNAME}_kernel
.p2align 8
.type {KNAME}_kernel,@function
{KNAME}_kernel:
"""
    a.c("---- prologue: ids, pointers, first loads")
    a(f"s_cmp_ge_u32 s{S_WG}, 256")
    a("s_cbranch_scc1 L_end")
    stamp(0)
    for _ in range(optv("pad", 0)): a("s_nop 0")
    a("s_load_dwordx16 s[4:19], s[0:1], 0")
    a("s_load_dwordx2 s[22:23], s[0:1], 72")
    a(f"v_lshrrev_b32 v{t0}, 6, v0")
    a(f"v_and_b32 v{L}, 63, v0")
    a(f"v_readfirstlane_b32 s{S_WAVE}, v{t0}")
    def codepf():
        if "codepf" not in opts: return
        a.c("pull one 128-byte line of this kernel's code towards the L2 (each wave a different line; value unused)")
        a(f"s_getpc_b64 s[56:57]")
        a("L_pc:")
        a(f"s_lshr_b32 s58, s{S_WG}, 3")
        a(f"s_lshl_b32 s58, s58, 2")
        a(f"s_add_u32 s58, s58, s{S_WAVE}")
        a(f"s_lshl_b32 s58, s58, 7")
        a(f"s_min_u32 s58, s58, {optv('codelen', 0)}")
        a(f"s_add_u32 s56, s56, s58")
        a(f"s_addc_u32 s57, s57, 0")
        a(f"s_load_dword s58, s[56:57], 0")
    if "cpfearly" in opts: codepf()
    a(f"v_and_b32 v{t0}, 3, v{L}")
    a(f"v_lshrrev_b32 v{t1}, 4, v{L}")
    a(f"v_bfe_u32 v{t2}, v{L}, 2, 2")
    a(f"v_lshlrev_b32 v{V_OFFK}, 4, v{t0}")
    a(f"v_lshl_or_b32 v{V_OFFK}, v{t1}, 6, v{V_OFFK}")
    a(f"v_lshl_or_b32 v{V_OFFK}, v{t2}, 9, v{V_OFFK}")
    a(f"v_lshlrev_b32 v{V_OFFV}, 4, v{L}")
    a(f"s_and_b32 s{S_PAIR}, s{S_WG}, 31")
    a(f"s_lshr_b32 s{S_CHUNK}, s{S_WG}, 5")
    if "lin" in opts:
        a(f"s_lshr_b32 s{S_PAIR}, s{S_WG}, 3")
        a(f"s_and_b32 s{S_CHUNK}, s{S_WG}, 7")
    if "mix" in opts:
        a(f"s_lshr_b32 s{S_T0}, s{S_WG}, 7")
        a(f"s_xor_b32 s{S_PAIR}, s{S_PAIR}, s{S_T0}")
    a(f"s_lshl_b32 s{S_LIN}, s{S_PAIR}, 3")
    a(f"s_add_u32 s{S_LIN}, s{S_LIN}, s{S_CHUNK}")
    a(f"s_lshl_b32 s{S_T0}, s{S_LIN}, 18")
    a(f"s_lshl_b32 s{S_T1}, s{S_WAVE}, {13 if 'i8' in opts else 11}")
    a(f"s_add_u32 s{S_BASE}, s{S_T0}, s{S_T1}")
    vq, vks, vkz = V_U, V_U + 1, V_U + 2
    a(f"v_lshlrev_b32 v{vks}, 5, v{t1}")
    a(f"v_lshl_or_b32 v{vkz}, v{t0}, 3, v{vks}")
    a(f"v_lshl_or_b32 v{vks}, v{t2}, 3, v{vks}")
    a(f"v_lshl_or_b32 v{vq}, v{t0}, 8, v{vks}")
    if "i8" in opts:
        a(f"v_lshlrev_b32 v{V_VSOFF}, 7, v{t2}")
        a(f"v_lshl_or_b32 v{V_VSOFF}, v{t0}, 3, v{V_VSOFF}")
        a(f"v_lshl_or_b32 v{V_VSOFF}, v{t1}, 1, v{V_VSOFF}")
        a(f"s_lshl_b32 s{S_T1}, s{S_WAVE}, 5")
        a(f"v_add_u32 v{V_VSOFF}, s{S_T1}, v{V_VSOFF}")
    else:
        a(f"v_lshl_or_b32 v{V_VSOFF}, v{t2}, 2, v{t0}")
        a(f"v_lshlrev_b32 v{V_VSOFF}, 5, v{V_VSOFF}")
        a(f"v_lshl_or_b32 v{V_VSOFF}, v{t1}, 1, v{V_VSOFF}")
        a(f"s_lshl_b32 s{S_T1}, s{S_WAVE}, 3")
        a(f"v_add_u32 v{V_VSOFF}, s{S_T1}, v{V_VSOFF}")
    a("s_waitcnt lgkmcnt(0)")
    if "st1k" not in opts: stamp(1)
    for srd, p in ((S_KSRD, S_QK), (S_VSRD, S_QV)):
        a(f"s_mov_b32 s{srd}, s{p}")
        a(f"s_and_b32 s{srd+1}, s{p+1}, 0xffff")
        a(f"s_mov_b32 s{srd+2}, 0x4000000")
        a(f"s_mov_b32 s{srd+3}, 0x20000")

    def slot(n): return V_RING + 4 * (n % G)
    st = {"next": 0}
    def issue_big(n):
        isK = n < NL
        m = n if isK else n - NL
        piece, sub = m // 2, m % 2
        poff = (piece // 4) * NW * 8192 + (piece % 4) * 2048 if "i8" in opts else piece * NW * 2048
        if sub == 0: a(f"s_add_u32 s{S_RUN}, s{S_BASE}, {poff}")
        if isK:
            a(f"buffer_load_dwordx4 {vr(slot(n),4)}, v{V_OFFK}, {sr(S_KSRD,4)}, s{S_RUN} offen offset:{sub*256} nt")
        else:
            a(f"buffer_load_dwordx4 {vr(slot(n),4)}, v{V_OFFV}, {sr(S_VSRD,4)}, s{S_RUN} offen offset:{sub*1024} nt")
        issue(n)
    DK = optv("dk", G); DV = optv("dv", G); D0 = optv("d0", DK)
    assert max(DK, DV, D0) <= G
    def refill(done):
        depth = D0 if done <= 2 * PARK else (DK if done < NL - DK else DV)
        DLO = optv("dlo", 0)
        if DLO and 2 * PARK < done and optv("dlo_from", 0) <= done <= optv("dlo_to", 10**9) and st["next"] < min(2 * NL, done + depth):
            st["lab"] = st.get("lab", 0) + 1
            a(f"s_cmp_lg_u32 s{S_PAR}, 0")
            a(f"s_cbranch_scc1 L_deep{st['lab']}")
            a(f"s_waitcnt vmcnt({DLO - 2})")
            a(f"L_deep{st['lab']}:")
        while st["next"] < min(2 * NL, done + depth):
            issue_big(st["next"]); st["next"] += 1

    if optv("dlo", 0):
        a(f"s_getreg_b32 s{S_PAR}, hwreg(HW_REG_XCC_ID, 0, 4)")
        a(f"s_and_b32 s{S_PAR}, s{S_PAR}, 1")
    refill(0)
    if "cpfearly" not in opts: codepf()
    a.c("q, k scales and k zeros of this (batch, kv head) pair and token group")
    a(f"s_lshl_b32 s{S_T0}, s{S_PAIR}, 10")
    a(f"s_add_u32 s{S_Q}, s{S_Q}, s{S_T0}")
    a(f"s_addc_u32 s{S_Q+1}, s{S_Q+1}, 0")
    a(f"s_lshr_b32 s{S_T0}, s{S_LIN}, 2")
    a(f"s_lshl_b32 s{S_T0}, s{S_T0}, 8")
    for p in (S_KS, S_KZ):
        a(f"s_add_u32 s{p}, s{p}, s{S_T0}")
        a(f"s_addc_u32 s{p+1}, s{p+1}, 0")
    a(f"global_load_dwordx2 {vr(V_Q,2)}, v{vq}, {sr(S_Q,2)}")
    a(f"global_load_dwordx2 {vr(V_Q+2,2)}, v{vq}, {sr(S_Q,2)} offset:128")
    a(f"global_load_dwordx2 {vr(V_KSR,2)}, v{vks}, {sr(S_KS,2)}")
    a(f"global_load_dwordx2 {vr(V_KSR+2,2)}, v{vks}, {sr(S_KS,2)} offset:128")
    a(f"global_load_dwordx2 {vr(V_KZR,2)}, v{vkz}, {sr(S_KZ,2)}")
    a(f"global_load_dwordx2 {vr(V_KZR+2,2)}, v{vkz}, {sr(S_KZ,2)} offset:128")
    for t in ("q0", "q1", "ks0", "ks1", "kz0", "kz1"): issue(t)
    a(f"s_lshl_b32 s{S_T0}, s{S_LIN}, 10")
    for p in (S_VS, S_VZ):
        a(f"s_add_u32 s{p}, s{p}, s{S_T0}")
        a(f"s_addc_u32 s{p+1}, s{p+1}, 0")
    def load_vsz():
        for hh in range(NH):
            a(f"global_load_ushort v{V_VS+hh}, v{V_VSOFF}, {sr(S_VS,2)} offset:{hh*512}"); issue(f"vs{hh}")
            a(f"global_load_ushort v{V_VZ+hh}, v{V_VSOFF}, {sr(S_VZ,2)} offset:{hh*512}"); issue(f"vz{hh}")
    if LATEV < 0: load_vsz()
    if "touchv" in opts:
        a.c("address-translation warm-up for this workgroup's V page (value unused)")
        a(f"v_mov_b32 v{V_X}, 0")
        a(f"buffer_load_dword v{V_X}, v{V_X}, {sr(S_VSRD,4)}, s{S_BASE} offen nt")
    a.c("hand-off addresses: slot of this workgroup, slots of the pair, launch cell of the pair")
    a(f"s_lshl_b32 s{S_T0}, s{S_LIN}, 12")
    a(f"s_add_u32 s{S_SLOT}, s{S_WS}, s{S_T0}")
    a(f"s_addc_u32 s{S_SLOT+1}, s{S_WS+1}, 0")
    a(f"s_lshl_b32 s{S_T0}, s{S_PAIR}, 15")
    a(f"s_add_u32 s{S_PSLOT}, s{S_WS}, s{S_T0}")
    a(f"s_addc_u32 s{S_PSLOT+1}, s{S_WS+1}, 0")
    a(f"s_lshl_b32 s{S_T0}, s{S_PAIR}, 7")
    a(f"s_add_u32 s{S_T0}, s{S_T0}, 0x100000")
    a(f"s_add_u32 s{S_CELL}, s{S_WS}, s{S_T0}")
    a(f"s_addc_u32 s{S_CELL+1}, s{S_WS+1}, 0")
    a.c("wave 0 of the pair's last workgroup (the combiner) reads the cell now to announce its XCC later")
    a(f"v_mov_b32 v{V_CELL+1}, 0")
    a(f"s_cmp_eq_u32 s{S_CHUNK}, 7")
    a(f"s_cselect_b32 s{S_SAME}, s{S_WAVE}, 1")
    a(f"s_cmp_lg_u32 s{S_SAME}, 0")
    a("s_cbranch_scc1 L_noearly")
    a(f"global_load_dword v{V_CELL}, v{V_CELL+1}, {sr(S_CELL,2)} sc1")
    a("L_noearly:")
    a(f"v_lshrrev_b32 v{V_PADDR}, 5, v{L}")
    a(f"v_lshlrev_b32 v{V_PADDR}, 5, v{V_PADDR}")
    a(f"v_lshl_or_b32 v{V_PADDR}, v{t0}, 3, v{V_PADDR}")
    a(f"s_lshl_b32 s{S_T1}, s{S_WAVE}, 11")
    a(f"v_add_u32 v{V_PADDR}, s{S_T1}, v{V_PADDR}")

    def warm(do_out, do_slots, lab):
        if not (do_out or do_slots): return
        a(f"s_cmp_lg_u32 s{S_CHUNK}, 7")
        a(f"s_cbranch_scc1 L_nowarm{lab}")
        if do_out:
            a(f"v_mov_b32 v{V_RA}, 0")
            a(f"global_load_dword v{V_X}, v{V_RA}, {sr(S_OUT,2)}")
        if do_slots:
            a(f"v_bfe_u32 v{V_RA}, v{L}, 2, 3")
            a(f"v_lshlrev_b32 v{V_RA}, 12, v{V_RA}")
            a(f"v_and_b32 v{V_RB}, 3, v{L}")
            a(f"v_lshlrev_b32 v{V_RB}, 7, v{V_RB}")
            a(f"s_lshl_b32 s{S_T0}, s{S_WAVE}, 9")
            a(f"v_add_u32 v{V_RB}, s{S_T0}, v{V_RB}")
            a(f"v_mov_b32 v{V_SA}, 2048")
            a(f"v_cmp_gt_u32 vcc, 32, v{L}")
            a("s_nop 1")
            a(f"v_cndmask_b32 v{V_RB}, v{V_SA}, v{V_RB}, vcc")
            a(f"v_add_u32 v{V_RA}, v{V_RA}, v{V_RB}")
            a(f"global_load_dword v{V_X}, v{V_RA}, {sr(S_PSLOT,2)} sc1")
        a(f"L_nowarm{lab}:")
    if "wswarm" in opts:
        a.c("address-translation warm-up for the hand-off page (value unused)")
        a(f"v_mov_b32 v{V_RA}, 0x180000")
        a(f"global_load_dword v{V_X}, v{V_RA}, {sr(S_WS,2)}")
    warm("ewarm" in opts, "eprew" in opts, "a")
    def k_convert(n0, n1, dst):
        for n in (n0, n1):
            for r in range(4): a(f"v_cvt_f32_i32 v{slot(n)+r}, v{slot(n)+r}")
        for jj, n in enumerate((n0, n1)):
            a(f"v_cvt_pk_bf16_f32 v{dst+2*jj}, v{slot(n)}, v{slot(n)+1}")
            a(f"v_cvt_pk_bf16_f32 v{dst+2*jj+1}, v{slot(n)+2}, v{slot(n)+3}")
    a.c("---- first K pieces: convert and refill before q' exists")
    for s in range(PARK):
        wait_for([2 * s, 2 * s + 1])
        if s == 0: stamp(3)
        k_convert(2 * s, 2 * s + 1, V_PARK + 4 * s)
        refill(2 * s + 2)
    a.c("---- q' = q * ks * scale*log2(e), split into bf16 hi + lo")
    wait_for(["q0", "q1", "ks0", "ks1", "kz0", "kz1"])
    stamp(2)
    a(f"s_mov_b32 s{S_T0}, 0x{Cbits:08x}")
    a(f"s_mov_b32 s{S_T1}, 0xffff0000")
    x0, x1, y0, y1 = t0, t1, t2, t3
    for n in range(4):
        a(f"v_lshlrev_b32 v{x0}, 16, v{V_Q+n}")
        a(f"v_and_b32 v{x1}, s{S_T1}, v{V_Q+n}")
        a(f"v_lshlrev_b32 v{y0}, 16, v{V_KSR+n}")
        a(f"v_and_b32 v{y1}, s{S_T1}, v{V_KSR+n}")
        a(f"v_mul_f32 v{x0}, v{x0}, v{y0}")
        a(f"v_mul_f32 v{x1}, v{x1}, v{y1}")
        a(f"v_mul_f32 v{x0}, s{S_T0}, v{x0}")
        a(f"v_mul_f32 v{x1}, s{S_T0}, v{x1}")
        a(f"v_cvt_pk_bf16_f32 v{V_BHI+n}, v{x0}, v{x1}")
        a(f"v_lshlrev_b32 v{y0}, 16, v{V_BHI+n}")
        a(f"v_and_b32 v{y1}, s{S_T1}, v{V_BHI+n}")
        a(f"v_sub_f32 v{x0}, v{x0}, v{y0}")
        a(f"v_sub_f32 v{x1}, v{x1}, v{y1}")
        a(f"v_cvt_pk_bf16_f32 v{V_BLO+n}, v{x0}, v{x1}")
    a("s_nop 1")
    a.c("zero-point term  c_h = sum_d q'_d * kz_d  through the same MFMA layout")
    a(f"v_mfma_f32_16x16x32_bf16 {vr(V_D,4)}, {vr(V_KZR,4)}, {vr(V_BHI,4)}, 0")
    a(f"v_mfma_f32_16x16x32_bf16 {vr(V_D,4)}, {vr(V_KZR,4)}, {vr(V_BLO,4)}, {vr(V_D,4)}")
    a("s_nop 7")
    for c in range(4):
        a(f"v_mov_b32_dpp v{V_NEGC}, v{V_D+c} quad_perm:[0,1,2,3] row_mask:0xf bank_mask:0x{1<<c:x}")
    a("s_nop 1")
    a(f"v_add_f32_dpp v{V_NEGC}, v{V_NEGC}, v{V_NEGC} row_ror:4 row_mask:0xf bank_mask:0xf")
    a("s_nop 1")
    a(f"v_add_f32_dpp v{V_NEGC}, v{V_NEGC}, v{V_NEGC} row_ror:8 row_mask:0xf bank_mask:0xf")
    a(f"v_sub_f32 v{V_NEGC}, 0, v{V_NEGC}")

    a.c("---- K phase: one 4-token piece per step")
    def extract(s):
        hh, b, g = s // 16, (s // 4) % 4, s % 4
        D = V_D + 4 * (s % 4)
        dst = V_S + 4 * hh + g
        for c in range(4):
            rot = (4 * (b - c)) % 16
            ctl = f"row_ror:{rot}" if rot else "quad_perm:[0,1,2,3]"
            a(f"v_add_f32_dpp v{dst}, v{D+c}, v{V_NEGC if c == 0 else dst} {ctl} row_mask:0xf bank_mask:0x{1<<b:x}")
    def qk(D, A):
        a(f"v_mfma_f32_16x16x32_bf16 {vr(D,4)}, {vr(A,4)}, {vr(V_BHI,4)}, 0")
        a(f"v_mfma_f32_16x16x32_bf16 {vr(D,4)}, {vr(A,4)}, {vr(V_BLO,4)}, {vr(D,4)}")
    pend = None
    for s in range(PARK): qk(V_D + 4 * (s % 4), V_PARK + 4 * s)
    if PARK:
        a("s_nop 7")
        for s in range(PARK - 1): extract(s)
        pend = PARK - 1
    for s in range(PARK, NP):
        PK = V_PK + 4 * (s % 2)
        if "finek" in opts:
            for jj in range(2):
                n = 2 * s + jj
                wait_for([n])
                for r in range(4): a(f"v_cvt_f32_i32 v{slot(n)+r}, v{slot(n)+r}")
                a(f"v_cvt_pk_bf16_f32 v{PK+2*jj}, v{slot(n)}, v{slot(n)+1}")
                a(f"v_cvt_pk_bf16_f32 v{PK+2*jj+1}, v{slot(n)+2}, v{slot(n)+3}")
                refill(n + 1)
            a("s_nop 0")
        else:
            wait_for([2 * s, 2 * s + 1])
            if s == 0: stamp(3)
            k_convert(2 * s, 2 * s + 1, PK)
            n_before = len(a.lines)
            refill(2 * s + 2)
            if len(a.lines) - n_before < 2: a("s_nop 1")
        qk(V_D + 4 * (s % 4), PK)
        if pend is not None: extract(pend)
        pend = s
        if "st1k" in opts and s == optv("st1p", 25): stamp(1)
        if s == LATEV: load_vsz()
        if s == max(PARK, D0 // 2 + 2):
            a.c("the early cell load is older than loads already waited for: announce this launch's combiner XCC")
            a(f"s_cmp_lg_u32 s{S_SAME}, 0")
            a("s_cbranch_scc1 L_noann")
            a(f"v_add_u32 v{V_CELL+2}, 1, v{V_CELL}")
            a(f"s_getreg_b32 s{S_T0}, hwreg(HW_REG_XCC_ID, 0, 4)")
            a(f"v_mov_b32 v{V_CELL+3}, s{S_T0}")
            a("s_mov_b64 exec, 1")
            a(f"global_store_dwordx2 v{V_CELL+1}, {vr(V_CELL+2,2)}, {sr(S_CELL,2)} offset:8 sc1")
            a("s_mov_b64 exec, -1")
            a("L_noann:")
    a("s_nop 7")
    extract(pend)
    stamp(4)

    a.c("---- softmax numerators over the wave's 128 tokens (true max of the wave)")
    S = V_S; NS = 8
    a(f"v_max3_f32 v{V_M}, v{S}, v{S+1}, v{S+2}")
    a(f"v_max3_f32 v{V_M}, v{V_M}, v{S+3}, v{S+4}")
    a(f"v_max3_f32 v{V_M}, v{V_M}, v{S+5}, v{S+6}")
    a(f"v_max_f32 v{V_M}, v{V_M}, v{S+7}")
    def allred(reg, op, tmp):
        a("s_nop 1")
        a(f"{op}_dpp v{reg}, v{reg}, v{reg} row_ror:4 row_mask:0xf bank_mask:0xf")
        a("s_nop 1")
        a(f"{op}_dpp v{reg}, v{reg}, v{reg} row_ror:8 row_mask:0xf bank_mask:0xf")
        a(f"v_mov_b32 v{tmp}, v{reg}")
        a("s_nop 1")
        a(f"v_permlane16_swap_b32 v{tmp}, v{reg}")
        a(f"{op} v{reg}, v{reg}, v{tmp}")
        a(f"v_mov_b32 v{tmp}, v{reg}")
        a("s_nop 1")
        a(f"v_permlane32_swap_b32 v{tmp}, v{reg}")
        a(f"{op} v{reg}, v{reg}, v{tmp}")
    allred(V_M, "v_max_f32", t0)
    for g in range(NS): a(f"v_sub_f32 v{S+g}, v{S+g}, v{V_M}")
    for g in range(NS): a(f"v_exp_f32 v{S+g}, v{S+g}")
    wait_for(["vs0", "vs1", "vz0", "vz1"])
    for hh in range(NH):
        a(f"v_lshlrev_b32 v{V_VS+hh}, 16, v{V_VS+hh}")
        a(f"v_lshlrev_b32 v{V_VZ+hh}, 16, v{V_VZ+hh}")
    a(f"v_add_f32 v{V_L}, v{S}, v{S+1}")
    for g in range(2, NS): a(f"v_add_f32 v{V_L}, v{V_L}, v{S+g}")
    for hh in range(NH):
        for g in range(4):
            a(f"v_mul_f32_dpp v{S+4*hh+g}, v{V_VS+hh}, v{S+4*hh+g} quad_perm:[{g},{g},{g},{g}] row_mask:0xf bank_mask:0xf")
    a(f"s_mov_b32 s{S_T1}, 0xffff0000")
    a.c("P operand write address: b*64 + par*32 + h*8 + kpair*4, lane = 32*kpair + 16*par + 4*b + h")
    a(f"v_bfe_u32 v{t1}, v{L}, 2, 2")
    a(f"v_lshlrev_b32 v{t1}, 6, v{t1}")
    a(f"v_bfe_u32 v{t2}, v{L}, 4, 1")
    a(f"v_lshl_or_b32 v{t1}, v{t2}, 5, v{t1}")
    a(f"v_and_b32 v{t2}, 3, v{L}")
    a(f"v_lshl_or_b32 v{t1}, v{t2}, 3, v{t1}")
    a(f"v_lshrrev_b32 v{t2}, 5, v{L}")
    a(f"v_lshl_or_b32 v{t1}, v{t2}, 2, v{t1}")
    a(f"s_lshl_b32 s{S_T0}, s{S_WAVE}, 11")
    a(f"v_add_u32 v{t1}, s{S_T0}, v{t1}")
    u = V_U; w_ = V_PK; hi, lo = V_PA, V_PA + 2
    for hh in range(NH):
        Sh = S + 4 * hh
        a(f"v_cvt_pk_bf16_f32 v{hi}, v{Sh}, v{Sh+1}")
        a(f"v_cvt_pk_bf16_f32 v{hi+1}, v{Sh+2}, v{Sh+3}")
        a(f"v_lshlrev_b32 v{u}, 16, v{hi}")
        a(f"v_and_b32 v{u+1}, s{S_T1}, v{hi}")
        a(f"v_lshlrev_b32 v{u+2}, 16, v{hi+1}")
        a(f"v_and_b32 v{u+3}, s{S_T1}, v{hi+1}")
        if use_lo:
            for g in range(4): a(f"v_sub_f32 v{Sh+g}, v{Sh+g}, v{u+g}")
            a(f"v_cvt_pk_bf16_f32 v{lo}, v{Sh}, v{Sh+1}")
            a(f"v_cvt_pk_bf16_f32 v{lo+1}, v{Sh+2}, v{Sh+3}")
            a(f"v_lshlrev_b32 v{w_}, 16, v{lo}")
            a(f"v_and_b32 v{w_+1}, s{S_T1}, v{lo}")
            a(f"v_lshlrev_b32 v{w_+2}, 16, v{lo+1}")
            a(f"v_and_b32 v{w_+3}, s{S_T1}, v{lo+1}")
            for g in range(4): a(f"v_add_f32 v{Sh+g}, v{w_+g}, v{u+g}")
            src = Sh
        else:
            src = u
        for g in range(4):
            op = "v_mul_f32_dpp" if (hh == 0 and g == 0) else "v_fmac_f32_dpp"
            a(f"{op} v{V_CZ}, v{V_VZ+hh}, v{src+g} quad_perm:[{g},{g},{g},{g}] row_mask:0xf bank_mask:0xf")
        for base, off in ((u, 0),) + (((w_, LO_OFF),) if use_lo else ()):
            a(f"v_permlane32_swap_b32 v{base}, v{base+1}")
            a(f"v_permlane32_swap_b32 v{base+2}, v{base+3}")
            a(f"v_cvt_pk_bf16_f32 v{base}, v{base}, v{base+1}")
            a(f"v_cvt_pk_bf16_f32 v{base+2}, v{base+2}, v{base+3}")
            a(f"ds_write_b32 v{t1}, v{base} offset:{LDS_P+off+(hh*2)*256}")
            a(f"ds_write_b32 v{t1}, v{base+2} offset:{LDS_P+off+(hh*2+1)*256}")
    a.c("launch cell line (cell value, announcement); address-translation / cache warm-up for the combiner (values unused)")
    a(f"v_mov_b32 v{t0}, 0")
    a(f"global_load_dwordx4 {vr(V_CELL,4)}, v{t0}, {sr(S_CELL,2)}")
    warm("ewarm" not in opts, "eprew" not in opts, "b")
    a("s_waitcnt lgkmcnt(0)")
    if "st5v" not in opts: stamp(5)

    a.c("---- V phase: one 4-token piece per step, MFMAs every second piece")
    def pa_read(s_):
        hh, b, m = s_ // 16, (s_ // 4) % 4, (s_ % 4) // 2
        P = V_PA + 4 * ((s_ // 2) % 2)
        off = LDS_P + ((hh * 2 + m) * 4 + b) * 64
        a(f"ds_read_b64 {vr(P,2)}, v{V_PADDR} offset:{off}")
        if use_lo: a(f"ds_read_b64 {vr(P+2,2)}, v{V_PADDR} offset:{off+LO_OFF}")
    def redn(n, reg, op, src=None):
        src = reg if src is None else src
        r = n // 2; first = True
        while r >= 1:
            if not first: a("s_nop 1")
            s_ = src if first else reg
            a(f"{op}_dpp v{reg}, v{s_}, v{s_} row_ror:{r} row_mask:0xf bank_mask:0xf")
            first = False; r //= 2
    def publish(data, stats):
        def one(fl):
            if data: a(f"global_store_dwordx2 v{V_RB}, {vr(V_O,2)}, {sr(S_SLOT,2)}{fl}")
            if stats:
                a("s_mov_b64 exec, 1")
                a(f"global_store_dwordx4 v{V_SA}, {vr(V_ML,4)}, {sr(S_SLOT,2)} offset:2048{fl}")
                a("s_mov_b64 exec, -1")
        k = "d" if data else "s"
        a(f"s_cmp_eq_u32 s{S_SAME}, 0")
        a(f"s_cbranch_scc1 L_pubfast_{k}")
        one(" sc1")
        a(f"s_branch L_pubdone_{k}")
        a(f"L_pubfast_{k}:")
        one("")
        a(f"L_pubdone_{k}:")
    for s_ in range(NP):
        n0, n1 = NL + 2 * s_, NL + 2 * s_ + 1
        if s_ % 2 == 0: pa_read(s_)
        if s_ == BARP:
            a.c("every wave has written its statistics: exchange them")
            a("s_barrier")
            a(f"v_and_b32 v{t2}, 3, v{L}")
            a(f"s_lshl_b32 s{S_T0}, s{S_WAVE}, 6")
            a(f"v_lshl_add_u32 v{t2}, v{t2}, 4, s{S_T0}")
            a(f"ds_read_b128 {vr(V_ST,4)}, v{t2} offset:{LDS_STAT}")
        if s_ == NP - 2:
            a.c("combiner: prefetch the pair's statistics")
            a(f"s_cmp_lg_u32 s{S_CHUNK}, 7")
            a("s_cbranch_scc1 L_nostpf")
            a(f"global_load_dwordx4 {vr(V_ST,4)}, v{V_PST}, {sr(S_PSLOT,2)} offset:2048 sc1")
            a("L_nostpf:")
        wait_for([n0, n1])
        if "st5v" in opts and s_ == optv("st5p", 2): stamp(5)
        for n in (n0, n1):
            for r in range(4): a(f"v_cvt_f32_i32 v{slot(n)+r}, v{slot(n)+r}")
        for r in range(4):
            a(f"v_cvt_pk_bf16_f32 v{V_PK+2*r+(s_%2)}, v{slot(n0)+r}, v{slot(n1)+r}")
        refill(n1 + 1)
        if s_ % 2 == 1:
            P = V_PA + 4 * ((s_ // 2) % 2)
            a("s_waitcnt lgkmcnt(0)")
            for r in range(4):
                c_in = "0" if s_ == 1 else vr(V_ACC + 4 * r, 4)
                a(f"v_mfma_f32_4x4x4_16b_bf16 {vr(V_ACC+4*r,4)}, {vr(P,2)}, {vr(V_PK+2*r,2)}, {c_in}")
            if use_lo:
                for r in range(4):
                    a(f"v_mfma_f32_4x4x4_16b_bf16 {vr(V_ACC+4*r,4)}, {vr(P+2,2)}, {vr(V_PK+2*r,2)}, {vr(V_ACC+4*r,4)}")
        if s_ == 1:
            a.c("wave statistics (m, l, cz) per head -> LDS")
            allred(V_L, "v_add_f32", t0)
            allred(V_CZ, "v_add_f32", t0)
            a(f"v_lshlrev_b32 v{t1}, 6, v{L}")
            a(f"s_lshl_b32 s{S_T0}, s{S_WAVE}, 4")
            a(f"v_add_u32 v{t1}, s{S_T0}, v{t1}")
            a("s_mov_b64 exec, 0xf")
            a(f"ds_write_b128 v{t1}, {vr(V_M,4)} offset:{LDS_STAT}")
            a("s_mov_b64 exec, -1")
        if s_ == 3:
            a.c("addresses used by the tail")
            a(f"s_lshl_b32 s{S_T0}, s{S_WAVE}, 11")
            a(f"v_lshl_add_u32 v{V_RA}, v{L}, 3, s{S_T0}")
            a(f"s_lshl_b32 s{S_T0}, s{S_WAVE}, 9")
            a(f"v_lshl_add_u32 v{V_RB}, v{L}, 3, s{S_T0}")
            a(f"s_lshl_b32 s{S_T0}, s{S_WAVE}, 4")
            a(f"v_mov_b32 v{V_SA}, s{S_T0}")
            a(f"v_and_b32 v{V_PST}, 7, v{L}")
            a(f"v_lshlrev_b32 v{V_PST}, 12, v{V_PST}")
            a(f"v_add_u32 v{V_PST}, s{S_T0}, v{V_PST}")
            for c in range(8): a(f"v_add_u32 v{V_PAD+c}, {c*4096}, v{V_RB}")
            a(f"v_and_b32 v{V_OA}, 31, v{L}")
            a(f"v_lshlrev_b32 v{V_OA}, 3, v{V_OA}")
            a(f"v_lshrrev_b32 v{t3}, 5, v{L}")
            a(f"v_lshl_or_b32 v{V_OA}, v{t3}, 2, v{V_OA}")
            a(f"s_lshl_b32 s{S_T0}, s{S_PAIR}, 10")
            a(f"s_lshl_b32 s{S_T1}, s{S_WAVE}, 8")
            a(f"s_add_u32 s{S_T0}, s{S_T0}, s{S_T1}")
            a(f"v_add_u32 v{V_OA}, s{S_T0}, v{V_OA}")
        if s_ == BARP - 2:
            a.c("launch tag = cell + 1; the fast hand-off applies iff the combiner announced this XCC in this launch")
            a(f"v_add_u32 v{V_TAG}, 1, v{V_CELL}")
            a(f"s_movk_i32 s{S_FF}, 0xff")
            a(f"s_getreg_b32 s{S_T0}, hwreg(HW_REG_XCC_ID, 0, 4)")
            a(f"v_xor_b32 v{V_CELL+2}, v{V_CELL+2}, v{V_TAG}")
            a(f"v_xor_b32 v{V_CELL+3}, s{S_T0}, v{V_CELL+3}")
            a(f"v_or_b32 v{V_CELL+2}, v{V_CELL+2}, v{V_CELL+3}")
            if "slow" in opts: a(f"v_mov_b32 v{V_CELL+2}, 1")
            a("s_nop 0")
            a(f"v_readfirstlane_b32 s{S_SAME}, v{V_CELL+2}")
        if s_ == BARP + 1:
            a.c("workgroup weights for head = wave: M, alpha_w, L, sum alpha_w cz_w; publish the statistics")
            redn(NW, V_M, "v_max_f32", V_ST)
            a(f"v_and_b32 v{V_M}, 0xffffff00, v{V_M}")
            a(f"v_sub_f32 v{V_AL}, v{V_ST}, v{V_M}")
            a(f"v_exp_f32 v{V_AL}, v{V_AL}")
            a(f"v_bfi_b32 v{V_ML}, s{S_FF}, v{V_TAG}, v{V_M}")
            a(f"v_mul_f32 v{V_L}, v{V_AL}, v{V_ST+1}")
            a(f"v_mul_f32 v{V_CZ}, v{V_AL}, v{V_ST+2}")
            a(f"v_mov_b32 v{V_ML+2}, v{V_TAG}")
            redn(NW, V_L, "v_add_f32")
            a(f"v_mov_b32 v{V_ML+3}, v{V_TAG}")
            redn(NW, V_CZ, "v_add_f32")
            a(f"v_bfi_b32 v{V_ML+1}, s{S_FF}, v{V_TAG}, v{V_L}")
            a(f"v_sub_f32 v{V_O}, 0, v{V_CZ}")
            a(f"v_sub_f32 v{V_O+1}, 0, v{V_CZ}")
            publish(False, True)
    stamp(6)

    a.c("---- workgroup reduction")
    a("s_nop 4")
    for i in range(4):
        a(f"v_permlane32_swap_b32 v{V_ACC+i}, v{V_ACC+8+i}")
        a(f"v_permlane32_swap_b32 v{V_ACC+4+i}, v{V_ACC+12+i}")
    X = V_PK
    for i in range(4):
        a(f"v_add_f32 v{X+2*i}, v{V_ACC+i}, v{V_ACC+8+i}")
        a(f"v_add_f32 v{X+2*i+1}, v{V_ACC+4+i}, v{V_ACC+12+i}")
        a(f"ds_write_b64 v{V_RA}, {vr(X+2*i,2)} offset:{LDS_RED+512*i}")
    a("s_waitcnt lgkmcnt(0)")
    a("s_barrier")
    stamp(7)
    Z = V_RING
    for w in range(NW):
        a(f"ds_read_b64 {vr(Z+2*w,2)}, v{V_RB} offset:{LDS_RED+2048*w}")
    for w in range(NW):
        a(f"s_waitcnt lgkmcnt({NW-1-w})")
        a(f"v_fmac_f32_dpp v{V_O}, v{V_AL}, v{Z+2*w} row_newbcast:{w} row_mask:0xf bank_mask:0xf")
        a(f"v_fmac_f32_dpp v{V_O+1}, v{V_AL}, v{Z+2*w+1} row_newbcast:{w} row_mask:0xf bank_mask:0xf")
    a(f"v_bfi_b32 v{V_O}, s{S_FF}, v{V_TAG}, v{V_O}")
    a(f"v_bfi_b32 v{V_O+1}, s{S_FF}, v{V_TAG}, v{V_O+1}")
    publish(True, False)
    stamp(8)
    a(f"s_cmp_lg_u32 s{S_CHUNK}, 7")
    a("s_cbranch_scc1 L_fin0" if stamps else "s_cbranch_scc1 L_end")

    if "nopoll" in opts: a("s_branch L_fin0" if stamps else "s_branch L_end")
    a.c("---- combiner: merge the pair's 8 partials")
    def poll_data():
        for c in range(8):
            a(f"global_load_dwordx2 {vr(V_Y+2*c,2)}, v{V_PAD+c}, {sr(S_PSLOT,2)} sc1")
    poll_data()
    a(f"s_mov_b32 s{S_SPIN}, {spin}")
    a("L_stchk:")
    a(f"v_xor_b32 v{t0}, v{V_ST}, v{V_TAG}")
    a(f"v_bitop3_b32 v{t0}, v{V_ST+1}, v{t0}, v{V_TAG} bitop3:0xde")
    a(f"v_xor_b32 v{t3}, v{V_ST+2}, v{V_TAG}")
    a(f"v_bitop3_b32 v{t3}, v{V_ST+3}, v{t3}, v{V_TAG} bitop3:0xde")
    a(f"v_and_or_b32 v{t0}, v{t0}, s{S_FF}, v{t3}")
    a(f"v_cmp_ne_u32 vcc, 0, v{t0}")
    a("s_cbranch_vccz L_stok")
    a(f"s_sub_u32 s{S_SPIN}, s{S_SPIN}, 1")
    a("s_cbranch_scc1 L_end")
    a(f"global_load_dwordx4 {vr(V_ST,4)}, v{V_PST}, {sr(S_PSLOT,2)} offset:2048 sc1")
    a("s_waitcnt vmcnt(0)")
    a("s_branch L_stchk")
    a("L_stok:")
    a(f"v_and_b32 v{V_ST}, 0xffffff00, v{V_ST}")
    a("s_nop 1")
    redn(8, V_M, "v_max_f32", V_ST)
    a(f"v_sub_f32 v{V_AL}, v{V_ST}, v{V_M}")
    a(f"v_exp_f32 v{V_AL}, v{V_AL}")
    a("s_nop 0")
    a(f"v_mul_f32 v{V_L}, v{V_AL}, v{V_ST+1}")
    a("s_nop 1")
    redn(8, V_L, "v_add_f32")
    a(f"v_rcp_f32 v{t0}, v{V_L}")
    a("s_nop 0")
    a(f"v_mul_f32 v{V_AL}, v{V_AL}, v{t0}")
    a("L_dchk:")
    for c in range(8):
        a(f"s_waitcnt vmcnt({7-c})")
        if c == 0:
            a(f"v_xor_b32 v{t0}, v{V_Y}, v{V_TAG}")
        else:
            a(f"v_bitop3_b32 v{t0}, v{V_Y+2*c}, v{t0}, v{V_TAG} bitop3:0xde")
        a(f"v_bitop3_b32 v{t0}, v{V_Y+2*c+1}, v{t0}, v{V_TAG} bitop3:0xde")
    a(f"v_and_b32 v{t0}, s{S_FF}, v{t0}")
    a(f"v_cmp_ne_u32 vcc, 0, v{t0}")
    a("s_cbranch_vccz L_ready")
    a(f"s_sub_u32 s{S_SPIN}, s{S_SPIN}, 1")
    a("s_cbranch_scc1 L_end")
    poll_data()
    a("s_branch L_dchk")
    a("L_ready:")
    stamp(9)
    O0, O1 = V_O, V_O + 1
    a(f"v_mul_f32_dpp v{O0}, v{V_AL}, v{V_Y} row_newbcast:0 row_mask:0xf bank_mask:0xf")
    a(f"v_mul_f32_dpp v{O1}, v{V_AL}, v{V_Y+1} row_newbcast:0 row_mask:0xf bank_mask:0xf")
    for c in range(1, 8):
        a(f"v_fmac_f32_dpp v{O0}, v{V_AL}, v{V_Y+2*c} row_newbcast:{c} row_mask:0xf bank_mask:0xf")
        a(f"v_fmac_f32_dpp v{O1}, v{V_AL}, v{V_Y+2*c+1} row_newbcast:{c} row_mask:0xf bank_mask:0xf")
    a(f"v_cvt_pk_bf16_f32 v{t0}, v{O0}, v{O1}")
    a(f"global_store_dword v{V_OA}, v{t0}, {sr(S_OUT,2)} sc1")
    a.c("all eight workgroups have published, so all have read the cell: advance it for the next launch")
    a(f"s_cmp_lg_u32 s{S_WAVE}, 0")
    a("s_cbranch_scc1 L_nocell")
    a(f"v_mov_b32 v{t3}, 0")
    a("s_mov_b64 exec, 1")
    a(f"global_store_dword v{t3}, v{V_TAG}, {sr(S_CELL,2)} sc1")
    a("s_mov_b64 exec, -1")
    a("L_nocell:")
    if stamps and optv("amp", 0):
        stamp(10)
        a("s_waitcnt lgkmcnt(0)")
        K_, ia, ib = optv("amp", 0), optv("ampa", 0), optv("ampb", 10)
        a(f"s_sub_u32 s{S_T0}, s{S_ST+2*ib}, s{S_ST+2*ia}")
        a(f"s_min_u32 s{S_T0}, s{S_T0}, 20000")
        a(f"s_mul_i32 s{S_T0}, s{S_T0}, {K_}")
        a(f"s_add_u32 s{S_T0}, s{S_T0}, s{S_ST+20}")
        a("L_amp:")
        a(f"s_memrealtime s[{S_ST+22}:{S_ST+23}]")
        a("s_waitcnt lgkmcnt(0)")
        a(f"s_sub_u32 s{S_T1}, s{S_ST+22}, s{S_T0}")
        a(f"s_cmp_lt_i32 s{S_T1}, 0")
        a("s_cbranch_scc1 L_amp")
        a("L_fin0:")
    elif stamps:
        stamp(10)
        a("L_fin0:")
        a("s_waitcnt lgkmcnt(0)")
        vx, va_ = t0, t1
        a(f"v_mov_b32 v{vx}, 0")
        for i in range(11): a(f"v_writelane_b32 v{vx}, s{S_ST+2*i}, {i}")
        a(f"s_getreg_b32 s{S_T1}, hwreg(HW_REG_HW_ID)")
        a(f"v_writelane_b32 v{vx}, s{S_T1}, 14")
        a(f"s_getreg_b32 s{S_T1}, hwreg(HW_REG_XCC_ID)")
        a(f"v_writelane_b32 v{vx}, s{S_T1}, 15")
        a(f"s_mul_i32 s{S_T1}, s{S_WG}, {NW}")
        a(f"s_add_u32 s{S_T1}, s{S_T1}, s{S_WAVE}")
        a(f"s_lshl_b32 s{S_T1}, s{S_T1}, 6")
        a(f"s_add_u32 s{S_T1}, s{S_T1}, 0x8000000")
        a(f"v_lshl_add_u32 v{va_}, v{L}, 2, s{S_T1}")
        a("s_mov_b64 exec, 0xffff")
        a(f"global_store_dword v{va_}, v{vx}, {sr(S_WS,2)}")
    a("L_end:")
    a("s_endpgm")
    tail = f""".section .rodata,"a"
.p2align 6
.amdhsa_kernel {KNAME}_kernel
  .amdhsa_next_free_vgpr {NV}
  .amdhsa_next_free_sgpr {96 if stamps else 64}
  .amdhsa_accum_offset {(NV+3)//4*4}
  .amdhsa_group_segment_fixed_size 0
  .amdhsa_kernarg_size 80
  .amdhsa_user_sgpr_count 2
  .amdhsa_user_sgpr_kernarg_segment_ptr 1
  .amdhsa_system_sgpr_workgroup_id_x 1
  .amdhsa_float_denorm_mode_32 3
.end_amdhsa_kernel
"""
    txt = a.text()
    def drop(pred):
        nonlocal txt
        txt = "\n".join(l for l in txt.split("\n") if not pred(l))
    if "nosmall" in opts: drop(lambda l: "global_load_dwordx2 v[4" in l or "global_load_dwordx2 v[50" in l or "global_load_ushort" in l)
    if "noq" in opts: drop(lambda l: "global_load_dwordx2 v[4" in l or "global_load_dwordx2 v[50" in l)
    if "novs" in opts: drop(lambda l: "global_load_ushort" in l)
    if "nocell" in opts: drop(lambda l: f"global_load_dword v{V_X}" in l or f"global_load_dword v{V_CELL}" in l or f"global_load_dwordx4 v[{V_CELL}" in l or "offset:8 sc1" in l or f"global_load_dwordx4 v[{V_ST}" in l)
    if "nobar" in opts:
        i = txt.index("s_barrier"); txt = txt[:i] + "s_nop 0" + txt[i+len("s_barrier"):]
    if "novalu" in opts: drop(lambda l: "v_cvt_f32_i32" in l or "v_mfma" in l or "v_cvt_pk_bf16" in l or "_dpp" in l or "v_exp" in l or "v_permlane" in l)
    return head + txt + tail, lds

DOC = """; Split-KV decode attention over int32-stored quantisation codes.
"""

if __name__ == "__main__":
    ap = argparse.ArgumentParser()
    ap.add_argument("-G", type=int, default=8)
    ap.add_argument("--stamps", action="store_true")
    ap.add_argument("--opt", action="append", default=[])
    ap.add_argument("-o", default="cdna_kernels/" + KNAME + ".s")
    args = ap.parse_args()
    s, lds = gen(G=args.G, stamps=args.stamps, opts=args.opt)
    if "codepf" in args.opt:
        import subprocess, re, os
        opts2 = args.opt + ["codelen=65"]
        s, lds = gen(G=args.G, stamps=args.stamps, opts=opts2)
        tmp = "_pass1.s"
        open(tmp, "w").write(s)
        subprocess.run(["clang", "-x", "assembler", "-target", "amdgcn-amd-amdhsa", "-mcpu=gfx950", "-c", tmp, "-o", tmp + ".o"], check=True)
        d = subprocess.run(["nm", tmp + ".o"], capture_output=True, text=True).stdout
        pc = int(re.search(r"([0-9a-f]+) t L_pc", d).group(1), 16); end = int(re.search(r"([0-9a-f]+) t L_end", d).group(1), 16)
        s, lds = gen(G=args.G, stamps=args.stamps, opts=args.opt + [f"codelen={end - pc}"])
        os.remove(tmp); os.remove(tmp + ".o")
    open(args.o, "w").write(s)
    print(lds)
```

```python
import math, argparse, struct

KNAME = "standalone__kv_cache_quant_int4_int2_kv_with_per_channel_or_per_token_scales__decode"

class Asm:
    def __init__(self): self.lines = []
    def __call__(self, s=""):
        s = s.strip()
        self.lines.append(s if s.endswith(":") else "    " + s)
    def c(self, s): self.lines.append("    ; " + s)
    def text(self): return "\n".join(self.lines) + "\n"

def vr(a, n=1): return f"v{a}" if n == 1 else f"v[{a}:{a+n-1}]"
def sr(a, n=1): return f"s{a}" if n == 1 else f"s[{a}:{a+n-1}]"
def f32bits(x): return struct.unpack("<I", struct.pack("<f", x))[0]

def gen(G=8, spin=1 << 18, stamps=False, opts=()):
    a = Asm()
    def optv(name, default):
        for o in opts:
            if o.startswith(name + "="): return int(o.split("=")[1])
        return default
    NW = 4
    NH = 2
    NP = 32
    NL = 64
    use_lo = "nolo" not in opts
    PARK = optv("park", 4)
    LATEV = optv("latev", 8)
    BARP = NP - optv("barp", 8)
    S_WG = 2; S_WAVE = 3
    S_Q, S_QK, S_QV, S_KS, S_KZ, S_VS, S_VZ, S_OUT = 4, 6, 8, 10, 12, 14, 16, 18
    S_WS = 22
    S_KSRD = 24; S_VSRD = 28
    S_BASE = 32; S_RUN = 33
    S_PAIR = 40; S_CHUNK = 41; S_T0 = 42; S_T1 = 43
    S_SLOT = 44; S_PSLOT = 46; S_CELL = 48
    S_SPIN = 52; S_LIN = 53; S_SAME = 54; S_FF = 55
    S_ST = 70
    S_PAR = 59
    L = 0; V_OFFK = 1; V_OFFV = 2
    t0, t1, t2, t3 = 3, 4, 5, 6
    V_U = 7
    V_VSOFF = 11
    V_BHI = 12; V_BLO = 16
    V_NEGC = 20; V_PADDR = 21; V_TAG = 22; V_AL = 23
    V_M = 24; V_L = 25; V_CZ = 26
    V_S = 28
    V_VS = 36; V_VZ = 38
    V_PK = 40
    V_D = 56; V_ACC = 56
    V_PA = 72
    V_CELL = 80
    V_RING = 84
    V_PARK = V_RING + 4 * G
    R = V_PARK + 16
    V_RA, V_RB, V_SA, V_OA, V_PST, V_X = R, R + 1, R + 2, R + 3, R + 4, R + 5
    V_O = R + 6
    V_ML = R + 8
    V_PAD = R + 12
    V_ST = R + 20
    V_Y = R + 24
    NV = R + 40
    assert NV <= 256 and V_O % 2 == 0
    V_Q = V_PK; V_KSR = V_PK + 4; V_KZR = V_PK + 8
    LDS_P = 0; LO_OFF = NH * 512
    LDS_RED = NW * NH * 1024
    LDS_STAT = LDS_RED + NW * 2048
    lds = LDS_STAT + 256
    Cbits = f32bits((128 ** -0.5) * math.log2(math.e))

    queue = []
    def issue(tag): queue.append(tag)
    def wait_for(tags):
        idx = max((queue.index(t) for t in tags if t in queue), default=-1)
        if idx < 0: return
        n = len(queue) - 1 - idx
        assert n <= 63
        a(f"s_waitcnt vmcnt({n})")
        del queue[:idx + 1]
    def stamp(i):
        if stamps: a(f"s_memrealtime s[{S_ST+2*i}:{S_ST+2*i+1}]")

    hdr = open("cdna_kernels/" + KNAME + ".s.ref").read().split("\n")
    out = []
    for l in hdr:
        if l.startswith("; @launch"):
            out.append(f"; @launch grid=(256,1,1) block=({NW*64},1,1) lds={lds}")
            break
        if l.startswith("; Override launch") or l.startswith("; grid=ceil"): continue
        out.append(l)
    head = "\n".join(out) + "\n" + DOC
    head += f""".amdgcn_target "amdgcn-amd-amdhsa--gfx950"
.text
.globl {KNAME}_kernel
.p2align 8
.type {KNAME}_kernel,@function
{KNAME}_kernel:
"""
    a.c("---- prologue: ids, pointers, first loads")
    a(f"s_cmp_ge_u32 s{S_WG}, 256")
    a("s_cbranch_scc1 L_end")
    stamp(0)
    for _ in range(optv("pad", 0)): a("s_nop 0")
    a("s_load_dwordx16 s[4:19], s[0:1], 0")
    a("s_load_dwordx2 s[22:23], s[0:1], 72")
    a(f"v_lshrrev_b32 v{t0}, 6, v0")
    a(f"v_and_b32 v{L}, 63, v0")
    a(f"v_readfirstlane_b32 s{S_WAVE}, v{t0}")
    def codepf():
        if "codepf" not in opts: return
        a.c("pull one 128-byte line of this kernel's code towards the L2 (each wave a different line; value unused)")
        a(f"s_getpc_b64 s[56:57]")
        a("L_pc:")
        a(f"s_lshr_b32 s58, s{S_WG}, 3")
        a(f"s_lshl_b32 s58, s58, 2")
        a(f"s_add_u32 s58, s58, s{S_WAVE}")
        a(f"s_lshl_b32 s58, s58, 7")
        a(f"s_min_u32 s58, s58, {optv('codelen', 0)}")
        a(f"s_add_u32 s56, s56, s58")
        a(f"s_addc_u32 s57, s57, 0")
        a(f"s_load_dword s58, s[56:57], 0")
    if "cpfearly" in opts: codepf()
    a(f"v_and_b32 v{t0}, 3, v{L}")
    a(f"v_lshrrev_b32 v{t1}, 4, v{L}")
    a(f"v_bfe_u32 v{t2}, v{L}, 2, 2")
    a(f"v_lshlrev_b32 v{V_OFFK}, 4, v{t0}")
    a(f"v_lshl_or_b32 v{V_OFFK}, v{t1}, 6, v{V_OFFK}")
    a(f"v_lshl_or_b32 v{V_OFFK}, v{t2}, 9, v{V_OFFK}")
    a(f"v_lshlrev_b32 v{V_OFFV}, 4, v{L}")
    a(f"s_and_b32 s{S_PAIR}, s{S_WG}, 31")
    a(f"s_lshr_b32 s{S_CHUNK}, s{S_WG}, 5")
    if "lin" in opts:
        a(f"s_lshr_b32 s{S_PAIR}, s{S_WG}, 3")
        a(f"s_and_b32 s{S_CHUNK}, s{S_WG}, 7")
    if "mix" in opts:
        a(f"s_lshr_b32 s{S_T0}, s{S_WG}, 7")
        a(f"s_xor_b32 s{S_PAIR}, s{S_PAIR}, s{S_T0}")
    a(f"s_lshl_b32 s{S_LIN}, s{S_PAIR}, 3")
    a(f"s_add_u32 s{S_LIN}, s{S_LIN}, s{S_CHUNK}")
    a(f"s_lshl_b32 s{S_T0}, s{S_LIN}, 18")
    a(f"s_lshl_b32 s{S_T1}, s{S_WAVE}, {13 if 'i8' in opts else 11}")
    a(f"s_add_u32 s{S_BASE}, s{S_T0}, s{S_T1}")
    vq, vks, vkz = V_U, V_U + 1, V_U + 2
    a(f"v_lshlrev_b32 v{vks}, 5, v{t1}")
    a(f"v_lshl_or_b32 v{vkz}, v{t0}, 3, v{vks}")
    a(f"v_lshl_or_b32 v{vks}, v{t2}, 3, v{vks}")
    a(f"v_lshl_or_b32 v{vq}, v{t0}, 8, v{vks}")
    if "i8" in opts:
        a(f"v_lshlrev_b32 v{V_VSOFF}, 7, v{t2}")
        a(f"v_lshl_or_b32 v{V_VSOFF}, v{t0}, 3, v{V_VSOFF}")
        a(f"v_lshl_or_b32 v{V_VSOFF}, v{t1}, 1, v{V_VSOFF}")
        a(f"s_lshl_b32 s{S_T1}, s{S_WAVE}, 5")
        a(f"v_add_u32 v{V_VSOFF}, s{S_T1}, v{V_VSOFF}")
    else:
        a(f"v_lshl_or_b32 v{V_VSOFF}, v{t2}, 2, v{t0}")
        a(f"v_lshlrev_b32 v{V_VSOFF}, 5, v{V_VSOFF}")
        a(f"v_lshl_or_b32 v{V_VSOFF}, v{t1}, 1, v{V_VSOFF}")
        a(f"s_lshl_b32 s{S_T1}, s{S_WAVE}, 3")
        a(f"v_add_u32 v{V_VSOFF}, s{S_T1}, v{V_VSOFF}")
    a("s_waitcnt lgkmcnt(0)")
    if "st1k" not in opts: stamp(1)
    for srd, p in ((S_KSRD, S_QK), (S_VSRD, S_QV)):
        a(f"s_mov_b32 s{srd}, s{p}")
        a(f"s_and_b32 s{srd+1}, s{p+1}, 0xffff")
        a(f"s_mov_b32 s{srd+2}, 0x4000000")
        a(f"s_mov_b32 s{srd+3}, 0x20000")

    def slot(n): return V_RING + 4 * (n % G)
    st = {"next": 0}
    def issue_big(n):
        isK = n < NL
        m = n if isK else n - NL
        piece, sub = m // 2, m % 2
        poff = (piece // 4) * NW * 8192 + (piece % 4) * 2048 if "i8" in opts else piece * NW * 2048
        if sub == 0: a(f"s_add_u32 s{S_RUN}, s{S_BASE}, {poff}")
        if isK:
            a(f"buffer_load_dwordx4 {vr(slot(n),4)}, v{V_OFFK}, {sr(S_KSRD,4)}, s{S_RUN} offen offset:{sub*256} nt")
        else:
            a(f"buffer_load_dwordx4 {vr(slot(n),4)}, v{V_OFFV}, {sr(S_VSRD,4)}, s{S_RUN} offen offset:{sub*1024} nt")
        issue(n)
    DK = optv("dk", G); DV = optv("dv", G); D0 = optv("d0", DK)
    assert max(DK, DV, D0) <= G
    def refill(done):
        depth = D0 if done <= 2 * PARK else (DK if done < NL - DK else DV)
        DLO = optv("dlo", 0)
        if DLO and 2 * PARK < done and optv("dlo_from", 0) <= done <= optv("dlo_to", 10**9) and st["next"] < min(2 * NL, done + depth):
            st["lab"] = st.get("lab", 0) + 1
            a(f"s_cmp_lg_u32 s{S_PAR}, 0")
            a(f"s_cbranch_scc1 L_deep{st['lab']}")
            a(f"s_waitcnt vmcnt({DLO - 2})")
            a(f"L_deep{st['lab']}:")
        while st["next"] < min(2 * NL, done + depth):
            issue_big(st["next"]); st["next"] += 1

    if optv("dlo", 0):
        a(f"s_getreg_b32 s{S_PAR}, hwreg(HW_REG_XCC_ID, 0, 4)")
        a(f"s_and_b32 s{S_PAR}, s{S_PAR}, 1")
    refill(0)
    if "cpfearly" not in opts: codepf()
    a.c("q, k scales and k zeros of this (batch, kv head) pair and token group")
    a(f"s_lshl_b32 s{S_T0}, s{S_PAIR}, 10")
    a(f"s_add_u32 s{S_Q}, s{S_Q}, s{S_T0}")
    a(f"s_addc_u32 s{S_Q+1}, s{S_Q+1}, 0")
    a(f"s_lshr_b32 s{S_T0}, s{S_LIN}, 2")
    a(f"s_lshl_b32 s{S_T0}, s{S_T0}, 8")
    for p in (S_KS, S_KZ):
        a(f"s_add_u32 s{p}, s{p}, s{S_T0}")
        a(f"s_addc_u32 s{p+1}, s{p+1}, 0")
    a(f"global_load_dwordx2 {vr(V_Q,2)}, v{vq}, {sr(S_Q,2)}")
    a(f"global_load_dwordx2 {vr(V_Q+2,2)}, v{vq}, {sr(S_Q,2)} offset:128")
    a(f"global_load_dwordx2 {vr(V_KSR,2)}, v{vks}, {sr(S_KS,2)}")
    a(f"global_load_dwordx2 {vr(V_KSR+2,2)}, v{vks}, {sr(S_KS,2)} offset:128")
    a(f"global_load_dwordx2 {vr(V_KZR,2)}, v{vkz}, {sr(S_KZ,2)}")
    a(f"global_load_dwordx2 {vr(V_KZR+2,2)}, v{vkz}, {sr(S_KZ,2)} offset:128")
    for t in ("q0", "q1", "ks0", "ks1", "kz0", "kz1"): issue(t)
    a(f"s_lshl_b32 s{S_T0}, s{S_LIN}, 10")
    for p in (S_VS, S_VZ):
        a(f"s_add_u32 s{p}, s{p}, s{S_T0}")
        a(f"s_addc_u32 s{p+1}, s{p+1}, 0")
    def load_vsz():
        for hh in range(NH):
            a(f"global_load_ushort v{V_VS+hh}, v{V_VSOFF}, {sr(S_VS,2)} offset:{hh*512}"); issue(f"vs{hh}")
            a(f"global_load_ushort v{V_VZ+hh}, v{V_VSOFF}, {sr(S_VZ,2)} offset:{hh*512}"); issue(f"vz{hh}")
    if LATEV < 0: load_vsz()
    if "touchv" in opts:
        a.c("address-translation warm-up for this workgroup's V page (value unused)")
        a(f"v_mov_b32 v{V_X}, 0")
        a(f"buffer_load_dword v{V_X}, v{V_X}, {sr(S_VSRD,4)}, s{S_BASE} offen nt")
    a.c("hand-off addresses: slot of this workgroup, slots of the pair, launch cell of the pair")
    a(f"s_lshl_b32 s{S_T0}, s{S_LIN}, 12")
    a(f"s_add_u32 s{S_SLOT}, s{S_WS}, s{S_T0}")
    a(f"s_addc_u32 s{S_SLOT+1}, s{S_WS+1}, 0")
    a(f"s_lshl_b32 s{S_T0}, s{S_PAIR}, 15")
    a(f"s_add_u32 s{S_PSLOT}, s{S_WS}, s{S_T0}")
    a(f"s_addc_u32 s{S_PSLOT+1}, s{S_WS+1}, 0")
    a(f"s_lshl_b32 s{S_T0}, s{S_PAIR}, 7")
    a(f"s_add_u32 s{S_T0}, s{S_T0}, 0x100000")
    a(f"s_add_u32 s{S_CELL}, s{S_WS}, s{S_T0}")
    a(f"s_addc_u32 s{S_CELL+1}, s{S_WS+1}, 0")
    a.c("wave 0 of the pair's last workgroup (the combiner) reads the cell now to announce its XCC later")
    a(f"v_mov_b32 v{V_CELL+1}, 0")
    a(f"s_cmp_eq_u32 s{S_CHUNK}, 7")
    a(f"s_cselect_b32 s{S_SAME}, s{S_WAVE}, 1")
    a(f"s_cmp_lg_u32 s{S_SAME}, 0")
    a("s_cbranch_scc1 L_noearly")
    a(f"global_load_dword v{V_CELL}, v{V_CELL+1}, {sr(S_CELL,2)} sc1")
    a("L_noearly:")
    a(f"v_lshrrev_b32 v{V_PADDR}, 5, v{L}")
    a(f"v_lshlrev_b32 v{V_PADDR}, 5, v{V_PADDR}")
    a(f"v_lshl_or_b32 v{V_PADDR}, v{t0}, 3, v{V_PADDR}")
    a(f"s_lshl_b32 s{S_T1}, s{S_WAVE}, 11")
    a(f"v_add_u32 v{V_PADDR}, s{S_T1}, v{V_PADDR}")

    def warm(do_out, do_slots, lab):
        if not (do_out or do_slots): return
        a(f"s_cmp_lg_u32 s{S_CHUNK}, 7")
        a(f"s_cbranch_scc1 L_nowarm{lab}")
        if do_out:
            a(f"v_mov_b32 v{V_RA}, 0")
            a(f"global_load_dword v{V_X}, v{V_RA}, {sr(S_OUT,2)}")
        if do_slots:
            a(f"v_bfe_u32 v{V_RA}, v{L}, 2, 3")
            a(f"v_lshlrev_b32 v{V_RA}, 12, v{V_RA}")
            a(f"v_and_b32 v{V_RB}, 3, v{L}")
            a(f"v_lshlrev_b32 v{V_RB}, 7, v{V_RB}")
            a(f"s_lshl_b32 s{S_T0}, s{S_WAVE}, 9")
            a(f"v_add_u32 v{V_RB}, s{S_T0}, v{V_RB}")
            a(f"v_mov_b32 v{V_SA}, 2048")
            a(f"v_cmp_gt_u32 vcc, 32, v{L}")
            a("s_nop 1")
            a(f"v_cndmask_b32 v{V_RB}, v{V_SA}, v{V_RB}, vcc")
            a(f"v_add_u32 v{V_RA}, v{V_RA}, v{V_RB}")
            a(f"global_load_dword v{V_X}, v{V_RA}, {sr(S_PSLOT,2)} sc1")
        a(f"L_nowarm{lab}:")
    if "wswarm" in opts:
        a.c("address-translation warm-up for the hand-off page (value unused)")
        a(f"v_mov_b32 v{V_RA}, 0x180000")
        a(f"global_load_dword v{V_X}, v{V_RA}, {sr(S_WS,2)}")
    warm("ewarm" in opts, "eprew" in opts, "a")
    def k_convert(n0, n1, dst):
        for n in (n0, n1):
            for r in range(4): a(f"v_cvt_f32_i32 v{slot(n)+r}, v{slot(n)+r}")
        for jj, n in enumerate((n0, n1)):
            a(f"v_cvt_pk_bf16_f32 v{dst+2*jj}, v{slot(n)}, v{slot(n)+1}")
            a(f"v_cvt_pk_bf16_f32 v{dst+2*jj+1}, v{slot(n)+2}, v{slot(n)+3}")
    a.c("---- first K pieces: convert and refill before q' exists")
    for s in range(PARK):
        wait_for([2 * s, 2 * s + 1])
        if s == 0: stamp(3)
        k_convert(2 * s, 2 * s + 1, V_PARK + 4 * s)
        refill(2 * s + 2)
    a.c("---- q' = q * ks * scale*log2(e), split into bf16 hi + lo")
    wait_for(["q0", "q1", "ks0", "ks1", "kz0", "kz1"])
    stamp(2)
    a(f"s_mov_b32 s{S_T0}, 0x{Cbits:08x}")
    a(f"s_mov_b32 s{S_T1}, 0xffff0000")
    x0, x1, y0, y1 = t0, t1, t2, t3
    for n in range(4):
        a(f"v_lshlrev_b32 v{x0}, 16, v{V_Q+n}")
        a(f"v_and_b32 v{x1}, s{S_T1}, v{V_Q+n}")
        a(f"v_lshlrev_b32 v{y0}, 16, v{V_KSR+n}")
        a(f"v_and_b32 v{y1}, s{S_T1}, v{V_KSR+n}")
        a(f"v_mul_f32 v{x0}, v{x0}, v{y0}")
        a(f"v_mul_f32 v{x1}, v{x1}, v{y1}")
        a(f"v_mul_f32 v{x0}, s{S_T0}, v{x0}")
        a(f"v_mul_f32 v{x1}, s{S_T0}, v{x1}")
        a(f"v_cvt_pk_bf16_f32 v{V_BHI+n}, v{x0}, v{x1}")
        a(f"v_lshlrev_b32 v{y0}, 16, v{V_BHI+n}")
        a(f"v_and_b32 v{y1}, s{S_T1}, v{V_BHI+n}")
        a(f"v_sub_f32 v{x0}, v{x0}, v{y0}")
        a(f"v_sub_f32 v{x1}, v{x1}, v{y1}")
        a(f"v_cvt_pk_bf16_f32 v{V_BLO+n}, v{x0}, v{x1}")
    a("s_nop 1")
    a.c("zero-point term  c_h = sum_d q'_d * kz_d  through the same MFMA layout")
    a(f"v_mfma_f32_16x16x32_bf16 {vr(V_D,4)}, {vr(V_KZR,4)}, {vr(V_BHI,4)}, 0")
    a(f"v_mfma_f32_16x16x32_bf16 {vr(V_D,4)}, {vr(V_KZR,4)}, {vr(V_BLO,4)}, {vr(V_D,4)}")
    a("s_nop 7")
    for c in range(4):
        a(f"v_mov_b32_dpp v{V_NEGC}, v{V_D+c} quad_perm:[0,1,2,3] row_mask:0xf bank_mask:0x{1<<c:x}")
    a("s_nop 1")
    a(f"v_add_f32_dpp v{V_NEGC}, v{V_NEGC}, v{V_NEGC} row_ror:4 row_mask:0xf bank_mask:0xf")
    a("s_nop 1")
    a(f"v_add_f32_dpp v{V_NEGC}, v{V_NEGC}, v{V_NEGC} row_ror:8 row_mask:0xf bank_mask:0xf")
    a(f"v_sub_f32 v{V_NEGC}, 0, v{V_NEGC}")

    a.c("---- K phase: one 4-token piece per step")
    def extract(s):
        hh, b, g = s // 16, (s // 4) % 4, s % 4
        D = V_D + 4 * (s % 4)
        dst = V_S + 4 * hh + g
        for c in range(4):
            rot = (4 * (b - c)) % 16
            ctl = f"row_ror:{rot}" if rot else "quad_perm:[0,1,2,3]"
            a(f"v_add_f32_dpp v{dst}, v{D+c}, v{V_NEGC if c == 0 else dst} {ctl} row_mask:0xf bank_mask:0x{1<<b:x}")
    def qk(D, A):
        a(f"v_mfma_f32_16x16x32_bf16 {vr(D,4)}, {vr(A,4)}, {vr(V_BHI,4)}, 0")
        a(f"v_mfma_f32_16x16x32_bf16 {vr(D,4)}, {vr(A,4)}, {vr(V_BLO,4)}, {vr(D,4)}")
    pend = None
    for s in range(PARK): qk(V_D + 4 * (s % 4), V_PARK + 4 * s)
    if PARK:
        a("s_nop 7")
        for s in range(PARK - 1): extract(s)
        pend = PARK - 1
    for s in range(PARK, NP):
        PK = V_PK + 4 * (s % 2)
        if "finek" in opts:
            for jj in range(2):
                n = 2 * s + jj
                wait_for([n])
                for r in range(4): a(f"v_cvt_f32_i32 v{slot(n)+r}, v{slot(n)+r}")
                a(f"v_cvt_pk_bf16_f32 v{PK+2*jj}, v{slot(n)}, v{slot(n)+1}")
                a(f"v_cvt_pk_bf16_f32 v{PK+2*jj+1}, v{slot(n)+2}, v{slot(n)+3}")
                refill(n + 1)
            a("s_nop 0")
        else:
            wait_for([2 * s, 2 * s + 1])
            if s == 0: stamp(3)
            k_convert(2 * s, 2 * s + 1, PK)
            n_before = len(a.lines)
            refill(2 * s + 2)
            if len(a.lines) - n_before < 2: a("s_nop 1")
        qk(V_D + 4 * (s % 4), PK)
        if pend is not None: extract(pend)
        pend = s
        if "st1k" in opts and s == optv("st1p", 25): stamp(1)
        if s == LATEV: load_vsz()
        if s == max(PARK, D0 // 2 + 2):
            a.c("the early cell load is older than loads already waited for: announce this launch's combiner XCC")
            a(f"s_cmp_lg_u32 s{S_SAME}, 0")
            a("s_cbranch_scc1 L_noann")
            a(f"v_add_u32 v{V_CELL+2}, 1, v{V_CELL}")
            a(f"s_getreg_b32 s{S_T0}, hwreg(HW_REG_XCC_ID, 0, 4)")
            a(f"v_mov_b32 v{V_CELL+3}, s{S_T0}")
            a("s_mov_b64 exec, 1")
            a(f"global_store_dwordx2 v{V_CELL+1}, {vr(V_CELL+2,2)}, {sr(S_CELL,2)} offset:8 sc1")
            a("s_mov_b64 exec, -1")
            a("L_noann:")
    a("s_nop 7")
    extract(pend)
    stamp(4)

    a.c("---- softmax numerators over the wave's 128 tokens (true max of the wave)")
    S = V_S; NS = 8
    a(f"v_max3_f32 v{V_M}, v{S}, v{S+1}, v{S+2}")
    a(f"v_max3_f32 v{V_M}, v{V_M}, v{S+3}, v{S+4}")
    a(f"v_max3_f32 v{V_M}, v{V_M}, v{S+5}, v{S+6}")
    a(f"v_max_f32 v{V_M}, v{V_M}, v{S+7}")
    def allred(reg, op, tmp):
        a("s_nop 1")
        a(f"{op}_dpp v{reg}, v{reg}, v{reg} row_ror:4 row_mask:0xf bank_mask:0xf")
        a("s_nop 1")
        a(f"{op}_dpp v{reg}, v{reg}, v{reg} row_ror:8 row_mask:0xf bank_mask:0xf")
        a(f"v_mov_b32 v{tmp}, v{reg}")
        a("s_nop 1")
        a(f"v_permlane16_swap_b32 v{tmp}, v{reg}")
        a(f"{op} v{reg}, v{reg}, v{tmp}")
        a(f"v_mov_b32 v{tmp}, v{reg}")
        a("s_nop 1")
        a(f"v_permlane32_swap_b32 v{tmp}, v{reg}")
        a(f"{op} v{reg}, v{reg}, v{tmp}")
    allred(V_M, "v_max_f32", t0)
    for g in range(NS): a(f"v_sub_f32 v{S+g}, v{S+g}, v{V_M}")
    for g in range(NS): a(f"v_exp_f32 v{S+g}, v{S+g}")
    wait_for(["vs0", "vs1", "vz0", "vz1"])
    for hh in range(NH):
        a(f"v_lshlrev_b32 v{V_VS+hh}, 16, v{V_VS+hh}")
        a(f"v_lshlrev_b32 v{V_VZ+hh}, 16, v{V_VZ+hh}")
    a(f"v_add_f32 v{V_L}, v{S}, v{S+1}")
    for g in range(2, NS): a(f"v_add_f32 v{V_L}, v{V_L}, v{S+g}")
    for hh in range(NH):
        for g in range(4):
            a(f"v_mul_f32_dpp v{S+4*hh+g}, v{V_VS+hh}, v{S+4*hh+g} quad_perm:[{g},{g},{g},{g}] row_mask:0xf bank_mask:0xf")
    a(f"s_mov_b32 s{S_T1}, 0xffff0000")
    a.c("P operand write address: b*64 + par*32 + h*8 + kpair*4, lane = 32*kpair + 16*par + 4*b + h")
    a(f"v_bfe_u32 v{t1}, v{L}, 2, 2")
    a(f"v_lshlrev_b32 v{t1}, 6, v{t1}")
    a(f"v_bfe_u32 v{t2}, v{L}, 4, 1")
    a(f"v_lshl_or_b32 v{t1}, v{t2}, 5, v{t1}")
    a(f"v_and_b32 v{t2}, 3, v{L}")
    a(f"v_lshl_or_b32 v{t1}, v{t2}, 3, v{t1}")
    a(f"v_lshrrev_b32 v{t2}, 5, v{L}")
    a(f"v_lshl_or_b32 v{t1}, v{t2}, 2, v{t1}")
    a(f"s_lshl_b32 s{S_T0}, s{S_WAVE}, 11")
    a(f"v_add_u32 v{t1}, s{S_T0}, v{t1}")
    u = V_U; w_ = V_PK; hi, lo = V_PA, V_PA + 2
    for hh in range(NH):
        Sh = S + 4 * hh
        a(f"v_cvt_pk_bf16_f32 v{hi}, v{Sh}, v{Sh+1}")
        a(f"v_cvt_pk_bf16_f32 v{hi+1}, v{Sh+2}, v{Sh+3}")
        a(f"v_lshlrev_b32 v{u}, 16, v{hi}")
        a(f"v_and_b32 v{u+1}, s{S_T1}, v{hi}")
        a(f"v_lshlrev_b32 v{u+2}, 16, v{hi+1}")
        a(f"v_and_b32 v{u+3}, s{S_T1}, v{hi+1}")
        if use_lo:
            for g in range(4): a(f"v_sub_f32 v{Sh+g}, v{Sh+g}, v{u+g}")
            a(f"v_cvt_pk_bf16_f32 v{lo}, v{Sh}, v{Sh+1}")
            a(f"v_cvt_pk_bf16_f32 v{lo+1}, v{Sh+2}, v{Sh+3}")
            a(f"v_lshlrev_b32 v{w_}, 16, v{lo}")
            a(f"v_and_b32 v{w_+1}, s{S_T1}, v{lo}")
            a(f"v_lshlrev_b32 v{w_+2}, 16, v{lo+1}")
            a(f"v_and_b32 v{w_+3}, s{S_T1}, v{lo+1}")
            for g in range(4): a(f"v_add_f32 v{Sh+g}, v{w_+g}, v{u+g}")
            src = Sh
        else:
            src = u
        for g in range(4):
            op = "v_mul_f32_dpp" if (hh == 0 and g == 0) else "v_fmac_f32_dpp"
            a(f"{op} v{V_CZ}, v{V_VZ+hh}, v{src+g} quad_perm:[{g},{g},{g},{g}] row_mask:0xf bank_mask:0xf")
        for base, off in ((u, 0),) + (((w_, LO_OFF),) if use_lo else ()):
            a(f"v_permlane32_swap_b32 v{base}, v{base+1}")
            a(f"v_permlane32_swap_b32 v{base+2}, v{base+3}")
            a(f"v_cvt_pk_bf16_f32 v{base}, v{base}, v{base+1}")
            a(f"v_cvt_pk_bf16_f32 v{base+2}, v{base+2}, v{base+3}")
            a(f"ds_write_b32 v{t1}, v{base} offset:{LDS_P+off+(hh*2)*256}")
            a(f"ds_write_b32 v{t1}, v{base+2} offset:{LDS_P+off+(hh*2+1)*256}")
    a.c("launch cell line (cell value, announcement); address-translation / cache warm-up for the combiner (values unused)")
    a(f"v_mov_b32 v{t0}, 0")
    a(f"global_load_dwordx4 {vr(V_CELL,4)}, v{t0}, {sr(S_CELL,2)}")
    warm("ewarm" not in opts, "eprew" not in opts, "b")
    a("s_waitcnt lgkmcnt(0)")
    if "st5v" not in opts: stamp(5)

    a.c("---- V phase: one 4-token piece per step, MFMAs every second piece")
    def pa_read(s_):
        hh, b, m = s_ // 16, (s_ // 4) % 4, (s_ % 4) // 2
        P = V_PA + 4 * ((s_ // 2) % 2)
        off = LDS_P + ((hh * 2 + m) * 4 + b) * 64
        a(f"ds_read_b64 {vr(P,2)}, v{V_PADDR} offset:{off}")
        if use_lo: a(f"ds_read_b64 {vr(P+2,2)}, v{V_PADDR} offset:{off+LO_OFF}")
    def redn(n, reg, op, src=None):
        src = reg if src is None else src
        r = n // 2; first = True
        while r >= 1:
            if not first: a("s_nop 1")
            s_ = src if first else reg
            a(f"{op}_dpp v{reg}, v{s_}, v{s_} row_ror:{r} row_mask:0xf bank_mask:0xf")
            first = False; r //= 2
    def publish(data, stats):
        def one(fl):
            if data: a(f"global_store_dwordx2 v{V_RB}, {vr(V_O,2)}, {sr(S_SLOT,2)}{fl}")
            if stats:
                a("s_mov_b64 exec, 1")
                a(f"global_store_dwordx4 v{V_SA}, {vr(V_ML,4)}, {sr(S_SLOT,2)} offset:2048{fl}")
                a("s_mov_b64 exec, -1")
        k = "d" if data else "s"
        a(f"s_cmp_eq_u32 s{S_SAME}, 0")
        a(f"s_cbranch_scc1 L_pubfast_{k}")
        one(" sc1")
        a(f"s_branch L_pubdone_{k}")
        a(f"L_pubfast_{k}:")
        one("")
        a(f"L_pubdone_{k}:")
    for s_ in range(NP):
        n0, n1 = NL + 2 * s_, NL + 2 * s_ + 1
        if s_ % 2 == 0: pa_read(s_)
        if s_ == BARP:
            a.c("every wave has written its statistics: exchange them")
            a("s_barrier")
            a(f"v_and_b32 v{t2}, 3, v{L}")
            a(f"s_lshl_b32 s{S_T0}, s{S_WAVE}, 6")
            a(f"v_lshl_add_u32 v{t2}, v{t2}, 4, s{S_T0}")
            a(f"ds_read_b128 {vr(V_ST,4)}, v{t2} offset:{LDS_STAT}")
        if s_ == NP - 2:
            a.c("combiner: prefetch the pair's statistics")
            a(f"s_cmp_lg_u32 s{S_CHUNK}, 7")
            a("s_cbranch_scc1 L_nostpf")
            a(f"global_load_dwordx4 {vr(V_ST,4)}, v{V_PST}, {sr(S_PSLOT,2)} offset:2048 sc1")
            a("L_nostpf:")
        wait_for([n0, n1])
        if "st5v" in opts and s_ == optv("st5p", 2): stamp(5)
        for n in (n0, n1):
            for r in range(4): a(f"v_cvt_f32_i32 v{slot(n)+r}, v{slot(n)+r}")
        for r in range(4):
            a(f"v_cvt_pk_bf16_f32 v{V_PK+2*r+(s_%2)}, v{slot(n0)+r}, v{slot(n1)+r}")
        refill(n1 + 1)
        if s_ % 2 == 1:
            P = V_PA + 4 * ((s_ // 2) % 2)
            a("s_waitcnt lgkmcnt(0)")
            for r in range(4):
                c_in = "0" if s_ == 1 else vr(V_ACC + 4 * r, 4)
                a(f"v_mfma_f32_4x4x4_16b_bf16 {vr(V_ACC+4*r,4)}, {vr(P,2)}, {vr(V_PK+2*r,2)}, {c_in}")
            if use_lo:
                for r in range(4):
                    a(f"v_mfma_f32_4x4x4_16b_bf16 {vr(V_ACC+4*r,4)}, {vr(P+2,2)}, {vr(V_PK+2*r,2)}, {vr(V_ACC+4*r,4)}")
        if s_ == 1:
            a.c("wave statistics (m, l, cz) per head -> LDS")
            allred(V_L, "v_add_f32", t0)
            allred(V_CZ, "v_add_f32", t0)
            a(f"v_lshlrev_b32 v{t1}, 6, v{L}")
            a(f"s_lshl_b32 s{S_T0}, s{S_WAVE}, 4")
            a(f"v_add_u32 v{t1}, s{S_T0}, v{t1}")
            a("s_mov_b64 exec, 0xf")
            a(f"ds_write_b128 v{t1}, {vr(V_M,4)} offset:{LDS_STAT}")
            a("s_mov_b64 exec, -1")
        if s_ == 3:
            a.c("addresses used by the tail")
            a(f"s_lshl_b32 s{S_T0}, s{S_WAVE}, 11")
            a(f"v_lshl_add_u32 v{V_RA}, v{L}, 3, s{S_T0}")
            a(f"s_lshl_b32 s{S_T0}, s{S_WAVE}, 9")
            a(f"v_lshl_add_u32 v{V_RB}, v{L}, 3, s{S_T0}")
            a(f"s_lshl_b32 s{S_T0}, s{S_WAVE}, 4")
            a(f"v_mov_b32 v{V_SA}, s{S_T0}")
            a(f"v_and_b32 v{V_PST}, 7, v{L}")
            a(f"v_lshlrev_b32 v{V_PST}, 12, v{V_PST}")
            a(f"v_add_u32 v{V_PST}, s{S_T0}, v{V_PST}")
            for c in range(8): a(f"v_add_u32 v{V_PAD+c}, {c*4096}, v{V_RB}")
            a(f"v_and_b32 v{V_OA}, 31, v{L}")
            a(f"v_lshlrev_b32 v{V_OA}, 3, v{V_OA}")
            a(f"v_lshrrev_b32 v{t3}, 5, v{L}")
            a(f"v_lshl_or_b32 v{V_OA}, v{t3}, 2, v{V_OA}")
            a(f"s_lshl_b32 s{S_T0}, s{S_PAIR}, 10")
            a(f"s_lshl_b32 s{S_T1}, s{S_WAVE}, 8")
            a(f"s_add_u32 s{S_T0}, s{S_T0}, s{S_T1}")
            a(f"v_add_u32 v{V_OA}, s{S_T0}, v{V_OA}")
        if s_ == BARP - 2:
            a.c("launch tag = cell + 1; the fast hand-off applies iff the combiner announced this XCC in this launch")
            a(f"v_add_u32 v{V_TAG}, 1, v{V_CELL}")
            a(f"s_movk_i32 s{S_FF}, 0xff")
            a(f"s_getreg_b32 s{S_T0}, hwreg(HW_REG_XCC_ID, 0, 4)")
            a(f"v_xor_b32 v{V_CELL+2}, v{V_CELL+2}, v{V_TAG}")
            a(f"v_xor_b32 v{V_CELL+3}, s{S_T0}, v{V_CELL+3}")
            a(f"v_or_b32 v{V_CELL+2}, v{V_CELL+2}, v{V_CELL+3}")
            if "slow" in opts: a(f"v_mov_b32 v{V_CELL+2}, 1")
            a("s_nop 0")
            a(f"v_readfirstlane_b32 s{S_SAME}, v{V_CELL+2}")
        if s_ == BARP + 1:
            a.c("workgroup weights for head = wave: M, alpha_w, L, sum alpha_w cz_w; publish the statistics")
            redn(NW, V_M, "v_max_f32", V_ST)
            a(f"v_and_b32 v{V_M}, 0xffffff00, v{V_M}")
            a(f"v_sub_f32 v{V_AL}, v{V_ST}, v{V_M}")
            a(f"v_exp_f32 v{V_AL}, v{V_AL}")
            a(f"v_bfi_b32 v{V_ML}, s{S_FF}, v{V_TAG}, v{V_M}")
            a(f"v_mul_f32 v{V_L}, v{V_AL}, v{V_ST+1}")
            a(f"v_mul_f32 v{V_CZ}, v{V_AL}, v{V_ST+2}")
            a(f"v_mov_b32 v{V_ML+2}, v{V_TAG}")
            redn(NW, V_L, "v_add_f32")
            a(f"v_mov_b32 v{V_ML+3}, v{V_TAG}")
            redn(NW, V_CZ, "v_add_f32")
            a(f"v_bfi_b32 v{V_ML+1}, s{S_FF}, v{V_TAG}, v{V_L}")
            a(f"v_sub_f32 v{V_O}, 0, v{V_CZ}")
            a(f"v_sub_f32 v{V_O+1}, 0, v{V_CZ}")
            publish(False, True)
    stamp(6)

    a.c("---- workgroup reduction")
    a("s_nop 4")
    for i in range(4):
        a(f"v_permlane32_swap_b32 v{V_ACC+i}, v{V_ACC+8+i}")
        a(f"v_permlane32_swap_b32 v{V_ACC+4+i}, v{V_ACC+12+i}")
    X = V_PK
    for i in range(4):
        a(f"v_add_f32 v{X+2*i}, v{V_ACC+i}, v{V_ACC+8+i}")
        a(f"v_add_f32 v{X+2*i+1}, v{V_ACC+4+i}, v{V_ACC+12+i}")
        a(f"ds_write_b64 v{V_RA}, {vr(X+2*i,2)} offset:{LDS_RED+512*i}")
    a("s_waitcnt lgkmcnt(0)")
    a("s_barrier")
    stamp(7)
    Z = V_RING
    for w in range(NW):
        a(f"ds_read_b64 {vr(Z+2*w,2)}, v{V_RB} offset:{LDS_RED+2048*w}")
    for w in range(NW):
        a(f"s_waitcnt lgkmcnt({NW-1-w})")
        a(f"v_fmac_f32_dpp v{V_O}, v{V_AL}, v{Z+2*w} row_newbcast:{w} row_mask:0xf bank_mask:0xf")
        a(f"v_fmac_f32_dpp v{V_O+1}, v{V_AL}, v{Z+2*w+1} row_newbcast:{w} row_mask:0xf bank_mask:0xf")
    a(f"v_bfi_b32 v{V_O}, s{S_FF}, v{V_TAG}, v{V_O}")
    a(f"v_bfi_b32 v{V_O+1}, s{S_FF}, v{V_TAG}, v{V_O+1}")
    publish(True, False)
    stamp(8)
    a(f"s_cmp_lg_u32 s{S_CHUNK}, 7")
    a("s_cbranch_scc1 L_fin0" if stamps else "s_cbranch_scc1 L_end")

    if "nopoll" in opts: a("s_branch L_fin0" if stamps else "s_branch L_end")
    a.c("---- combiner: merge the pair's 8 partials")
    def poll_data():
        for c in range(8):
            a(f"global_load_dwordx2 {vr(V_Y+2*c,2)}, v{V_PAD+c}, {sr(S_PSLOT,2)} sc1")
    poll_data()
    a(f"s_mov_b32 s{S_SPIN}, {spin}")
    a("L_stchk:")
    a(f"v_xor_b32 v{t0}, v{V_ST}, v{V_TAG}")
    a(f"v_bitop3_b32 v{t0}, v{V_ST+1}, v{t0}, v{V_TAG} bitop3:0xde")
    a(f"v_xor_b32 v{t3}, v{V_ST+2}, v{V_TAG}")
    a(f"v_bitop3_b32 v{t3}, v{V_ST+3}, v{t3}, v{V_TAG} bitop3:0xde")
    a(f"v_and_or_b32 v{t0}, v{t0}, s{S_FF}, v{t3}")
    a(f"v_cmp_ne_u32 vcc, 0, v{t0}")
    a("s_cbranch_vccz L_stok")
    a(f"s_sub_u32 s{S_SPIN}, s{S_SPIN}, 1")
    a("s_cbranch_scc1 L_end")
    a(f"global_load_dwordx4 {vr(V_ST,4)}, v{V_PST}, {sr(S_PSLOT,2)} offset:2048 sc1")
    a("s_waitcnt vmcnt(0)")
    a("s_branch L_stchk")
    a("L_stok:")
    a.c("drop the tag bytes: the result must not depend on the tag value")
    a(f"s_mov_b32 s{S_T1}, 0xffffff00")
    a(f"v_and_b32 v{V_ST}, s{S_T1}, v{V_ST}")
    a(f"v_and_b32 v{V_ST+1}, s{S_T1}, v{V_ST+1}")
    a("s_nop 0")
    redn(8, V_M, "v_max_f32", V_ST)
    a(f"v_sub_f32 v{V_AL}, v{V_ST}, v{V_M}")
    a(f"v_exp_f32 v{V_AL}, v{V_AL}")
    a("s_nop 0")
    a(f"v_mul_f32 v{V_L}, v{V_AL}, v{V_ST+1}")
    a("s_nop 1")
    redn(8, V_L, "v_add_f32")
    a(f"v_rcp_f32 v{t0}, v{V_L}")
    a("s_nop 0")
    a(f"v_mul_f32 v{V_AL}, v{V_AL}, v{t0}")
    a("L_dchk:")
    for c in range(8):
        a(f"s_waitcnt vmcnt({7-c})")
        if c == 0:
            a(f"v_xor_b32 v{t0}, v{V_Y}, v{V_TAG}")
        else:
            a(f"v_bitop3_b32 v{t0}, v{V_Y+2*c}, v{t0}, v{V_TAG} bitop3:0xde")
        a(f"v_bitop3_b32 v{t0}, v{V_Y+2*c+1}, v{t0}, v{V_TAG} bitop3:0xde")
        a(f"v_and_b32 v{V_Y+2*c}, s{S_T1}, v{V_Y+2*c}")
        a(f"v_and_b32 v{V_Y+2*c+1}, s{S_T1}, v{V_Y+2*c+1}")
    a(f"v_and_b32 v{t0}, s{S_FF}, v{t0}")
    a(f"v_cmp_ne_u32 vcc, 0, v{t0}")
    a("s_cbranch_vccz L_ready")
    a(f"s_sub_u32 s{S_SPIN}, s{S_SPIN}, 1")
    a("s_cbranch_scc1 L_end")
    poll_data()
    a("s_branch L_dchk")
    a("L_ready:")
    stamp(9)
    O0, O1 = V_O, V_O + 1
    a(f"v_mul_f32_dpp v{O0}, v{V_AL}, v{V_Y} row_newbcast:0 row_mask:0xf bank_mask:0xf")
    a(f"v_mul_f32_dpp v{O1}, v{V_AL}, v{V_Y+1} row_newbcast:0 row_mask:0xf bank_mask:0xf")
    for c in range(1, 8):
        a(f"v_fmac_f32_dpp v{O0}, v{V_AL}, v{V_Y+2*c} row_newbcast:{c} row_mask:0xf bank_mask:0xf")
        a(f"v_fmac_f32_dpp v{O1}, v{V_AL}, v{V_Y+2*c+1} row_newbcast:{c} row_mask:0xf bank_mask:0xf")
    a(f"v_cvt_pk_bf16_f32 v{t0}, v{O0}, v{O1}")
    a(f"global_store_dword v{V_OA}, v{t0}, {sr(S_OUT,2)} sc1")
    a.c("all eight workgroups have published, so all have read the cell: advance it for the next launch")
    a(f"s_cmp_lg_u32 s{S_WAVE}, 0")
    a("s_cbranch_scc1 L_nocell")
    a(f"v_mov_b32 v{t3}, 0")
    a("s_mov_b64 exec, 1")
    a(f"global_store_dword v{t3}, v{V_TAG}, {sr(S_CELL,2)} sc1")
    a("s_mov_b64 exec, -1")
    a("L_nocell:")
    if stamps and optv("amp", 0):
        stamp(10)
        a("s_waitcnt lgkmcnt(0)")
        K_, ia, ib = optv("amp", 0), optv("ampa", 0), optv("ampb", 10)
        a(f"s_sub_u32 s{S_T0}, s{S_ST+2*ib}, s{S_ST+2*ia}")
        a(f"s_min_u32 s{S_T0}, s{S_T0}, 20000")
        a(f"s_mul_i32 s{S_T0}, s{S_T0}, {K_}")
        a(f"s_add_u32 s{S_T0}, s{S_T0}, s{S_ST+20}")
        a("L_amp:")
        a(f"s_memrealtime s[{S_ST+22}:{S_ST+23}]")
        a("s_waitcnt lgkmcnt(0)")
        a(f"s_sub_u32 s{S_T1}, s{S_ST+22}, s{S_T0}")
        a(f"s_cmp_lt_i32 s{S_T1}, 0")
        a("s_cbranch_scc1 L_amp")
        a("L_fin0:")
    elif stamps:
        stamp(10)
        a("L_fin0:")
        a("s_waitcnt lgkmcnt(0)")
        vx, va_ = t0, t1
        a(f"v_mov_b32 v{vx}, 0")
        for i in range(11): a(f"v_writelane_b32 v{vx}, s{S_ST+2*i}, {i}")
        a(f"s_getreg_b32 s{S_T1}, hwreg(HW_REG_HW_ID)")
        a(f"v_writelane_b32 v{vx}, s{S_T1}, 14")
        a(f"s_getreg_b32 s{S_T1}, hwreg(HW_REG_XCC_ID)")
        a(f"v_writelane_b32 v{vx}, s{S_T1}, 15")
        a(f"s_mul_i32 s{S_T1}, s{S_WG}, {NW}")
        a(f"s_add_u32 s{S_T1}, s{S_T1}, s{S_WAVE}")
        a(f"s_lshl_b32 s{S_T1}, s{S_T1}, 6")
        a(f"s_add_u32 s{S_T1}, s{S_T1}, 0x8000000")
        a(f"v_lshl_add_u32 v{va_}, v{L}, 2, s{S_T1}")
        a("s_mov_b64 exec, 0xffff")
        a(f"global_store_dword v{va_}, v{vx}, {sr(S_WS,2)}")
    a("L_end:")
    a("s_endpgm")
    tail = f""".section .rodata,"a"
.p2align 6
.amdhsa_kernel {KNAME}_kernel
  .amdhsa_next_free_vgpr {NV}
  .amdhsa_next_free_sgpr {96 if stamps else 64}
  .amdhsa_accum_offset {(NV+3)//4*4}
  .amdhsa_group_segment_fixed_size 0
  .amdhsa_kernarg_size 80
  .amdhsa_user_sgpr_count 2
  .amdhsa_user_sgpr_kernarg_segment_ptr 1
  .amdhsa_system_sgpr_workgroup_id_x 1
  .amdhsa_float_denorm_mode_32 3
.end_amdhsa_kernel
"""
    txt = a.text()
    def drop(pred):
        nonlocal txt
        txt = "\n".join(l for l in txt.split("\n") if not pred(l))
    if "nosmall" in opts: drop(lambda l: "global_load_dwordx2 v[4" in l or "global_load_dwordx2 v[50" in l or "global_load_ushort" in l)
    if "noq" in opts: drop(lambda l: "global_load_dwordx2 v[4" in l or "global_load_dwordx2 v[50" in l)
    if "novs" in opts: drop(lambda l: "global_load_ushort" in l)
    if "nocell" in opts: drop(lambda l: f"global_load_dword v{V_X}" in l or f"global_load_dword v{V_CELL}" in l or f"global_load_dwordx4 v[{V_CELL}" in l or "offset:8 sc1" in l or f"global_load_dwordx4 v[{V_ST}" in l)
    if "nobar" in opts:
        i = txt.index("s_barrier"); txt = txt[:i] + "s_nop 0" + txt[i+len("s_barrier"):]
    if "novalu" in opts: drop(lambda l: "v_cvt_f32_i32" in l or "v_mfma" in l or "v_cvt_pk_bf16" in l or "_dpp" in l or "v_exp" in l or "v_permlane" in l)
    return head + txt + tail, lds

DOC = """; Split-KV decode attention over int32-stored quantisation codes.
"""

if __name__ == "__main__":
    ap = argparse.ArgumentParser()
    ap.add_argument("-G", type=int, default=8)
    ap.add_argument("--stamps", action="store_true")
    ap.add_argument("--opt", action="append", default=[])
    ap.add_argument("-o", default="cdna_kernels/" + KNAME + ".s")
    args = ap.parse_args()
    s, lds = gen(G=args.G, stamps=args.stamps, opts=args.opt)
    if "codepf" in args.opt:
        import subprocess, re, os
        opts2 = args.opt + ["codelen=65"]
        s, lds = gen(G=args.G, stamps=args.stamps, opts=opts2)
        tmp = "_pass1.s"
        open(tmp, "w").write(s)
        subprocess.run(["clang", "-x", "assembler", "-target", "amdgcn-amd-amdhsa", "-mcpu=gfx950", "-c", tmp, "-o", tmp + ".o"], check=True)
        d = subprocess.run(["nm", tmp + ".o"], capture_output=True, text=True).stdout
        pc = int(re.search(r"([0-9a-f]+) t L_pc", d).group(1), 16); end = int(re.search(r"([0-9a-f]+) t L_end", d).group(1), 16)
        s, lds = gen(G=args.G, stamps=args.stamps, opts=args.opt + [f"codelen={end - pc}"])
        os.remove(tmp); os.remove(tmp + ".o")
    open(args.o, "w").write(s)
    print(lds)
```

```python
import math, argparse, struct

KNAME = "standalone__kv_cache_quant_int4_int2_kv_with_per_channel_or_per_token_scales__decode"

class Asm:
    def __init__(self): self.lines = []
    def __call__(self, s=""):
        s = s.strip()
        self.lines.append(s if s.endswith(":") else "    " + s)
    def c(self, s): self.lines.append("    ; " + s)
    def text(self): return "\n".join(self.lines) + "\n"

def vr(a, n=1): return f"v{a}" if n == 1 else f"v[{a}:{a+n-1}]"
def sr(a, n=1): return f"s{a}" if n == 1 else f"s[{a}:{a+n-1}]"
def f32bits(x): return struct.unpack("<I", struct.pack("<f", x))[0]

def gen(G=8, spin=1 << 18, stamps=False, opts=()):
    a = Asm()
    def optv(name, default):
        for o in opts:
            if o.startswith(name + "="): return int(o.split("=")[1])
        return default
    NW = 4
    NH = 2
    NP = 32
    NL = 64
    use_lo = "nolo" not in opts
    PARK = optv("park", 4)
    LATEV = optv("latev", 8)
    BARP = NP - optv("barp", 8)
    S_WG = 2; S_WAVE = 3
    S_Q, S_QK, S_QV, S_KS, S_KZ, S_VS, S_VZ, S_OUT = 4, 6, 8, 10, 12, 14, 16, 18
    S_WS = 22
    S_KSRD = 24; S_VSRD = 28
    S_BASE = 32; S_RUN = 33
    S_PAIR = 40; S_CHUNK = 41; S_T0 = 42; S_T1 = 43
    S_SLOT = 44; S_PSLOT = 46; S_CELL = 48
    S_SPIN = 52; S_LIN = 53; S_SAME = 54; S_FF = 55
    S_ST = 70
    S_PAR = 59
    L = 0; V_OFFK = 1; V_OFFV = 2
    t0, t1, t2, t3 = 3, 4, 5, 6
    V_U = 7
    V_VSOFF = 11
    V_BHI = 12; V_BLO = 16
    V_NEGC = 20; V_PADDR = 21; V_TAG = 22; V_AL = 23
    V_M = 24; V_L = 25; V_CZ = 26
    V_S = 28
    V_VS = 36; V_VZ = 38
    V_PK = 40
    V_D = 56; V_ACC = 56
    V_PA = 72
    V_CELL = 80
    V_RING = 84
    V_PARK = V_RING + 4 * G
    R = V_PARK + 16
    V_RA, V_RB, V_SA, V_OA, V_PST, V_X = R, R + 1, R + 2, R + 3, R + 4, R + 5
    V_O = R + 6
    V_ML = R + 8
    V_PAD = R + 12
    V_ST = R + 20
    V_Y = R + 24
    NV = R + 40
    assert NV <= 256 and V_O % 2 == 0
    V_Q = V_PK; V_KSR = V_PK + 4; V_KZR = V_PK + 8
    LDS_P = 0; LO_OFF = NH * 512
    LDS_RED = NW * NH * 1024
    LDS_STAT = LDS_RED + NW * 2048
    lds = LDS_STAT + 256
    Cbits = f32bits((128 ** -0.5) * math.log2(math.e))

    queue = []
    def issue(tag): queue.append(tag)
    def wait_for(tags):
        idx = max((queue.index(t) for t in tags if t in queue), default=-1)
        if idx < 0: return
        n = len(queue) - 1 - idx
        assert n <= 63
        a(f"s_waitcnt vmcnt({n})")
        del queue[:idx + 1]
    def stamp(i):
        if stamps: a(f"s_memrealtime s[{S_ST+2*i}:{S_ST+2*i+1}]")

    hdr = open("cdna_kernels/" + KNAME + ".s.ref").read().split("\n")
    out = []
    for l in hdr:
        if l.startswith("; @launch"):
            out.append(f"; @launch grid=(256,1,1) block=({NW*64},1,1) lds={lds}")
            break
        if l.startswith("; Override launch") or l.startswith("; grid=ceil"): continue
        out.append(l)
    head = "\n".join(out) + "\n" + DOC
    head += f""".amdgcn_target "amdgcn-amd-amdhsa--gfx950"
.text
.globl {KNAME}_kernel
.p2align 8
.type {KNAME}_kernel,@function
{KNAME}_kernel:
"""
    a.c("---- prologue: ids, pointers, first loads")
    a(f"s_cmp_ge_u32 s{S_WG}, 256")
    a("s_cbranch_scc1 L_end")
    stamp(0)
    for _ in range(optv("pad", 0)): a("s_nop 0")
    a("s_load_dwordx16 s[4:19], s[0:1], 0")
    a("s_load_dwordx2 s[22:23], s[0:1], 72")
    a(f"v_lshrrev_b32 v{t0}, 6, v0")
    a(f"v_and_b32 v{L}, 63, v0")
    a(f"v_readfirstlane_b32 s{S_WAVE}, v{t0}")
    def codepf():
        if "codepf" not in opts: return
        a.c("pull one 128-byte line of this kernel's code towards the L2 (each wave a different line; value unused)")
        a(f"s_getpc_b64 s[56:57]")
        a("L_pc:")
        a(f"s_lshr_b32 s58, s{S_WG}, 3")
        a(f"s_lshl_b32 s58, s58, 2")
        a(f"s_add_u32 s58, s58, s{S_WAVE}")
        a(f"s_lshl_b32 s58, s58, 7")
        a(f"s_min_u32 s58, s58, {optv('codelen', 0)}")
        a(f"s_add_u32 s56, s56, s58")
        a(f"s_addc_u32 s57, s57, 0")
        a(f"s_load_dword s58, s[56:57], 0")
    if "cpfearly" in opts: codepf()
    a(f"v_and_b32 v{t0}, 3, v{L}")
    a(f"v_lshrrev_b32 v{t1}, 4, v{L}")
    a(f"v_bfe_u32 v{t2}, v{L}, 2, 2")
    a(f"v_lshlrev_b32 v{V_OFFK}, 4, v{t0}")
    a(f"v_lshl_or_b32 v{V_OFFK}, v{t1}, 6, v{V_OFFK}")
    a(f"v_lshl_or_b32 v{V_OFFK}, v{t2}, 9, v{V_OFFK}")
    a(f"v_lshlrev_b32 v{V_OFFV}, 4, v{L}")
    a(f"s_and_b32 s{S_PAIR}, s{S_WG}, 31")
    a(f"s_lshr_b32 s{S_CHUNK}, s{S_WG}, 5")
    if "lin" in opts:
        a(f"s_lshr_b32 s{S_PAIR}, s{S_WG}, 3")
        a(f"s_and_b32 s{S_CHUNK}, s{S_WG}, 7")
    if "mix" in opts:
        a(f"s_lshr_b32 s{S_T0}, s{S_WG}, 7")
        a(f"s_xor_b32 s{S_PAIR}, s{S_PAIR}, s{S_T0}")
    a(f"s_lshl_b32 s{S_LIN}, s{S_PAIR}, 3")
    a(f"s_add_u32 s{S_LIN}, s{S_LIN}, s{S_CHUNK}")
    a(f"s_lshl_b32 s{S_T0}, s{S_LIN}, 18")
    a(f"s_lshl_b32 s{S_T1}, s{S_WAVE}, {13 if 'i8' in opts else 11}")
    a(f"s_add_u32 s{S_BASE}, s{S_T0}, s{S_T1}")
    vq, vks, vkz = V_U, V_U + 1, V_U + 2
    a(f"v_lshlrev_b32 v{vks}, 5, v{t1}")
    a(f"v_lshl_or_b32 v{vkz}, v{t0}, 3, v{vks}")
    a(f"v_lshl_or_b32 v{vks}, v{t2}, 3, v{vks}")
    a(f"v_lshl_or_b32 v{vq}, v{t0}, 8, v{vks}")
    if "i8" in opts:
        a(f"v_lshlrev_b32 v{V_VSOFF}, 7, v{t2}")
        a(f"v_lshl_or_b32 v{V_VSOFF}, v{t0}, 3, v{V_VSOFF}")
        a(f"v_lshl_or_b32 v{V_VSOFF}, v{t1}, 1, v{V_VSOFF}")
        a(f"s_lshl_b32 s{S_T1}, s{S_WAVE}, 5")
        a(f"v_add_u32 v{V_VSOFF}, s{S_T1}, v{V_VSOFF}")
    else:
        a(f"v_lshl_or_b32 v{V_VSOFF}, v{t2}, 2, v{t0}")
        a(f"v_lshlrev_b32 v{V_VSOFF}, 5, v{V_VSOFF}")
        a(f"v_lshl_or_b32 v{V_VSOFF}, v{t1}, 1, v{V_VSOFF}")
        a(f"s_lshl_b32 s{S_T1}, s{S_WAVE}, 3")
        a(f"v_add_u32 v{V_VSOFF}, s{S_T1}, v{V_VSOFF}")
    a("s_waitcnt lgkmcnt(0)")
    if "st1k" not in opts: stamp(1)
    for srd, p in ((S_KSRD, S_QK), (S_VSRD, S_QV)):
        a(f"s_mov_b32 s{srd}, s{p}")
        a(f"s_and_b32 s{srd+1}, s{p+1}, 0xffff")
        a(f"s_mov_b32 s{srd+2}, 0x4000000")
        a(f"s_mov_b32 s{srd+3}, 0x20000")

    def slot(n): return V_RING + 4 * (n % G)
    st = {"next": 0}
    def issue_big(n):
        isK = n < NL
        m = n if isK else n - NL
        piece, sub = m // 2, m % 2
        poff = (piece // 4) * NW * 8192 + (piece % 4) * 2048 if "i8" in opts else piece * NW * 2048
        if sub == 0: a(f"s_add_u32 s{S_RUN}, s{S_BASE}, {poff}")
        if isK:
            a(f"buffer_load_dwordx4 {vr(slot(n),4)}, v{V_OFFK}, {sr(S_KSRD,4)}, s{S_RUN} offen offset:{sub*256} nt")
        else:
            a(f"buffer_load_dwordx4 {vr(slot(n),4)}, v{V_OFFV}, {sr(S_VSRD,4)}, s{S_RUN} offen offset:{sub*1024} nt")
        issue(n)
    DK = optv("dk", G); DV = optv("dv", G); D0 = optv("d0", DK)
    assert max(DK, DV, D0, optv('dend', 0)) <= G
    def refill(done):
        depth = D0 if done <= 2 * PARK else (DK if done < NL - DK else DV)
        if done >= optv("n1", 10**9): depth = min(optv("dend", G), DV + 1 + (done - optv("n1", 0)) // optv("rstep", 1))
        DLO = optv("dlo", 0)
        if DLO and 2 * PARK < done and optv("dlo_from", 0) <= done <= optv("dlo_to", 10**9) and st["next"] < min(2 * NL, done + depth):
            st["lab"] = st.get("lab", 0) + 1
            a(f"s_cmp_lg_u32 s{S_PAR}, 0")
            a(f"s_cbranch_scc1 L_deep{st['lab']}")
            a(f"s_waitcnt vmcnt({DLO - 2})")
            a(f"L_deep{st['lab']}:")
        while st["next"] < min(2 * NL, done + depth):
            issue_big(st["next"]); st["next"] += 1

    if optv("dlo", 0):
        a(f"s_getreg_b32 s{S_PAR}, hwreg(HW_REG_XCC_ID, 0, 4)")
        a(f"s_and_b32 s{S_PAR}, s{S_PAR}, 1")
    refill(0)
    if "cpfearly" not in opts: codepf()
    a.c("q, k scales and k zeros of this (batch, kv head) pair and token group")
    a(f"s_lshl_b32 s{S_T0}, s{S_PAIR}, 10")
    a(f"s_add_u32 s{S_Q}, s{S_Q}, s{S_T0}")
    a(f"s_addc_u32 s{S_Q+1}, s{S_Q+1}, 0")
    a(f"s_lshr_b32 s{S_T0}, s{S_LIN}, 2")
    a(f"s_lshl_b32 s{S_T0}, s{S_T0}, 8")
    for p in (S_KS, S_KZ):
        a(f"s_add_u32 s{p}, s{p}, s{S_T0}")
        a(f"s_addc_u32 s{p+1}, s{p+1}, 0")
    a(f"global_load_dwordx2 {vr(V_Q,2)}, v{vq}, {sr(S_Q,2)}")
    a(f"global_load_dwordx2 {vr(V_Q+2,2)}, v{vq}, {sr(S_Q,2)} offset:128")
    a(f"global_load_dwordx2 {vr(V_KSR,2)}, v{vks}, {sr(S_KS,2)}")
    a(f"global_load_dwordx2 {vr(V_KSR+2,2)}, v{vks}, {sr(S_KS,2)} offset:128")
    a(f"global_load_dwordx2 {vr(V_KZR,2)}, v{vkz}, {sr(S_KZ,2)}")
    a(f"global_load_dwordx2 {vr(V_KZR+2,2)}, v{vkz}, {sr(S_KZ,2)} offset:128")
    for t in ("q0", "q1", "ks0", "ks1", "kz0", "kz1"): issue(t)
    a(f"s_lshl_b32 s{S_T0}, s{S_LIN}, 10")
    for p in (S_VS, S_VZ):
        a(f"s_add_u32 s{p}, s{p}, s{S_T0}")
        a(f"s_addc_u32 s{p+1}, s{p+1}, 0")
    def load_vsz():
        for hh in range(NH):
            a(f"global_load_ushort v{V_VS+hh}, v{V_VSOFF}, {sr(S_VS,2)} offset:{hh*512}"); issue(f"vs{hh}")
            a(f"global_load_ushort v{V_VZ+hh}, v{V_VSOFF}, {sr(S_VZ,2)} offset:{hh*512}"); issue(f"vz{hh}")
    if LATEV < 0: load_vsz()
    if "touchv" in opts:
        a.c("address-translation warm-up for this workgroup's V page (value unused)")
        a(f"v_mov_b32 v{V_X}, 0")
        a(f"buffer_load_dword v{V_X}, v{V_X}, {sr(S_VSRD,4)}, s{S_BASE} offen nt")
    a.c("hand-off addresses: slot of this workgroup, slots of the pair, launch cell of the pair")
    a(f"s_lshl_b32 s{S_T0}, s{S_LIN}, 12")
    a(f"s_add_u32 s{S_SLOT}, s{S_WS}, s{S_T0}")
    a(f"s_addc_u32 s{S_SLOT+1}, s{S_WS+1}, 0")
    a(f"s_lshl_b32 s{S_T0}, s{S_PAIR}, 15")
    a(f"s_add_u32 s{S_PSLOT}, s{S_WS}, s{S_T0}")
    a(f"s_addc_u32 s{S_PSLOT+1}, s{S_WS+1}, 0")
    a(f"s_lshl_b32 s{S_T0}, s{S_PAIR}, 7")
    a(f"s_add_u32 s{S_T0}, s{S_T0}, 0x100000")
    a(f"s_add_u32 s{S_CELL}, s{S_WS}, s{S_T0}")
    a(f"s_addc_u32 s{S_CELL+1}, s{S_WS+1}, 0")
    FAST = "nofast" not in opts
    if FAST:
        a.c("wave 0 of the pair's last workgroup (the combiner) reads the cell now to announce its XCC later")
        a(f"v_mov_b32 v{V_CELL+1}, 0")
        a(f"s_cmp_eq_u32 s{S_CHUNK}, 7")
        a(f"s_cselect_b32 s{S_SAME}, s{S_WAVE}, 1")
        a(f"s_cmp_lg_u32 s{S_SAME}, 0")
        a("s_cbranch_scc1 L_noearly")
        a(f"global_load_dword v{V_CELL}, v{V_CELL+1}, {sr(S_CELL,2)} sc1")
        a("L_noearly:")
    a(f"v_lshrrev_b32 v{V_PADDR}, 5, v{L}")
    a(f"v_lshlrev_b32 v{V_PADDR}, 5, v{V_PADDR}")
    a(f"v_lshl_or_b32 v{V_PADDR}, v{t0}, 3, v{V_PADDR}")
    a(f"s_lshl_b32 s{S_T1}, s{S_WAVE}, 11")
    a(f"v_add_u32 v{V_PADDR}, s{S_T1}, v{V_PADDR}")

    def warm(do_out, do_slots, lab):
        if not (do_out or do_slots): return
        a(f"s_cmp_lg_u32 s{S_CHUNK}, 7")
        a(f"s_cbranch_scc1 L_nowarm{lab}")
        if do_out:
            a(f"v_mov_b32 v{V_RA}, 0")
            a(f"global_load_dword v{V_X}, v{V_RA}, {sr(S_OUT,2)}")
        if do_slots:
            a(f"v_bfe_u32 v{V_RA}, v{L}, 2, 3")
            a(f"v_lshlrev_b32 v{V_RA}, 12, v{V_RA}")
            a(f"v_and_b32 v{V_RB}, 3, v{L}")
            a(f"v_lshlrev_b32 v{V_RB}, 7, v{V_RB}")
            a(f"s_lshl_b32 s{S_T0}, s{S_WAVE}, 9")
            a(f"v_add_u32 v{V_RB}, s{S_T0}, v{V_RB}")
            a(f"v_mov_b32 v{V_SA}, 2048")
            a(f"v_cmp_gt_u32 vcc, 32, v{L}")
            a("s_nop 1")
            a(f"v_cndmask_b32 v{V_RB}, v{V_SA}, v{V_RB}, vcc")
            a(f"v_add_u32 v{V_RA}, v{V_RA}, v{V_RB}")
            a(f"global_load_dword v{V_X}, v{V_RA}, {sr(S_PSLOT,2)} sc1")
        a(f"L_nowarm{lab}:")
    if "wswarm" in opts:
        a.c("address-translation warm-up for the hand-off page (value unused)")
        a(f"v_mov_b32 v{V_RA}, 0x180000")
        a(f"global_load_dword v{V_X}, v{V_RA}, {sr(S_WS,2)}")
    warm("ewarm" in opts, "eprew" in opts, "a")
    def k_convert(n0, n1, dst):
        for n in (n0, n1):
            for r in range(4): a(f"v_cvt_f32_i32 v{slot(n)+r}, v{slot(n)+r}")
        for jj, n in enumerate((n0, n1)):
            a(f"v_cvt_pk_bf16_f32 v{dst+2*jj}, v{slot(n)}, v{slot(n)+1}")
            a(f"v_cvt_pk_bf16_f32 v{dst+2*jj+1}, v{slot(n)+2}, v{slot(n)+3}")
    a.c("---- first K pieces: convert and refill before q' exists")
    for s in range(PARK):
        wait_for([2 * s, 2 * s + 1])
        if s == 0: stamp(3)
        k_convert(2 * s, 2 * s + 1, V_PARK + 4 * s)
        refill(2 * s + 2)
    a.c("---- q' = q * ks * scale*log2(e), split into bf16 hi + lo")
    wait_for(["q0", "q1", "ks0", "ks1", "kz0", "kz1"])
    stamp(2)
    a(f"s_mov_b32 s{S_T0}, 0x{Cbits:08x}")
    a(f"s_mov_b32 s{S_T1}, 0xffff0000")
    x0, x1, y0, y1 = t0, t1, t2, t3
    for n in range(4):
        a(f"v_lshlrev_b32 v{x0}, 16, v{V_Q+n}")
        a(f"v_and_b32 v{x1}, s{S_T1}, v{V_Q+n}")
        a(f"v_lshlrev_b32 v{y0}, 16, v{V_KSR+n}")
        a(f"v_and_b32 v{y1}, s{S_T1}, v{V_KSR+n}")
        a(f"v_mul_f32 v{x0}, v{x0}, v{y0}")
        a(f"v_mul_f32 v{x1}, v{x1}, v{y1}")
        a(f"v_mul_f32 v{x0}, s{S_T0}, v{x0}")
        a(f"v_mul_f32 v{x1}, s{S_T0}, v{x1}")
        a(f"v_cvt_pk_bf16_f32 v{V_BHI+n}, v{x0}, v{x1}")
        a(f"v_lshlrev_b32 v{y0}, 16, v{V_BHI+n}")
        a(f"v_and_b32 v{y1}, s{S_T1}, v{V_BHI+n}")
        a(f"v_sub_f32 v{x0}, v{x0}, v{y0}")
        a(f"v_sub_f32 v{x1}, v{x1}, v{y1}")
        a(f"v_cvt_pk_bf16_f32 v{V_BLO+n}, v{x0}, v{x1}")
    a("s_nop 1")
    a.c("zero-point term  c_h = sum_d q'_d * kz_d  through the same MFMA layout")
    a(f"v_mfma_f32_16x16x32_bf16 {vr(V_D,4)}, {vr(V_KZR,4)}, {vr(V_BHI,4)}, 0")
    a(f"v_mfma_f32_16x16x32_bf16 {vr(V_D,4)}, {vr(V_KZR,4)}, {vr(V_BLO,4)}, {vr(V_D,4)}")
    a("s_nop 7")
    for c in range(4):
        a(f"v_mov_b32_dpp v{V_NEGC}, v{V_D+c} quad_perm:[0,1,2,3] row_mask:0xf bank_mask:0x{1<<c:x}")
    a("s_nop 1")
    a(f"v_add_f32_dpp v{V_NEGC}, v{V_NEGC}, v{V_NEGC} row_ror:4 row_mask:0xf bank_mask:0xf")
    a("s_nop 1")
    a(f"v_add_f32_dpp v{V_NEGC}, v{V_NEGC}, v{V_NEGC} row_ror:8 row_mask:0xf bank_mask:0xf")
    a(f"v_sub_f32 v{V_NEGC}, 0, v{V_NEGC}")

    def swarm():
        a.c("scalar touches of the pages that are first used later (address-translation warm-up, values unused)")
        a(f"s_load_dword s60, {sr(S_VS,2)}, 0")
        a(f"s_load_dword s61, {sr(S_VZ,2)}, 0")
        if "swarmv" in opts:
            a(f"s_add_u32 s56, s{S_QV}, s{S_BASE}")
            a(f"s_addc_u32 s57, s{S_QV+1}, 0")
            a(f"s_load_dword s62, s[56:57], 0")
        if "swarmw" in opts:
            a(f"s_load_dword s63, {sr(S_SLOT,2)}, 0")
            a(f"s_load_dword s59, {sr(S_OUT,2)}, 0")
    if "swarm" in opts and optv("swarmat", -1) < 0: swarm()
    a.c("---- K phase: one 4-token piece per step")
    def extract(s):
        hh, b, g = s // 16, (s // 4) % 4, s % 4
        D = V_D + 4 * (s % 4)
        dst = V_S + 4 * hh + g
        for c in range(4):
            rot = (4 * (b - c)) % 16
            ctl = f"row_ror:{rot}" if rot else "quad_perm:[0,1,2,3]"
            a(f"v_add_f32_dpp v{dst}, v{D+c}, v{V_NEGC if c == 0 else dst} {ctl} row_mask:0xf bank_mask:0x{1<<b:x}")
    def qk(D, A):
        a(f"v_mfma_f32_16x16x32_bf16 {vr(D,4)}, {vr(A,4)}, {vr(V_BHI,4)}, 0")
        a(f"v_mfma_f32_16x16x32_bf16 {vr(D,4)}, {vr(A,4)}, {vr(V_BLO,4)}, {vr(D,4)}")
    pend = None
    for s in range(PARK): qk(V_D + 4 * (s % 4), V_PARK + 4 * s)
    if PARK:
        a("s_nop 7")
        for s in range(PARK - 1): extract(s)
        pend = PARK - 1
    for s in range(PARK, NP):
        PK = V_PK + 4 * (s % 2)
        if "finek" in opts:
            for jj in range(2):
                n = 2 * s + jj
                wait_for([n])
                for r in range(4): a(f"v_cvt_f32_i32 v{slot(n)+r}, v{slot(n)+r}")
                a(f"v_cvt_pk_bf16_f32 v{PK+2*jj}, v{slot(n)}, v{slot(n)+1}")
                a(f"v_cvt_pk_bf16_f32 v{PK+2*jj+1}, v{slot(n)+2}, v{slot(n)+3}")
                n_before = len(a.lines)
                refill(n + 1)
            a("s_nop 0" if len(a.lines) > n_before else "s_nop 1")
        else:
            wait_for([2 * s, 2 * s + 1])
            if s == 0: stamp(3)
            k_convert(2 * s, 2 * s + 1, PK)
            n_before = len(a.lines)
            refill(2 * s + 2)
            if len(a.lines) - n_before < 2: a("s_nop 1")
        qk(V_D + 4 * (s % 4), PK)
        if pend is not None: extract(pend)
        pend = s
        if "st1k" in opts and s == optv("st1p", 25): stamp(1)
        if "swarm" in opts and s == optv("swarmat", -1): swarm()
        if s == LATEV: load_vsz()
        if FAST and s == max(PARK, D0 // 2 + 2):
            a.c("the early cell load is older than loads already waited for: announce this launch's combiner XCC")
            a(f"s_cmp_lg_u32 s{S_SAME}, 0")
            a("s_cbranch_scc1 L_noann")
            a(f"v_add_u32 v{V_CELL+2}, 1, v{V_CELL}")
            a(f"s_getreg_b32 s{S_T0}, hwreg(HW_REG_XCC_ID, 0, 4)")
            a(f"v_mov_b32 v{V_CELL+3}, s{S_T0}")
            a("s_mov_b64 exec, 1")
            a(f"global_store_dwordx2 v{V_CELL+1}, {vr(V_CELL+2,2)}, {sr(S_CELL,2)} offset:8 sc1")
            a("s_mov_b64 exec, -1")
            a("L_noann:")
    a("s_nop 7")
    extract(pend)
    stamp(4)

    a.c("---- softmax numerators over the wave's 128 tokens (true max of the wave)")
    S = V_S; NS = 8
    a(f"v_max3_f32 v{V_M}, v{S}, v{S+1}, v{S+2}")
    a(f"v_max3_f32 v{V_M}, v{V_M}, v{S+3}, v{S+4}")
    a(f"v_max3_f32 v{V_M}, v{V_M}, v{S+5}, v{S+6}")
    a(f"v_max_f32 v{V_M}, v{V_M}, v{S+7}")
    def allred(reg, op, tmp):
        a("s_nop 1")
        a(f"{op}_dpp v{reg}, v{reg}, v{reg} row_ror:4 row_mask:0xf bank_mask:0xf")
        a("s_nop 1")
        a(f"{op}_dpp v{reg}, v{reg}, v{reg} row_ror:8 row_mask:0xf bank_mask:0xf")
        a(f"v_mov_b32 v{tmp}, v{reg}")
        a("s_nop 1")
        a(f"v_permlane16_swap_b32 v{tmp}, v{reg}")
        a(f"{op} v{reg}, v{reg}, v{tmp}")
        a(f"v_mov_b32 v{tmp}, v{reg}")
        a("s_nop 1")
        a(f"v_permlane32_swap_b32 v{tmp}, v{reg}")
        a(f"{op} v{reg}, v{reg}, v{tmp}")
    allred(V_M, "v_max_f32", t0)
    for g in range(NS): a(f"v_sub_f32 v{S+g}, v{S+g}, v{V_M}")
    for g in range(NS): a(f"v_exp_f32 v{S+g}, v{S+g}")
    wait_for(["vs0", "vs1", "vz0", "vz1"])
    for hh in range(NH):
        a(f"v_lshlrev_b32 v{V_VS+hh}, 16, v{V_VS+hh}")
        a(f"v_lshlrev_b32 v{V_VZ+hh}, 16, v{V_VZ+hh}")
    a(f"v_add_f32 v{V_L}, v{S}, v{S+1}")
    for g in range(2, NS): a(f"v_add_f32 v{V_L}, v{V_L}, v{S+g}")
    for hh in range(NH):
        for g in range(4):
            a(f"v_mul_f32_dpp v{S+4*hh+g}, v{V_VS+hh}, v{S+4*hh+g} quad_perm:[{g},{g},{g},{g}] row_mask:0xf bank_mask:0xf")
    a(f"s_mov_b32 s{S_T1}, 0xffff0000")
    a.c("P operand write address: b*64 + par*32 + h*8 + kpair*4, lane = 32*kpair + 16*par + 4*b + h")
    a(f"v_bfe_u32 v{t1}, v{L}, 2, 2")
    a(f"v_lshlrev_b32 v{t1}, 6, v{t1}")
    a(f"v_bfe_u32 v{t2}, v{L}, 4, 1")
    a(f"v_lshl_or_b32 v{t1}, v{t2}, 5, v{t1}")
    a(f"v_and_b32 v{t2}, 3, v{L}")
    a(f"v_lshl_or_b32 v{t1}, v{t2}, 3, v{t1}")
    a(f"v_lshrrev_b32 v{t2}, 5, v{L}")
    a(f"v_lshl_or_b32 v{t1}, v{t2}, 2, v{t1}")
    a(f"s_lshl_b32 s{S_T0}, s{S_WAVE}, 11")
    a(f"v_add_u32 v{t1}, s{S_T0}, v{t1}")
    u = V_U; w_ = V_PK; hi, lo = V_PA, V_PA + 2
    for hh in range(NH):
        Sh = S + 4 * hh
        a(f"v_cvt_pk_bf16_f32 v{hi}, v{Sh}, v{Sh+1}")
        a(f"v_cvt_pk_bf16_f32 v{hi+1}, v{Sh+2}, v{Sh+3}")
        a(f"v_lshlrev_b32 v{u}, 16, v{hi}")
        a(f"v_and_b32 v{u+1}, s{S_T1}, v{hi}")
        a(f"v_lshlrev_b32 v{u+2}, 16, v{hi+1}")
        a(f"v_and_b32 v{u+3}, s{S_T1}, v{hi+1}")
        if use_lo:
            for g in range(4): a(f"v_sub_f32 v{Sh+g}, v{Sh+g}, v{u+g}")
            a(f"v_cvt_pk_bf16_f32 v{lo}, v{Sh}, v{Sh+1}")
            a(f"v_cvt_pk_bf16_f32 v{lo+1}, v{Sh+2}, v{Sh+3}")
            a(f"v_lshlrev_b32 v{w_}, 16, v{lo}")
            a(f"v_and_b32 v{w_+1}, s{S_T1}, v{lo}")
            a(f"v_lshlrev_b32 v{w_+2}, 16, v{lo+1}")
            a(f"v_and_b32 v{w_+3}, s{S_T1}, v{lo+1}")
            for g in range(4): a(f"v_add_f32 v{Sh+g}, v{w_+g}, v{u+g}")
            src = Sh
        else:
            src = u
        for g in range(4):
            op = "v_mul_f32_dpp" if (hh == 0 and g == 0) else "v_fmac_f32_dpp"
            a(f"{op} v{V_CZ}, v{V_VZ+hh}, v{src+g} quad_perm:[{g},{g},{g},{g}] row_mask:0xf bank_mask:0xf")
        for base, off in ((u, 0),) + (((w_, LO_OFF),) if use_lo else ()):
            a(f"v_permlane32_swap_b32 v{base}, v{base+1}")
            a(f"v_permlane32_swap_b32 v{base+2}, v{base+3}")
            a(f"v_cvt_pk_bf16_f32 v{base}, v{base}, v{base+1}")
            a(f"v_cvt_pk_bf16_f32 v{base+2}, v{base+2}, v{base+3}")
            a(f"ds_write_b32 v{t1}, v{base} offset:{LDS_P+off+(hh*2)*256}")
            a(f"ds_write_b32 v{t1}, v{base+2} offset:{LDS_P+off+(hh*2+1)*256}")
    a.c("launch cell line (cell value, announcement); address-translation / cache warm-up for the combiner (values unused)")
    a(f"v_mov_b32 v{t0}, 0")
    if FAST: a(f"global_load_dwordx4 {vr(V_CELL,4)}, v{t0}, {sr(S_CELL,2)}")
    else: a(f"global_load_dword v{V_CELL}, v{t0}, {sr(S_CELL,2)}")
    warm("ewarm" not in opts, "eprew" not in opts, "b")
    a("s_waitcnt lgkmcnt(0)")
    if "st5v" not in opts: stamp(5)

    a.c("---- V phase: one 4-token piece per step, MFMAs every second piece")
    def pa_read(s_):
        hh, b, m = s_ // 16, (s_ // 4) % 4, (s_ % 4) // 2
        P = V_PA + 4 * ((s_ // 2) % 2)
        off = LDS_P + ((hh * 2 + m) * 4 + b) * 64
        a(f"ds_read_b64 {vr(P,2)}, v{V_PADDR} offset:{off}")
        if use_lo: a(f"ds_read_b64 {vr(P+2,2)}, v{V_PADDR} offset:{off+LO_OFF}")
    def redn(n, reg, op, src=None):
        src = reg if src is None else src
        r = n // 2; first = True
        while r >= 1:
            if not first: a("s_nop 1")
            s_ = src if first else reg
            a(f"{op}_dpp v{reg}, v{s_}, v{s_} row_ror:{r} row_mask:0xf bank_mask:0xf")
            first = False; r //= 2
    def publish(data, stats):
        def one(fl):
            if data: a(f"global_store_dwordx2 v{V_RB}, {vr(V_O,2)}, {sr(S_SLOT,2)}{fl}")
            if stats:
                a("s_mov_b64 exec, 1")
                a(f"global_store_dwordx4 v{V_SA}, {vr(V_ML,4)}, {sr(S_SLOT,2)} offset:2048{fl}")
                a("s_mov_b64 exec, -1")
        k = "d" if data else "s"
        if not FAST:
            one(" sc1"); return
        a(f"s_cmp_eq_u32 s{S_SAME}, 0")
        a(f"s_cbranch_scc1 L_pubfast_{k}")
        one(" sc1")
        a(f"s_branch L_pubdone_{k}")
        a(f"L_pubfast_{k}:")
        one({"pubnt": " nt", "pubsc0": " sc0", "pubsc0nt": " sc0 nt"}.get(next((o for o in opts if o.startswith("pub")), ""), ""))
        a(f"L_pubdone_{k}:")
    for s_ in range(NP):
        n0, n1 = NL + 2 * s_, NL + 2 * s_ + 1
        if s_ % 2 == 0: pa_read(s_)
        if s_ == BARP:
            a.c("every wave has written its statistics: exchange them")
            a("s_barrier")
            a(f"v_and_b32 v{t2}, 3, v{L}")
            a(f"s_lshl_b32 s{S_T0}, s{S_WAVE}, 6")
            a(f"v_lshl_add_u32 v{t2}, v{t2}, 4, s{S_T0}")
            a(f"ds_read_b128 {vr(V_ST,4)}, v{t2} offset:{LDS_STAT}")
        if s_ == NP - 2:
            a.c("combiner: prefetch the pair's statistics")
            a(f"s_cmp_lg_u32 s{S_CHUNK}, 7")
            a("s_cbranch_scc1 L_nostpf")
            a(f"global_load_dwordx4 {vr(V_ST,4)}, v{V_PST}, {sr(S_PSLOT,2)} offset:2048 sc1")
            a("L_nostpf:")
        if "finev" in opts:
            wait_for([n0])
            for r in range(4): a(f"v_cvt_f32_i32 v{V_U+r}, v{slot(n0)+r}")
            refill(n0 + 1)
            wait_for([n1])
            for r in range(4): a(f"v_cvt_f32_i32 v{slot(n1)+r}, v{slot(n1)+r}")
            for r in range(4):
                a(f"v_cvt_pk_bf16_f32 v{V_PK+2*r+(s_%2)}, v{V_U+r}, v{slot(n1)+r}")
            refill(n1 + 1)
        else:
            wait_for([n0, n1])
            if "st5v" in opts and s_ == optv("st5p", 2): stamp(5)
            for n in (n0, n1):
                for r in range(4): a(f"v_cvt_f32_i32 v{slot(n)+r}, v{slot(n)+r}")
            for r in range(4):
                a(f"v_cvt_pk_bf16_f32 v{V_PK+2*r+(s_%2)}, v{slot(n0)+r}, v{slot(n1)+r}")
            refill(n1 + 1)
        if s_ % 2 == 1:
            P = V_PA + 4 * ((s_ // 2) % 2)
            a("s_waitcnt lgkmcnt(0)")
            for r in range(4):
                c_in = "0" if s_ == 1 else vr(V_ACC + 4 * r, 4)
                a(f"v_mfma_f32_4x4x4_16b_bf16 {vr(V_ACC+4*r,4)}, {vr(P,2)}, {vr(V_PK+2*r,2)}, {c_in}")
            if use_lo:
                for r in range(4):
                    a(f"v_mfma_f32_4x4x4_16b_bf16 {vr(V_ACC+4*r,4)}, {vr(P+2,2)}, {vr(V_PK+2*r,2)}, {vr(V_ACC+4*r,4)}")
        if s_ == 1:
            a.c("wave statistics (m, l, cz) per head -> LDS")
            allred(V_L, "v_add_f32", t0)
            allred(V_CZ, "v_add_f32", t0)
            a(f"v_lshlrev_b32 v{t1}, 6, v{L}")
            a(f"s_lshl_b32 s{S_T0}, s{S_WAVE}, 4")
            a(f"v_add_u32 v{t1}, s{S_T0}, v{t1}")
            a("s_mov_b64 exec, 0xf")
            a(f"ds_write_b128 v{t1}, {vr(V_M,4)} offset:{LDS_STAT}")
            a("s_mov_b64 exec, -1")
        if s_ == 3:
            a.c("addresses used by the tail")
            a(f"s_lshl_b32 s{S_T0}, s{S_WAVE}, 11")
            a(f"v_lshl_add_u32 v{V_RA}, v{L}, 3, s{S_T0}")
            a(f"s_lshl_b32 s{S_T0}, s{S_WAVE}, 9")
            a(f"v_lshl_add_u32 v{V_RB}, v{L}, 3, s{S_T0}")
            a(f"s_lshl_b32 s{S_T0}, s{S_WAVE}, 4")
            a(f"v_mov_b32 v{V_SA}, s{S_T0}")
            a(f"v_and_b32 v{V_PST}, 7, v{L}")
            a(f"v_lshlrev_b32 v{V_PST}, 12, v{V_PST}")
            a(f"v_add_u32 v{V_PST}, s{S_T0}, v{V_PST}")
            for c in range(8): a(f"v_add_u32 v{V_PAD+c}, {c*4096}, v{V_RB}")
            a(f"v_and_b32 v{V_OA}, 31, v{L}")
            a(f"v_lshlrev_b32 v{V_OA}, 3, v{V_OA}")
            a(f"v_lshrrev_b32 v{t3}, 5, v{L}")
            a(f"v_lshl_or_b32 v{V_OA}, v{t3}, 2, v{V_OA}")
            a(f"s_lshl_b32 s{S_T0}, s{S_PAIR}, 10")
            a(f"s_lshl_b32 s{S_T1}, s{S_WAVE}, 8")
            a(f"s_add_u32 s{S_T0}, s{S_T0}, s{S_T1}")
            a(f"v_add_u32 v{V_OA}, s{S_T0}, v{V_OA}")
        if s_ == BARP - 2:
            a.c("launch tag = cell + 1; the fast hand-off applies iff the combiner announced this XCC in this launch")
            a(f"v_add_u32 v{V_TAG}, 1, v{V_CELL}")
            a(f"s_movk_i32 s{S_FF}, 0xff")
            if FAST:
                a(f"s_getreg_b32 s{S_T0}, hwreg(HW_REG_XCC_ID, 0, 4)")
                a(f"v_xor_b32 v{V_CELL+2}, v{V_CELL+2}, v{V_TAG}")
                a(f"v_xor_b32 v{V_CELL+3}, s{S_T0}, v{V_CELL+3}")
                a(f"v_or_b32 v{V_CELL+2}, v{V_CELL+2}, v{V_CELL+3}")
                if "slow" in opts: a(f"v_mov_b32 v{V_CELL+2}, 1")
                a("s_nop 0")
                a(f"v_readfirstlane_b32 s{S_SAME}, v{V_CELL+2}")
        if s_ == BARP + 1:
            a.c("workgroup weights for head = wave: M, alpha_w, L, sum alpha_w cz_w; publish the statistics")
            redn(NW, V_M, "v_max_f32", V_ST)
            a(f"v_and_b32 v{V_M}, 0xffffff00, v{V_M}")
            a(f"v_sub_f32 v{V_AL}, v{V_ST}, v{V_M}")
            a(f"v_exp_f32 v{V_AL}, v{V_AL}")
            a(f"v_bfi_b32 v{V_ML}, s{S_FF}, v{V_TAG}, v{V_M}")
            a(f"v_mul_f32 v{V_L}, v{V_AL}, v{V_ST+1}")
            a(f"v_mul_f32 v{V_CZ}, v{V_AL}, v{V_ST+2}")
            a(f"v_mov_b32 v{V_ML+2}, v{V_TAG}")
            redn(NW, V_L, "v_add_f32")
            a(f"v_mov_b32 v{V_ML+3}, v{V_TAG}")
            redn(NW, V_CZ, "v_add_f32")
            a(f"v_bfi_b32 v{V_ML+1}, s{S_FF}, v{V_TAG}, v{V_L}")
            a(f"v_sub_f32 v{V_O}, 0, v{V_CZ}")
            a(f"v_sub_f32 v{V_O+1}, 0, v{V_CZ}")
            publish(False, True)
    stamp(6)

    a.c("---- workgroup reduction")
    a("s_nop 4")
    for i in range(4):
        a(f"v_permlane32_swap_b32 v{V_ACC+i}, v{V_ACC+8+i}")
        a(f"v_permlane32_swap_b32 v{V_ACC+4+i}, v{V_ACC+12+i}")
    X = V_PK
    for i in range(4):
        a(f"v_add_f32 v{X+2*i}, v{V_ACC+i}, v{V_ACC+8+i}")
        a(f"v_add_f32 v{X+2*i+1}, v{V_ACC+4+i}, v{V_ACC+12+i}")
        a(f"ds_write_b64 v{V_RA}, {vr(X+2*i,2)} offset:{LDS_RED+512*i}")
    a("s_waitcnt lgkmcnt(0)")
    a("s_barrier")
    stamp(7)
    Z = V_RING
    for w in range(NW):
        a(f"ds_read_b64 {vr(Z+2*w,2)}, v{V_RB} offset:{LDS_RED+2048*w}")
    for w in range(NW):
        a(f"s_waitcnt lgkmcnt({NW-1-w})")
        a(f"v_fmac_f32_dpp v{V_O}, v{V_AL}, v{Z+2*w} row_newbcast:{w} row_mask:0xf bank_mask:0xf")
        a(f"v_fmac_f32_dpp v{V_O+1}, v{V_AL}, v{Z+2*w+1} row_newbcast:{w} row_mask:0xf bank_mask:0xf")
    a(f"v_bfi_b32 v{V_O}, s{S_FF}, v{V_TAG}, v{V_O}")
    a(f"v_bfi_b32 v{V_O+1}, s{S_FF}, v{V_TAG}, v{V_O+1}")
    publish(True, False)
    stamp(8)
    a(f"s_cmp_lg_u32 s{S_CHUNK}, 7")
    a("s_cbranch_scc1 L_fin0" if stamps else "s_cbranch_scc1 L_end")

    if "nopoll" in opts: a("s_branch L_fin0" if stamps else "s_branch L_end")
    a.c("---- combiner: merge the pair's 8 partials")
    def poll_data():
        for c in range(8):
            a(f"global_load_dwordx2 {vr(V_Y+2*c,2)}, v{V_PAD+c}, {sr(S_PSLOT,2)} sc1")
    poll_data()
    a(f"s_mov_b32 s{S_SPIN}, {spin}")
    a("L_stchk:")
    a(f"v_xor_b32 v{t0}, v{V_ST}, v{V_TAG}")
    a(f"v_bitop3_b32 v{t0}, v{V_ST+1}, v{t0}, v{V_TAG} bitop3:0xde")
    a(f"v_xor_b32 v{t3}, v{V_ST+2}, v{V_TAG}")
    a(f"v_bitop3_b32 v{t3}, v{V_ST+3}, v{t3}, v{V_TAG} bitop3:0xde")
    a(f"v_and_or_b32 v{t0}, v{t0}, s{S_FF}, v{t3}")
    a(f"v_cmp_ne_u32 vcc, 0, v{t0}")
    a("s_cbranch_vccz L_stok")
    a(f"s_sub_u32 s{S_SPIN}, s{S_SPIN}, 1")
    a("s_cbranch_scc1 L_end")
    a(f"global_load_dwordx4 {vr(V_ST,4)}, v{V_PST}, {sr(S_PSLOT,2)} offset:2048 sc1")
    a("s_waitcnt vmcnt(0)")
    a("s_branch L_stchk")
    a("L_stok:")
    a.c("drop the tag bytes: the result must not depend on the tag value")
    a(f"s_mov_b32 s{S_T1}, 0xffffff00")
    a(f"v_and_b32 v{V_ST}, s{S_T1}, v{V_ST}")
    a(f"v_and_b32 v{V_ST+1}, s{S_T1}, v{V_ST+1}")
    a("s_nop 0")
    redn(8, V_M, "v_max_f32", V_ST)
    a(f"v_sub_f32 v{V_AL}, v{V_ST}, v{V_M}")
    a(f"v_exp_f32 v{V_AL}, v{V_AL}")
    a("s_nop 0")
    a(f"v_mul_f32 v{V_L}, v{V_AL}, v{V_ST+1}")
    a("s_nop 1")
    redn(8, V_L, "v_add_f32")
    a(f"v_rcp_f32 v{t0}, v{V_L}")
    a("s_nop 0")
    a(f"v_mul_f32 v{V_AL}, v{V_AL}, v{t0}")
    a("L_dchk:")
    for c in range(8):
        a(f"s_waitcnt vmcnt({7-c})")
        if c == 0:
            a(f"v_xor_b32 v{t0}, v{V_Y}, v{V_TAG}")
        else:
            a(f"v_bitop3_b32 v{t0}, v{V_Y+2*c}, v{t0}, v{V_TAG} bitop3:0xde")
        a(f"v_bitop3_b32 v{t0}, v{V_Y+2*c+1}, v{t0}, v{V_TAG} bitop3:0xde")
        a(f"v_and_b32 v{V_Y+2*c}, s{S_T1}, v{V_Y+2*c}")
        a(f"v_and_b32 v{V_Y+2*c+1}, s{S_T1}, v{V_Y+2*c+1}")
    a(f"v_and_b32 v{t0}, s{S_FF}, v{t0}")
    a(f"v_cmp_ne_u32 vcc, 0, v{t0}")
    a("s_cbranch_vccz L_ready")
    a(f"s_sub_u32 s{S_SPIN}, s{S_SPIN}, 1")
    a("s_cbranch_scc1 L_end")
    poll_data()
    a("s_branch L_dchk")
    a("L_ready:")
    stamp(9)
    O0, O1 = V_O, V_O + 1
    a(f"v_mul_f32_dpp v{O0}, v{V_AL}, v{V_Y} row_newbcast:0 row_mask:0xf bank_mask:0xf")
    a(f"v_mul_f32_dpp v{O1}, v{V_AL}, v{V_Y+1} row_newbcast:0 row_mask:0xf bank_mask:0xf")
    for c in range(1, 8):
        a(f"v_fmac_f32_dpp v{O0}, v{V_AL}, v{V_Y+2*c} row_newbcast:{c} row_mask:0xf bank_mask:0xf")
        a(f"v_fmac_f32_dpp v{O1}, v{V_AL}, v{V_Y+2*c+1} row_newbcast:{c} row_mask:0xf bank_mask:0xf")
    a(f"v_cvt_pk_bf16_f32 v{t0}, v{O0}, v{O1}")
    ofl = {"outplain": "", "outnt": " nt", "outss": " sc0 sc1", "outscnt": " sc1 nt"}.get(next((o for o in opts if o.startswith("out")), ""), " sc1")
    a(f"global_store_dword v{V_OA}, v{t0}, {sr(S_OUT,2)}{ofl}")
    a.c("all eight workgroups have published, so all have read the cell: advance it for the next launch")
    a(f"s_cmp_lg_u32 s{S_WAVE}, 0")
    a("s_cbranch_scc1 L_nocell")
    a(f"v_mov_b32 v{t3}, 0")
    a("s_mov_b64 exec, 1")
    a(f"global_store_dword v{t3}, v{V_TAG}, {sr(S_CELL,2)} sc1")
    a("s_mov_b64 exec, -1")
    a("L_nocell:")
    if stamps and optv("amp", 0):
        stamp(10)
        a("s_waitcnt lgkmcnt(0)")
        K_, ia, ib = optv("amp", 0), optv("ampa", 0), optv("ampb", 10)
        a(f"s_sub_u32 s{S_T0}, s{S_ST+2*ib}, s{S_ST+2*ia}")
        a(f"s_min_u32 s{S_T0}, s{S_T0}, 20000")
        a(f"s_mul_i32 s{S_T0}, s{S_T0}, {K_}")
        a(f"s_add_u32 s{S_T0}, s{S_T0}, s{S_ST+20}")
        a("L_amp:")
        a(f"s_memrealtime s[{S_ST+22}:{S_ST+23}]")
        a("s_waitcnt lgkmcnt(0)")
        a(f"s_sub_u32 s{S_T1}, s{S_ST+22}, s{S_T0}")
        a(f"s_cmp_lt_i32 s{S_T1}, 0")
        a("s_cbranch_scc1 L_amp")
        a("L_fin0:")
    elif stamps:
        stamp(10)
        a("L_fin0:")
        a("s_waitcnt lgkmcnt(0)")
        vx, va_ = t0, t1
        a(f"v_mov_b32 v{vx}, 0")
        for i in range(11): a(f"v_writelane_b32 v{vx}, s{S_ST+2*i}, {i}")
        a(f"s_getreg_b32 s{S_T1}, hwreg(HW_REG_HW_ID)")
        a(f"v_writelane_b32 v{vx}, s{S_T1}, 14")
        a(f"s_getreg_b32 s{S_T1}, hwreg(HW_REG_XCC_ID)")
        a(f"v_writelane_b32 v{vx}, s{S_T1}, 15")
        a(f"s_mul_i32 s{S_T1}, s{S_WG}, {NW}")
        a(f"s_add_u32 s{S_T1}, s{S_T1}, s{S_WAVE}")
        a(f"s_lshl_b32 s{S_T1}, s{S_T1}, 6")
        a(f"s_add_u32 s{S_T1}, s{S_T1}, 0x8000000")
        a(f"v_lshl_add_u32 v{va_}, v{L}, 2, s{S_T1}")
        a("s_mov_b64 exec, 0xffff")
        a(f"global_store_dword v{va_}, v{vx}, {sr(S_WS,2)}")
    a("L_end:")
    a("s_endpgm")
    tail = f""".section .rodata,"a"
.p2align 6
.amdhsa_kernel {KNAME}_kernel
  .amdhsa_next_free_vgpr {NV}
  .amdhsa_next_free_sgpr {96 if stamps else 64}
  .amdhsa_accum_offset {(NV+3)//4*4}
  .amdhsa_group_segment_fixed_size 0
  .amdhsa_kernarg_size 80
  .amdhsa_user_sgpr_count 2
  .amdhsa_user_sgpr_kernarg_segment_ptr 1
  .amdhsa_system_sgpr_workgroup_id_x 1
  .amdhsa_float_denorm_mode_32 3
.end_amdhsa_kernel
"""
    txt = a.text()
    def drop(pred):
        nonlocal txt
        txt = "\n".join(l for l in txt.split("\n") if not pred(l))
    if "nosmall" in opts: drop(lambda l: "global_load_dwordx2 v[4" in l or "global_load_dwordx2 v[50" in l or "global_load_ushort" in l)
    if "noq" in opts: drop(lambda l: "global_load_dwordx2 v[4" in l or "global_load_dwordx2 v[50" in l)
    if "novs" in opts: drop(lambda l: "global_load_ushort" in l)
    if "nocell" in opts: drop(lambda l: f"global_load_dword v{V_X}" in l or f"global_load_dword v{V_CELL}" in l or f"global_load_dwordx4 v[{V_CELL}" in l or "offset:8 sc1" in l or f"global_load_dwordx4 v[{V_ST}" in l)
    if "nobar" in opts:
        i = txt.index("s_barrier"); txt = txt[:i] + "s_nop 0" + txt[i+len("s_barrier"):]
    if "novalu" in opts: drop(lambda l: "v_cvt_f32_i32" in l or "v_mfma" in l or "v_cvt_pk_bf16" in l or "_dpp" in l or "v_exp" in l or "v_permlane" in l)
    return head + txt + tail, lds

DOC = """;
;  * int32 -> bf16 goes through v_cvt_f32_i32 + v_cvt_pk_bf16_f32 (any int32 code, same rounding as the reference cast).
;    in its low byte, the pair's last workgroup polls for the tag, drops the tag bytes, merges, writes the output
"""

if __name__ == "__main__":
    ap = argparse.ArgumentParser()
    ap.add_argument("-G", type=int, default=8)
    ap.add_argument("--stamps", action="store_true")
    ap.add_argument("--opt", action="append", default=[])
    ap.add_argument("-o", default="cdna_kernels/" + KNAME + ".s")
    args = ap.parse_args()
    s, lds = gen(G=args.G, stamps=args.stamps, opts=args.opt)
    if "codepf" in args.opt:
        import subprocess, re, os
        opts2 = args.opt + ["codelen=65"]
        s, lds = gen(G=args.G, stamps=args.stamps, opts=opts2)
        tmp = "_pass1.s"
        open(tmp, "w").write(s)
        subprocess.run(["clang", "-x", "assembler", "-target", "amdgcn-amd-amdhsa", "-mcpu=gfx950", "-c", tmp, "-o", tmp + ".o"], check=True)
        d = subprocess.run(["nm", tmp + ".o"], capture_output=True, text=True).stdout
        pc = int(re.search(r"([0-9a-f]+) t L_pc", d).group(1), 16); end = int(re.search(r"([0-9a-f]+) t L_end", d).group(1), 16)
        s, lds = gen(G=args.G, stamps=args.stamps, opts=args.opt + [f"codelen={end - pc}"])
        os.remove(tmp); os.remove(tmp + ".o")
    open(args.o, "w").write(s)
    print(lds)
```
